```python
import torch

def _softmax(x, axis=-1):
    return torch.softmax(x, dim=axis)

def _gelu(x):
    return torch.nn.functional.gelu(x, approximate='tanh')

def _silu(x):
    return torch.nn.functional.silu(x)

def _sigmoid(x):
    return torch.sigmoid(x)

def _layernorm(x, axis=-1, eps=1e-05):
    m = x.mean(dim=axis, keepdim=True)
    v = x.var(dim=axis, keepdim=True, unbiased=False)
    return (x - m) / torch.sqrt(v + eps)

def _scatter_add(tgt, idx, src, axis=0):
    return tgt.clone().index_add_(axis, idx, src)

def _segment_sum(src, seg, n):
    out = torch.zeros((n,) + src.shape[1:], dtype=src.dtype)
    return out.index_add_(0, seg, src)

def _pad(x, pw):
    flat = tuple((v for pair in reversed(pw) for v in pair))
    return torch.nn.functional.pad(x, flat)
kernel_name = 'adaLN_cond__mha_block__dense_activation_silu__prompt'

def setup_inputs():

    _w = lambda a: (lambda t: t.to(torch.bfloat16) if t.is_floating_point() else t)(torch.as_tensor(a))

    def _A_setup():
        B, S, D, H = (1, 2048, 576, 32)
        return {'x': _w((lambda *s: torch.randn(*s, dtype=torch.bfloat16) * 0.05)(B, S, D)), 'wqkv': _w((lambda *s: torch.randn(*s, dtype=torch.bfloat16) * 0.05)(D, 3 * D)), 'wo': _w((lambda *s: torch.randn(*s, dtype=torch.bfloat16) * 0.05)(D, D))}
    _A_in = _A_setup()

    def _B_setup():
        B, S, D, F = (1, 2048, 576, 4608)
        return {'x': _w((lambda *s: torch.randn(*s, dtype=torch.bfloat16) * 0.05)(B, S, D)), 'w1': _w((lambda *s: torch.randn(*s, dtype=torch.bfloat16) * 3.2)(D, F) * D ** (-0.5)), 'w2': _w((lambda *s: torch.randn(*s, dtype=torch.bfloat16) * 0.4)(F, D) * F ** (-0.5))}
    _B_in = _B_setup()
    return {'A_x': _A_in['x'], 'A_wqkv': _A_in['wqkv'], 'A_wo': _A_in['wo'], 'B_x': _B_in['x'], 'B_w1': _B_in['w1'], 'B_w2': _B_in['w2'], 'c': _w((lambda *s: torch.randn(*s, dtype=torch.bfloat16) * 0.1)(1, 576) * 8.0), 'w_mod': _w((lambda *s: torch.randn(*s, dtype=torch.bfloat16) * 0.1)(576, 6 * 576) * 576 ** (-0.5) * 8.0)}

def reference(A_x, A_wqkv, A_wo, B_x, B_w1, B_w2, c, w_mod):

    def _A_ref(x, wqkv, wo):
        B, S, D = x.shape
        H = 32
        Dh = D // H
        qkv = (lambda x, *d: x.permute(*d))((x @ wqkv).reshape(B, S, 3, H, Dh), 2, 0, 3, 1, 4)
        q, k, v = (qkv[0], qkv[1], qkv[2])
        scores = torch.einsum('bhqd,bhkd->bhqk', q, k) * Dh ** (-0.5)
        p = _softmax(scores, axis=-1)
        o = torch.einsum('bhqk,bhkd->bhqd', p, v)
        return (lambda x, *d: x.permute(*d))(o, 0, 2, 1, 3).reshape(B, S, D) @ wo

    def _B_ref(x, w1, w2):
        h = torch.einsum('bsd,df->bsf', x, w1)
        h = _silu(h)
        out = torch.einsum('bsf,fd->bsd', h, w2)
        return out
    x = A_x
    mod = (_silu(c) @ w_mod).reshape(c.shape[0], 6, 1, -1)
    sa, ca, ga, sb, cb, gb = (mod[:, 0].clone(), mod[:, 1].clone(), mod[:, 2].clone(), mod[:, 3].clone(), mod[:, 4].clone(), mod[:, 5].clone())
    h = _layernorm(x, axis=-1) * (1 + ca) + sa
    x = x + ga * _A_ref(h, A_wqkv, A_wo)
    h = _layernorm(x, axis=-1) * (1 + cb) + sb
    x = x + gb * _B_ref(h, B_w1, B_w2)
    return x
```

```python
import re

REG_RE = re.compile(r'^(-|\|)?(?:abs\()?([vas])(?:(\d+)|\[(\d+):(\d+)\])\)?\|?$')

def parse_reg(tok):
    tok = tok.strip()
    t = tok.lstrip('-').strip('|')
    if t.startswith('abs('): t = t[4:-1]
    if t in ('vcc', 'vcc_lo', 'vcc_hi'): return {('vcc', 0)}
    if t in ('exec', 'exec_lo', 'exec_hi'): return {('exec', 0)}
    if t == 'm0': return {('m0', 0)}
    m = re.match(r'^([vas])(\d+)$', t)
    if m: return {(m.group(1), int(m.group(2)))}
    m = re.match(r'^([vas])\[(\d+):(\d+)\]$', t)
    if m: return {(m.group(1), i) for i in range(int(m.group(2)), int(m.group(3)) + 1)}
    return set()

def split_ops(s):
    ops, depth, cur = [], 0, ''
    for ch in s:
        if ch in '[(': depth += 1
        if ch in '])': depth -= 1
        if ch == ',' and depth == 0:
            ops.append(cur.strip()); cur = ''
        else:
            cur += ch
    if cur.strip(): ops.append(cur.strip())
    return ops

MFMA_PASSES = {'v_mfma_f32_16x16x32_bf16': 4, 'v_mfma_f32_32x32x16_bf16': 8, 'v_mfma_f32_32x32x4_2b_bf16': 16,
               'v_mfma_f32_32x32x8_bf16': 8, 'v_mfma_f32_16x16x16_bf16': 4}
TRANS = ('v_exp_f32', 'v_log_f32', 'v_rcp_f32', 'v_rsq_f32', 'v_sqrt_f32', 'v_sin_f32', 'v_cos_f32', 'v_rcp_iflag_f32', 'v_exp_f16')

class Inst:
    def __init__(self, text):
        self.text = text
        t = text.split(';')[0].strip()
        parts = t.split(None, 1)
        self.op = parts[0]
        rest = parts[1] if len(parts) > 1 else ''
        ops = split_ops(rest)
        mods = ''
        if ops:
            last = ops[-1].split(None, 1)
            if len(last) > 1 and not ops[-1].startswith('hwreg'):
                ops[-1] = last[0]; mods = last[1]
        self.ops, self.mods = ops, mods
        op = self.op
        base = re.sub(r'_(e32|e64|dpp|sdwa)$', '', op)
        self.base = base
        R = [parse_reg(o) for o in ops]
        self.dst, self.src = set(), set()
        self.kind = 'other'
        self.A = self.B = self.C = set()
        self.passes = 0
        self.wait_states = 1
        allr = set().union(*R) if R else set()
        if base.startswith('v_mfma'):
            self.kind = 'mfma'; self.passes = MFMA_PASSES[base]
            self.dst = R[0]; self.A, self.B, self.C = R[1], R[2], R[3]
            self.src = R[1] | R[2] | R[3]
        elif base.startswith('v_'):
            self.kind = 'valu'
            if base.startswith('v_cmpx'):
                self.dst = R[0] | {('exec', 0)}; self.src = set().union(*R[1:])
            elif base.startswith('v_cmp'):
                self.dst = R[0]; self.src = set().union(*R[1:])
            elif base in ('v_readfirstlane_b32', 'v_readlane_b32'):
                self.dst = R[0]; self.src = set().union(*R[1:])
            elif base.startswith('v_permlane') and 'swap' in base:
                self.dst = R[0] | R[1]; self.src = R[0] | R[1]
            elif base in ('v_add_co_u32', 'v_sub_co_u32', 'v_subrev_co_u32', 'v_addc_co_u32', 'v_subb_co_u32', 'v_subbrev_co_u32', 'v_div_scale_f32', 'v_mad_u64_u32'):
                self.dst = R[0] | R[1]; self.src = set().union(*R[2:])
            else:
                self.dst = R[0]; self.src = set().union(*R[1:]) if len(R) > 1 else set()
                if base in ('v_fmac_f32', 'v_pk_fmac_f16', 'v_writelane_b32', 'v_dot2c_f32_bf16') or 'UNUSED_PRESERVE' in mods:
                    self.src |= R[0]
                if base == 'v_cndmask_b32' and len(ops) == 3:
                    self.src |= {('vcc', 0)}
                if base == 'v_div_fmas_f32': self.src |= {('vcc', 0)}
            self.src |= {('exec', 0)}
            self.is_dpp = op.endswith('_dpp') or any(k in mods for k in ('row_shr', 'row_shl', 'row_ror', 'quad_perm', 'row_mirror', 'row_half_mirror', 'row_bcast', 'wave_'))
            self.is_sdwa = op.endswith('_sdwa') or 'dst_sel' in mods or 'op_sel' in mods
        elif base.startswith('ds_'):
            self.kind = 'ds'
            if base.startswith(('ds_read', 'ds_bpermute', 'ds_permute', 'ds_swizzle')) or '_rtn' in base:
                self.dst = R[0]; self.src = set().union(*R[1:])
                if 'd16' in base: self.src |= R[0]
            else:
                self.src = allr
        elif base.startswith('buffer_') :
            self.kind = 'vmem'
            if base in ('buffer_inv', 'buffer_wbl2'):
                pass
            elif base.startswith('buffer_load'):
                if re.search(r'\blds\b', mods):
                    self.src = allr | {('m0', 0)}
                    self.lds_dma = True
                else:
                    self.dst = R[0]; self.src = set().union(*R[1:])
                    if 'd16' in base: self.src |= R[0]
            elif base.startswith('buffer_store'):
                self.src = allr; self.store_data = R[0]
            elif base.startswith('buffer_atomic'):
                self.src = allr
                if 'sc0' in mods: self.dst = R[0]
        elif base.startswith('global_'):
            self.kind = 'vmem'
            if base.startswith('global_load_lds'):
                self.src = allr | {('m0', 0)}; self.lds_dma = True
            elif base.startswith('global_load'):
                self.dst = R[0]; self.src = set().union(*R[1:])
            elif base.startswith('global_store'):
                self.src = allr; self.store_data = R[1]
            else:
                self.src = allr
        elif base.startswith('s_'):
            self.kind = 'salu'
            if base == 's_nop':
                self.wait_states = int(ops[0], 0) + 1
            elif base.startswith(('s_cmp', 's_waitcnt', 's_barrier', 's_branch', 's_cbranch', 's_endpgm', 's_sleep', 's_setprio', 's_sendmsg', 's_setreg', 's_bitcmp')):
                self.src = allr
                if base.startswith('s_cbranch_vcc'): self.src |= {('vcc', 0)}
                if base.startswith('s_cbranch_exec'): self.src |= {('exec', 0)}
            elif 'saveexec' in base:
                self.dst = R[0] | {('exec', 0)}; self.src = set().union(*R[1:]) | {('exec', 0)}
            elif base.startswith(('s_load', 's_buffer_load', 's_memtime', 's_memrealtime', 's_atomic')):
                self.kind = 'smem'
                self.dst = R[0]; self.src = set().union(*R[1:]) if len(R) > 1 else set()
            else:
                self.dst = R[0] if R else set(); self.src = set().union(*R[1:]) if len(R) > 1 else set()
        self.wide_store = self.kind == 'vmem' and hasattr(self, 'store_data') and re.search(r'x[34]$', base) is not None

    def vdst(self): return {r for r in self.dst if r[0] in 'va'}
    def sdst(self): return {r for r in self.dst if r[0] in ('s', 'vcc')}

XDL_RD = {2: 5, 4: 8, 8: 12, 16: 20}
XDL_C_OVL = {2: 4, 4: 6, 8: 10, 16: 18}
XDL_C_WAR = {2: 1, 4: 3, 8: 7, 16: 15}

def unify(rs):
    return rs

def required_gap(p, c):
    need = 0
    pv = p.vdst()
    if p.kind == 'mfma':
        if c.kind == 'mfma':
            if pv & (c.A | c.B): need = max(need, XDL_RD[p.passes])
            if pv & c.C:
                if p.dst == c.C and p.passes == c.passes:
                    need = max(need, 2 if p.passes == 2 else 0)
                else:
                    need = max(need, XDL_C_OVL[p.passes])
            elif pv & c.dst and not (p.dst == c.dst and p.passes == c.passes):
                need = max(need, XDL_C_OVL[p.passes])
        elif c.kind in ('valu', 'vmem', 'ds'):
            if pv & (c.src | c.dst): need = max(need, XDL_RD[p.passes])
        if c.kind == 'valu' and (p.C & c.vdst()): need = max(need, XDL_C_WAR[p.passes])
    if p.kind == 'valu':
        if c.kind == 'mfma' and (pv & c.src): need = max(need, 2)
        if c.kind == 'mfma' and ('exec', 0) in p.dst: need = max(need, 4)
        ps = p.sdst()
        if ps:
            if c.kind == 'vmem' and (ps & c.src): need = max(need, 5)
            if c.kind == 'valu' and (ps & c.src):
                need = max(need, 2)
                if c.base in ('v_readlane_b32', 'v_writelane_b32'): need = max(need, 4)
                if c.base == 'v_div_fmas_f32': need = max(need, 4)
            if c.kind in ('salu', 'smem') and (ps & c.src): need = max(need, 1)
        if c.kind == 'valu':
            if c.base in ('v_readfirstlane_b32', 'v_readlane_b32') and (pv & c.src): need = max(need, 1)
            if getattr(c, 'is_dpp', False) and (pv & c.src): need = max(need, 2)
            if c.base.startswith('v_permlane') and (pv & c.src): need = max(need, 2)
            if p.base in TRANS and c.base not in TRANS and (pv & c.src): need = max(need, 1)
            if p.base in TRANS and c.base in TRANS and (pv & c.src): need = max(need, 1)
            if getattr(p, 'is_sdwa', False) and (pv & (c.src | c.dst)): need = max(need, 1)
            if ('exec', 0) in p.dst:
                if getattr(c, 'is_dpp', False): need = max(need, 5)
                if c.base in ('v_readfirstlane_b32', 'v_readlane_b32', 'v_writelane_b32') or c.base.startswith('v_permlane'): need = max(need, 4)
                if any(parse_reg(o) == {('exec', 0)} for o in c.ops): need = max(need, 2)
        if p.base in TRANS and c.kind in ('vmem', 'ds') and (pv & c.src): need = max(need, 1)
    if p.kind == 'salu' and ('m0', 0) in p.dst and (getattr(c, 'lds_dma', False) or c.base.startswith('s_sendmsg') or 'addtid' in c.base):
        need = max(need, 1)
    if getattr(p, 'wide_store', False):
        if c.vdst() & p.store_data:
            need = max(need, 2 if c.kind in ('valu', 'mfma') else 1)
    return need

MAXWIN = 22

class Asm:
    def __init__(self):
        self.items = []
        self.vm = 0
        self.lg = 0
        self.uid = 0
    def I(self, text):
        for line in text.strip().split('\n'):
            line = line.strip()
            if not line or line.startswith(';'): continue
            if line.endswith(':') and ' ' not in line:
                self.items.append(('l', line[:-1])); continue
            ins = Inst(line)
            self.items.append(('i', ins))
            if ins.kind == 'vmem' and ins.base not in ('buffer_inv', 'buffer_wbl2'): self.vm += 1
            if ins.kind == 'ds': self.lg += 1
    def label(self, name): self.items.append(('l', name))
    def raw(self, text): self.items.append(('raw', text))
    def newlabel(self, p='L'):
        self.uid += 1; return f'{p}_{self.uid}'
    def vmem(self, text):
        self.I(text); return self.vm
    def lds(self, text):
        self.I(text); return self.lg
    def wait(self, vm=None, lg=None):
        parts = []
        if vm is not None:
            n = self.vm - vm
            assert n >= 0
            parts.append(f'vmcnt({min(n, 63)})') if n <= 63 else None
            if n > 63: parts.append('vmcnt(63)')
        if lg is not None:
            n = self.lg - lg
            assert n >= 0
            parts.append(f'lgkmcnt({min(n, 15)})')
        if parts: self.I('s_waitcnt ' + ' '.join(parts))

    def finalize(self):
        items = self.items
        labels = {it[1]: idx for idx, it in enumerate(items) if it[0] == 'l'}
        def following(idx, n):
            out = []
            j = idx
            while j < len(items) and len(out) < n:
                if items[j][0] == 'i':
                    out.append(items[j][1])
                    if items[j][1].base in ('s_endpgm', 's_branch'): break
                j += 1
            return out
        out = []
        hist = []
        def deficit(hist, c, extra=0):
            dist = extra; worst = 0
            for p in reversed(hist):
                if dist >= MAXWIN: break
                need = required_gap(p, c)
                if need > dist: worst = max(worst, need - dist)
                dist += p.wait_states
            return worst
        nn = 0
        for idx, it in enumerate(items):
            if it[0] != 'i':
                out.append(it); continue
            c = it[1]
            d = deficit(hist, c)
            is_branch = c.base.startswith(('s_branch', 's_cbranch'))
            if is_branch:
                tgt = c.ops[0]
                if tgt in labels:
                    fol = following(labels[tgt], MAXWIN)
                    dist = 1
                    for f in fol:
                        dd = deficit(hist, f, dist)
                        d = max(d, dd)
                        dist += f.wait_states
                        if dist >= MAXWIN: break
            while d > 0:
                k = min(d, 16)
                nop = Inst(f's_nop {k-1}')
                out.append(('i', nop)); hist.append(nop); d -= k; nn += 1
            out.append(it); hist.append(c)
            if c.base in ('s_endpgm', 's_branch'):
                hist = []
            if len(hist) > 64: hist = hist[-40:]
        txt = []
        for it in out:
            if it[0] == 'i': txt.append('    ' + it[1].text)
            elif it[0] == 'l': txt.append(it[1] + ':')
            else: txt.append(it[1])
        return '\n'.join(txt) + '\n', nn
```

```python
from common import *

S0, S1, O, CI, P, QLO, QHI = 16, 32, 48, 64, 80, 88, 92
KLO = (96, 100); KHI = (104, 108); VF = (112, 120)
IMG = 64*KV_TILE
SPARE = IMG
def r(b, n): return f'v[{b}:{b+n-1}]'
def mf(d, a_, b_, c): return f'v_mfma_f32_32x32x16_bf16 {r(d,16)}, {r(a_,4)}, {r(b_,4)}, {c}'

def k2():
    a = Asm()
    a.I('s_cmp_ge_u32 s2, 256'); a.I('s_cbranch_scc1 K2_END')
    a.I(f's_load_dwordx2 s[4:5], s[0:1], {A_WS}')
    a.I('v_lshrrev_b32 v1, 6, v0'); a.I('v_readfirstlane_b32 s20, v1')
    a.I('v_and_b32 v1, 63, v0')
    a.I('s_and_b32 s21, s2, 7'); a.I('s_lshl_b32 s21, s21, 2'); a.I('s_bfe_u32 s22, s2, 0x20003'); a.I('s_add_u32 s21, s21, s22')
    a.I('s_lshr_b32 s22, s2, 5')
    a.I('s_and_b32 s23, s20, 7')
    a.I('s_lshr_b32 s24, s20, 3')
    a.I('s_lshl_b32 s25, s22, 3'); a.I('s_add_u32 s25, s25, s23')
    a.I('s_mov_b32 s40, 0')
    a.I('s_waitcnt lgkmcnt(0)')
    a.I(f's_mul_i32 s26, s21, {IMG}')
    a.I('s_add_u32 s8, s4, s26'); a.I('s_addc_u32 s9, s5, 0')
    a.I(f's_add_u32 s8, s8, {WS.KVIMG}'); a.I('s_addc_u32 s9, s9, 0')
    a.I(f's_mov_b32 s10, {IMG}'); a.I('s_mov_b32 s11, 0x00020000')
    srd(a, 12, 4, 5, WS.QIMG_SZ, WS.QIMG)
    srd(a, 16, 4, 5, WS.KMAX_SZ, WS.KMAX)
    a.I('v_lshlrev_b32 v5, 4, v1')
    a.I('s_lshl_b32 s26, s21, 6'); a.I('s_add_u32 s26, s26, s25'); a.I(f's_mul_i32 s26, s26, {QT_BYTES}')
    a.vmem(f'buffer_load_dwordx4 {r(QLO,4)}, v5, s[12:15], s26 offen')
    a.I('v_and_b32 v6, 31, v1'); a.I('v_lshlrev_b32 v7, 2, v6')
    a.vmem(f'buffer_load_dword v{QHI}, v7, s[12:15], s26 offen offset:1024')
    a.I('v_lshlrev_b32 v8, 2, v1'); a.I('s_lshl_b32 s26, s21, 8')
    a.vmem('buffer_load_dword v9, v8, s[16:19], s26 offen')
    qtok = a.vm
    a.I('v_mov_b32 v10, 0'); a.I(f'v_mov_b32 v11, {SPARE}')
    a.I('ds_write_b32 v11, v10 offset:8192')
    a.label('K2_RESTART')
    a.I('s_lshl_b32 s26, s20, 10')
    for j in range(10):
        if j == 9:
            a.I('s_cmp_ge_u32 s20, 4'); a.I('s_cbranch_scc1 K2_DMA_DONE')
        a.I('s_mov_b32 m0, s26')
        a.vmem('buffer_load_dwordx4 v5, s[8:11], s26 offen lds')
        a.I('s_add_u32 s26, s26, 16384')
    a.label('K2_DMA_DONE')
    a.I(f's_mul_i32 s27, s24, {32*KV_TILE}')
    a.I('v_add_u32 v2, s27, v5')
    a.I('v_add_u32 v3, s27, v7')
    a.I('v_min_u32 v4, 18, v6')
    a.I('v_lshrrev_b32 v10, 5, v1')
    a.I('v_mul_u32_u24 v11, 19, v10')
    a.I('v_add_u32 v4, v4, v11'); a.I('v_lshlrev_b32 v4, 4, v4'); a.I('v_add_u32 v4, s27, v4')
    a.I('s_cmp_lg_u32 s40, 0')
    a.I('s_cbranch_scc1 K2_SKIPQ')
    a.I('s_waitcnt vmcnt(9)')
    a.I(f'v_cmp_eq_u32 vcc, 0, v10')
    a.I(f'v_cndmask_b32 v{QHI}, 0, v{QHI}, vcc')
    for j in range(1, 4): a.I(f'v_mov_b32 v{QHI+j}, 0')
    for b in KHI:
        for j in range(1, 4): a.I(f'v_mov_b32 v{b+j}, 0')
    a.I('v_mov_b32 v12, 0')
    for q in [QLO, QLO+1, QLO+2, QLO+3, QHI]:
        a.I(f'v_lshlrev_b32 v13, 16, v{q}'); a.I('v_fmac_f32 v12, v13, v13')
        a.I(f'v_and_b32 v13, 0xffff0000, v{q}'); a.I('v_fmac_f32 v12, v13, v13')
    a.I('v_mov_b32 v13, v12'); a.I('v_permlane32_swap_b32 v12, v13'); a.I('v_add_f32 v12, v12, v13')
    for dpp in ('quad_perm:[1,0,3,2]', 'quad_perm:[2,3,0,1]', 'row_half_mirror', 'row_mirror'):
        a.I(f'v_max_f32_dpp v9, v9, v9 {dpp} row_mask:0xf bank_mask:0xf')
    a.I('v_mov_b32 v13, v9'); a.I('v_permlane16_swap_b32 v9, v13'); a.I('v_max_f32 v9, v9, v13')
    a.I('v_mov_b32 v13, v9'); a.I('v_permlane32_swap_b32 v9, v13'); a.I('v_max_f32 v9, v9, v13')
    a.I('v_mul_f32 v12, v12, v9')
    a.I('v_sqrt_f32 v12, v12')
    a.I(f'v_mul_f32 v12, {hex(f32bits(-1.015625))}, v12')
    for j in range(16): a.I(f'v_mov_b32 v{CI+j}, v12')
    a.label('K2_SKIPQ')
    a.I('s_waitcnt vmcnt(0) lgkmcnt(0)')
    a.I('s_barrier')
    a.I('s_cmp_eq_u32 s40, 0')
    a.I('s_cbranch_scc1 K2_MAIN')
    a.I('v_mov_b32 v12, 0xff800000')
    a.I('v_mov_b32 v14, v2'); a.I('v_mov_b32 v15, v3')
    a.I('s_mov_b32 s28, 32')
    a.label('K2_MAXLOOP')
    a.I(f'ds_read_b128 {r(KLO[0],4)}, v14'); a.I(f'ds_read_b32 v{KHI[0]}, v15 offset:1024')
    a.I('s_waitcnt lgkmcnt(0)')
    a.I(mf(S0, KLO[0], QLO, '0')); a.I(mf(S0, KHI[0], QHI, r(S0,16)))
    for j in range(0, 16, 2): a.I(f'v_max3_f32 v12, v12, v{S0+j}, v{S0+j+1}')
    a.I(f'v_add_u32 v14, {KV_TILE}, v14'); a.I(f'v_add_u32 v15, {KV_TILE}, v15')
    a.I('s_sub_u32 s28, s28, 1'); a.I('s_cmp_lg_u32 s28, 0'); a.I('s_cbranch_scc1 K2_MAXLOOP')
    a.I('v_mov_b32 v13, v12'); a.I('v_permlane32_swap_b32 v12, v13'); a.I('v_max_f32 v12, v12, v13')
    a.I('s_lshl_b32 s28, s20, 8'); a.I(f's_add_u32 s28, s28, {SPARE}'); a.I('v_add_u32 v14, s28, v8')
    a.I('ds_write_b32 v14, v12')
    a.I('s_waitcnt lgkmcnt(0)'); a.I('s_barrier')
    a.I('s_xor_b32 s28, s20, 8'); a.I('s_lshl_b32 s28, s28, 8'); a.I(f's_add_u32 s28, s28, {SPARE}'); a.I('v_add_u32 v14, s28, v8')
    a.I('ds_read_b32 v13, v14'); a.I('s_waitcnt lgkmcnt(0)')
    a.I('v_max_f32 v12, v12, v13')
    a.I('v_sub_f32 v12, 0, v12')
    for j in range(16): a.I(f'v_mov_b32 v{CI+j}, v12')
    a.label('K2_MAIN')
    for j in range(16): a.I(f'v_mov_b32 v{O+j}, 0')
    def rdK(t, buf):
        a.I(f'ds_read_b128 {r(KLO[buf],4)}, v2 offset:{t*KV_TILE}')
        a.I(f'ds_read_b32 v{KHI[buf]}, v3 offset:{t*KV_TILE+1024}')
    def rdV(t, buf):
        a.I(f'ds_read_b128 {r(VF[buf],4)}, v4 offset:{t*KV_TILE+VT_OFF}')
        a.I(f'ds_read_b128 {r(VF[buf]+4,4)}, v4 offset:{t*KV_TILE+VT_OFF+608}')
    def qk(buf, sreg):
        a.I(mf(sreg, KLO[buf], QLO, r(CI,16)))
        a.I(mf(sreg, KHI[buf], QHI, r(sreg,16)))
    rdK(0, 0); rdK(1, 1); rdV(0, 0)
    a.I('s_waitcnt lgkmcnt(0)')
    qk(0, S0)
    a.I('s_mov_b32 s28, 4')
    a.label('K2_LOOP')
    U = 8
    for t in range(U):
        cur = (S0, S1)[t & 1]; nxt = (S0, S1)[(t+1) & 1]
        a.I('s_waitcnt lgkmcnt(0)')
        qk((t+1) & 1, nxt)
        rdK(t+2, t & 1)
        rdV(t+1, (t+1) & 1)
        for hh in range(2):
            for j in range(8): a.I(f'v_exp_f32 v{cur+hh*8+j}, v{cur+hh*8+j}')
            for j in range(4): a.I(f'v_cvt_pk_bf16_f32 v{P+hh*4+j}, v{cur+hh*8+2*j}, v{cur+hh*8+2*j+1}')
            a.I(mf(O, VF[t & 1]+hh*4, P+hh*4, r(O,16)))
    for v in (2, 3, 4): a.I(f'v_add_u32 v{v}, {U*KV_TILE}, v{v}')
    a.I('s_sub_u32 s28, s28, 1'); a.I('s_cmp_lg_u32 s28, 0'); a.I('s_cbranch_scc1 K2_LOOP')
    a.I('s_waitcnt lgkmcnt(0)')
    a.I('s_barrier')
    a.I(f's_mul_i32 s28, s23, 3072'); a.I('v_add_u32 v14, s28, v5')
    a.I('s_cmp_eq_u32 s24, 0'); a.I('s_cbranch_scc1 K2_M0')
    for j in range(3): a.I(f'ds_write_b128 v14, {r(O+4*j,4)} offset:{j*1024}')
    a.I('s_waitcnt lgkmcnt(0)')
    a.I('s_barrier')
    a.I('s_branch K2_M1')
    a.label('K2_M0')
    a.I('s_barrier')
    for j in range(3): a.I(f'ds_read_b128 {r(S0+4*j,4)}, v14 offset:{j*1024}')
    a.I('s_waitcnt lgkmcnt(0)')
    for j in range(12): a.I(f'v_add_f32 v{O+j}, v{O+j}, v{S0+j}')
    a.I(f's_mov_b32 s29, {hex(f32bits(2.0**-90))}')
    a.I(f'v_cmp_nle_f32 vcc, s29, v{O+10}')
    a.I('s_cmp_eq_u64 vcc, 0') ; a.I('s_cbranch_scc1 K2_M1')
    a.I('v_mov_b32 v12, 1'); a.I(f'v_mov_b32 v13, {SPARE}'); a.I('ds_write_b32 v13, v12 offset:8192')
    a.I('s_waitcnt lgkmcnt(0)')
    a.label('K2_M1')
    a.I('s_barrier')
    a.I(f'v_mov_b32 v13, {SPARE}'); a.I('ds_read_b32 v12, v13 offset:8192'); a.I('s_waitcnt lgkmcnt(0)')
    a.I('v_readfirstlane_b32 s29, v12')
    a.I('s_cmp_eq_u32 s29, 0'); a.I('s_cbranch_scc1 K2_FIN')
    a.I('s_cmp_lg_u32 s40, 0'); a.I('s_cbranch_scc1 K2_FIN')
    a.I('s_mov_b32 s40, 1')
    a.I('s_barrier')
    a.I('s_branch K2_RESTART')
    a.label('K2_FIN')
    a.I('s_cmp_lg_u32 s24, 0'); a.I('s_cbranch_scc1 K2_END')
    a.I(f'v_rcp_f32 v12, v{O+10}')
    for j in range(10): a.I(f'v_mul_f32 v{O+j}, v{O+j}, v12')
    for j in range(5): a.I(f'v_cvt_pk_bf16_f32 v{S0+j}, v{O+2*j}, v{O+2*j+1}')
    srd(a, 12, 4, 5, WS.OF_SZ, WS.OF)
    a.I('v_bfe_u32 v12, v1, 4, 1'); a.I('s_lshl_b32 s28, s25, 1'); a.I('v_add_u32 v12, s28, v12')
    a.I('v_mul_u32_u24 v12, 18, v12'); a.I('v_lshlrev_b32 v12, 10, v12')
    a.I('v_and_b32 v13, 15, v1'); a.I('v_lshl_add_u32 v12, v13, 4, v12')
    a.I('v_lshrrev_b32 v14, 5, v1'); a.I('v_lshl_add_u32 v14, v14, 8, v12')
    a.I('s_lshr_b32 s28, s21, 1'); a.I('s_lshl_b32 s28, s28, 10'); a.I('s_and_b32 s29, s21, 1'); a.I('s_lshl_b32 s29, s29, 9'); a.I('s_add_u32 s28, s28, s29')
    a.vmem(f'buffer_store_dwordx4 {r(S0,4)}, v14, s[12:15], s28 offen')
    a.I('s_lshr_b32 s28, s21, 4'); a.I('s_add_u32 s28, s28, 16'); a.I('s_lshl_b32 s28, s28, 10')
    a.I('s_bfe_u32 s29, s21, 0x20002'); a.I('s_lshl_b32 s29, s29, 8'); a.I('s_add_u32 s28, s28, s29')
    a.I('s_and_b32 s29, s21, 3'); a.I('s_lshl_b32 s29, s29, 2'); a.I('s_add_u32 s28, s28, s29')
    a.I('s_mov_b32 exec_hi, 0')
    a.vmem(f'buffer_store_dword v{S0+4}, v12, s[12:15], s28 offen')
    a.label('K2_END')
    a.I('s_endpgm')
    return kernel_text('k2_kernel', a, 128), (256, 1024, 163840)
```

```python
from asmlib import Asm, Inst
import math

S, D, H, DH, F = 2048, 576, 32, 18, 4608
KS = 18
LOG2E = 1.4426950408889634
QSCALE = LOG2E / math.sqrt(18.0)

A_X, A_WQKV, A_WO, A_BX, A_W1, A_W2, A_C, A_WMOD, A_OUT, A_DBG, A_WS = [8*i for i in range(11)]

def align(x, a): return (x + a - 1) // a * a
class WS: pass
_off = 0
def region(name, size):
    global _off
    _off = align(_off, 4096)
    setattr(WS, name, _off); setattr(WS, name + '_SZ', size)
    _off += size
region('MOD', 3456*4)
region('STAT1', S*8)
region('XF', 128*KS*1024)
region('WQKVF', 108*KS*1024)
region('UQ', 1728*4)
region('TQ', 1728*4)
region('WOF', 36*KS*1024)
region('W1F', 288*KS*1024)
region('U1', F*4)
region('T1', F*4)
region('W2F', 36*144*1024)
QT_BYTES = 1152
KV_TILE = 2368
VT_OFF = 1152
DV = 19
region('QIMG', H*64*QT_BYTES)
region('KVIMG', H*64*KV_TILE)
region('KMAX', H*64*4)
region('OF', 128*KS*1024)
region('X1F', 128*KS*1024)
region('STAT2', S*4*8)
region('HF', 128*144*1024)
region('PART', 8*S*D*4)
WS_TOTAL = _off

def f32bits(x):
    import struct
    return struct.unpack('<I', struct.pack('<f', x))[0]

def srd(a, sreg, base_lo, base_hi, size, off=0):
    if off:
        a.I(f's_add_u32 s{sreg}, s{base_lo}, {off}')
        a.I(f's_addc_u32 s{sreg+1}, s{base_hi}, 0')
    else:
        a.I(f's_mov_b32 s{sreg}, s{base_lo}')
        a.I(f's_mov_b32 s{sreg+1}, s{base_hi}')
    a.I(f's_mov_b32 s{sreg+2}, {size}')
    a.I(f's_mov_b32 s{sreg+3}, 0x00020000')

def kernel_text(name, a, vgprs, sgprs=100, accum=None, extra_desc=''):
    body, nn = a.finalize()
    if accum is None: accum = (vgprs + 3)//4*4
    txt = f""".text
.globl {name}
.p2align 8
.type {name},@function
{name}:
{body}"""
    desc = f""".amdhsa_kernel {name}
  .amdhsa_next_free_vgpr {vgprs}
  .amdhsa_next_free_sgpr {sgprs}
  .amdhsa_accum_offset {accum}
  .amdhsa_group_segment_fixed_size 0
  .amdhsa_kernarg_size 88
  .amdhsa_user_sgpr_count 2
  .amdhsa_user_sgpr_kernarg_segment_ptr 1
  .amdhsa_system_sgpr_workgroup_id_x 1
  .amdhsa_float_denorm_mode_32 3
  .amdhsa_float_denorm_mode_16_64 3
{extra_desc}.end_amdhsa_kernel
"""
    return txt, desc
```

```python
from common import *

ACC = 16
WF = 88
XR = 160
XD = 5
XRING = 6
NSLOT = 8
STAGE = 18432
def acc(nb, tb): return ACC + (nb*2 + tb)*4
def r4(b): return f'v[{b}:{b+3}]'

def prologue(a, end_label, nwg):
    a.I(f's_cmp_ge_u32 s2, {nwg}')
    a.I(f's_cbranch_scc1 {end_label}')
    a.I(f's_load_dwordx2 s[4:5], s[0:1], {A_WS}')
    a.I(f's_load_dwordx2 s[6:7], s[0:1], {A_OUT}')
    a.I('v_lshrrev_b32 v1, 6, v0')
    a.I('v_readfirstlane_b32 s20, v1')
    a.I('v_and_b32 v1, 63, v0')
    a.I('v_lshlrev_b32 v2, 4, v1')
    a.I('s_mul_i32 s23, s20, 4608')
    a.I('v_add_u32 v3, s23, v2')
    a.I('v_mov_b32 v6, v2')
    a.I(f'v_add_u32 v7, {3*STAGE}, v2')
    a.I(f'v_add_u32 v8, {6*STAGE}, v2')
    a.I('s_waitcnt lgkmcnt(0)')

def mainloop(a, nks, swap=False):
    nst = nks // 2
    wtok = {}
    xtok = {}
    def dma(st):
        slot = st % NSLOT
        a.I(f's_add_u32 m0, s23, {slot*STAGE}')
        a.I(f's_mov_b32 s24, {st*STAGE}')
        a.I('s_mov_b32 exec_hi, 0')
        a.vmem('buffer_load_dwordx4 v3, s[8:11], s24 offen lds')
        a.I('s_mov_b32 exec_hi, -1')
        for o in (512, 1536, 2560, 3584):
            a.vmem(f'buffer_load_dwordx4 v3, s[8:11], s24 offen offset:{o} lds')
        wtok[st] = a.vm
    def xload(ks):
        sl = ks % XRING
        a.I(f's_mov_b32 s25, {ks*1024}')
        a.vmem(f'buffer_load_dwordx4 {r4(XR+sl*8)}, v4, s[12:15], s25 offen')
        a.vmem(f'buffer_load_dwordx4 {r4(XR+sl*8+4)}, v5, s[12:15], s25 offen')
        xtok[ks] = a.vm
    def wread(ks, nb):
        st = ks // 2; slot = st % NSLOT
        base = 6 + slot // 3
        off = (slot % 3)*STAGE + ((ks & 1)*9 + nb)*1024
        return a.lds(f'ds_read_b128 {r4(WF + (ks & 1)*36 + nb*4)}, v{base} offset:{off}')
    dma(0)
    xload(0); xload(1)
    dma(1)
    xload(2); xload(3)
    dma(2)
    xload(4)
    for st in range(3, min(NSLOT, nst)): dma(st)
    a.wait(vm=wtok[0])
    a.I('s_barrier')
    for nb in range(9): wread(0, nb)
    for ks in range(nks):
        if ks & 1 and ks + 1 < nks:
            s = (ks + 1)//2
            a.wait(vm=max(wtok[s], xtok[ks]), lg=a.lg)
            a.I('s_barrier')
            nxt = s - 1 + NSLOT
            if nxt < nst: dma(nxt)
        else:
            a.wait(vm=xtok[ks], lg=a.lg)
        if ks + XD < nks: xload(ks + XD)
        xs = XR + (ks % XRING)*8
        for nb in range(9):
            wf = WF + (ks & 1)*36 + nb*4
            for tb in range(2):
                c = '0' if ks == 0 else r4(acc(nb, tb))
                if swap: a.I(f'v_mfma_f32_16x16x32_bf16 {r4(acc(nb,tb))}, {r4(xs+tb*4)}, {r4(wf)}, {c}')
                else:    a.I(f'v_mfma_f32_16x16x32_bf16 {r4(acc(nb,tb))}, {r4(wf)}, {r4(xs+tb*4)}, {c}')
            if ks + 1 < nks: wread(ks + 1, nb)
    a.I('s_barrier')

def wg_map_16xN(a, ntiles_per_half, total_n):
    a.I('s_and_b32 s26, s2, 7')
    a.I('s_lshr_b32 s27, s2, 3')
    a.I('s_lshr_b32 s21, s26, 1')
    a.I('s_lshl_b32 s21, s21, 2')
    a.I('s_and_b32 s28, s27, 3')
    a.I('s_add_u32 s21, s21, s28')
    a.I('s_and_b32 s22, s26, 1')
    a.I(f's_mul_i32 s22, s22, {ntiles_per_half}')
    a.I('s_lshr_b32 s28, s27, 2')
    a.I('s_add_u32 s22, s22, s28')

def x_offsets(a, ksx, ks0_sgpr=None):
    a.I('s_lshl_b32 s26, s21, 3')
    a.I('s_lshl_b32 s27, s20, 1')
    a.I('s_add_u32 s26, s26, s27')
    a.I(f's_mul_i32 s27, s26, {ksx*1024}')
    if ks0_sgpr: a.I(f's_add_u32 s27, s27, {ks0_sgpr}')
    a.I('v_add_u32 v4, s27, v2')
    a.I(f'v_add_u32 v5, {ksx*1024}, v4')

def ln_epilogue_loads_T(a, useg, tseg, nbase_sgpr):
    srd(a, 8, 4, 5, useg[1], useg[0])
    srd(a, 12, 4, 5, tseg[1], tseg[0])
    a.I('v_lshrrev_b32 v9, 4, v1')
    a.I('v_lshlrev_b32 v9, 4, v9')
    for nb in range(9):
        a.vmem(f'buffer_load_dwordx4 {r4(WF+nb*4)}, v9, s[8:11], {nbase_sgpr} offen offset:{nb*64}')
        a.vmem(f'buffer_load_dwordx4 {r4(WF+36+nb*4)}, v9, s[12:15], {nbase_sgpr} offen offset:{nb*64}')

def k1():
    a = Asm()
    prologue(a, 'K1_END', 192)
    wg_map_16xN(a, 6, 12)
    a.I(f's_mul_i32 s26, s22, {18*9*1024}')
    a.I(f's_add_u32 s8, s4, s26'); a.I('s_addc_u32 s9, s5, 0')
    a.I(f's_add_u32 s8, s8, {WS.WQKVF}'); a.I('s_addc_u32 s9, s9, 0')
    a.I(f's_mov_b32 s10, {18*9*1024}'); a.I('s_mov_b32 s11, 0x00020000')
    srd(a, 12, 4, 5, WS.XF_SZ, WS.XF)
    x_offsets(a, KS)
    a.I('s_cmp_ge_u32 s22, 8')
    a.I('s_cbranch_scc1 K1_V')
    mainloop(a, 18)
    a.I(f's_mul_i32 s29, s22, {9*16*4}')
    ln_epilogue_loads_T(a, (WS.UQ, WS.UQ_SZ), (WS.TQ, WS.TQ_SZ), 's29')
    srd(a, 16, 4, 5, WS.STAT1_SZ, WS.STAT1)
    a.I('s_lshl_b32 s26, s21, 2'); a.I('s_add_u32 s26, s26, s20')
    a.I('s_lshl_b32 s27, s26, 8')
    a.I('v_and_b32 v10, 15, v1')
    a.I('v_lshlrev_b32 v11, 3, v10')
    a.vmem(f'buffer_load_dwordx2 v[{XR}:{XR+1}], v11, s[16:19], s27 offen')
    a.vmem(f'buffer_load_dwordx2 v[{XR+2}:{XR+3}], v11, s[16:19], s27 offen offset:128')
    a.I('s_lshl_b32 s28, s20, 10')
    a.I('v_add_u32 v12, s28, v2')
    for j in range(4): a.I(f'v_mov_b32 v{XR+8+j}, 0')
    a.I(f'ds_write_b128 v12, {r4(XR+8)}')
    a.I('s_waitcnt vmcnt(0)')
    for tb in range(2):
        mu, rs = XR+2*tb, XR+2*tb+1
        for nb in range(9):
            for r in range(4):
                v = acc(nb, tb)+r
                a.I(f'v_fma_f32 v{v}, -v{mu}, v{WF+nb*4+r}, v{v}')
                a.I(f'v_fma_f32 v{v}, v{v}, v{rs}, v{WF+36+nb*4+r}')
    a.I('s_and_b32 s30, s22, 3')
    a.I('s_lshl_b32 s30, s30, 3')
    a.I('v_lshrrev_b32 v13, 4, v1')
    a.I('s_cmp_ge_u32 s22, 4')
    a.I('s_cbranch_scc1 K1_K')
    def qk_store(img_off, img_sz, tilebytes, hi_off):
        srd(a, 16, 4, 5, img_sz, img_off)
        a.I('v_lshrrev_b32 v14, 1, v13')
        a.I('v_add_u32 v14, s30, v14')
        a.I('v_lshlrev_b32 v14, 6, v14')
        a.I('v_add_u32 v14, s26, v14')
        a.I(f's_movk_i32 s31, {tilebytes}')
        a.I('v_mul_lo_u32 v14, v14, s31')
        a.I('v_and_b32 v15, 1, v13')
        a.I('v_lshl_add_u32 v14, v15, 9, v14')
        a.I('v_lshl_add_u32 v14, v10, 4, v14')
        for tb in range(2):
            for p in range(4):
                d = XR + 16 + (tb*4+p)*4 % 24
                b0, b1 = acc(2*p, tb), acc(2*p+1, tb)
                a.I(f'v_cvt_pk_bf16_f32 v{d}, v{b0}, v{b0+1}')
                a.I(f'v_cvt_pk_bf16_f32 v{d+1}, v{b0+2}, v{b0+3}')
                a.I(f'v_cvt_pk_bf16_f32 v{d+2}, v{b1}, v{b1+1}')
                a.I(f'v_cvt_pk_bf16_f32 v{d+3}, v{b1+2}, v{b1+3}')
                a.I(f's_mov_b32 s31, {p*2*64*tilebytes}')
                a.vmem(f'buffer_store_dwordx4 {r4(d)}, v14, s[16:19], s31 offen offset:{tb*256}')
        a.I('v_lshlrev_b32 v14, 1, v13')
        a.I('v_add_u32 v14, s30, v14')
        a.I('v_lshlrev_b32 v14, 6, v14')
        a.I('v_add_u32 v14, s26, v14')
        a.I(f's_movk_i32 s31, {tilebytes}')
        a.I('v_mul_lo_u32 v14, v14, s31')
        a.I('v_lshl_add_u32 v14, v10, 2, v14')
        a.I(f's_mov_b32 s31, {64*tilebytes}')
        for tb in range(2):
            b = acc(8, tb)
            d = XR + 40 + tb*2
            a.I(f'v_cvt_pk_bf16_f32 v{d}, v{b}, v{b+1}')
            a.I(f'v_cvt_pk_bf16_f32 v{d+1}, v{b+2}, v{b+3}')
            a.vmem(f'buffer_store_dword v{d}, v14, s[16:19], 0 offen offset:{hi_off+tb*64}')
            a.vmem(f'buffer_store_dword v{d+1}, v14, s[16:19], s31 offen offset:{hi_off+tb*64}')
    qk_store(WS.QIMG, WS.QIMG_SZ, QT_BYTES, 1024)
    a.I('s_endpgm')
    a.label('K1_K')
    qk_store(WS.KVIMG, WS.KVIMG_SZ, KV_TILE, 1024)
    a.I('v_lshrrev_b32 v14, 1, v13')
    a.I('v_lshlrev_b32 v14, 7, v14')
    a.I('v_lshl_add_u32 v14, v10, 2, v14')
    a.I('v_add_u32 v14, s28, v14')
    a.I('v_lshlrev_b32 v15, 8, v13')
    a.I('v_lshl_add_u32 v15, v10, 2, v15')
    a.I('v_add_u32 v15, s28, v15')
    for tb in range(2):
        for p in range(4):
            b0, b1 = acc(2*p, tb), acc(2*p+1, tb)
            a.I(f'v_mul_f32 v9, v{b0}, v{b0}')
            for v in [b0+1, b0+2, b0+3, b1, b1+1, b1+2, b1+3]:
                a.I(f'v_fmac_f32 v9, v{v}, v{v}')
            a.I(f'ds_add_f32 v14, v9 offset:{p*256+tb*64}')
        b = acc(8, tb)
        for e in range(2):
            a.I(f'v_mul_f32 v9, v{b+2*e}, v{b+2*e}')
            a.I(f'v_fmac_f32 v9, v{b+2*e+1}, v{b+2*e+1}')
            a.I(f'ds_add_f32 v15, v9 offset:{e*128+tb*64}')
    a.I(f'ds_read_b128 {r4(XR+8)}, v12')
    a.I('s_waitcnt lgkmcnt(0)')
    a.I(f'v_max3_f32 v9, v{XR+8}, v{XR+9}, v{XR+10}')
    a.I(f'v_max_f32 v9, v9, v{XR+11}')
    for dpp in ('quad_perm:[1,0,3,2]', 'quad_perm:[2,3,0,1]', 'row_half_mirror'):
        a.I(f'v_max_f32_dpp v9, v9, v9 {dpp} row_mask:0xf bank_mask:0xf')
    srd(a, 16, 4, 5, WS.KMAX_SZ, WS.KMAX)
    a.I('v_lshrrev_b32 v14, 3, v1')
    a.I('v_add_u32 v14, s30, v14')
    a.I('v_lshlrev_b32 v14, 6, v14')
    a.I('v_add_u32 v14, s26, v14')
    a.I('v_lshlrev_b32 v14, 2, v14')
    a.I('v_and_b32 v15, 7, v1')
    a.I('v_cmp_eq_u32 vcc, 0, v15')
    a.I('s_and_saveexec_b64 s[32:33], vcc')
    a.I('buffer_store_dword v9, v14, s[16:19], 0 offen')
    a.I('s_endpgm')

    a.label('K1_V')
    a.I('s_lshl_b32 s26, s21, 3'); a.I('s_lshl_b32 s27, s20, 1'); a.I('s_add_u32 s26, s26, s27')
    a.I('v_bfe_u32 v9, v1, 3, 1')
    a.I('v_add_u32 v9, s26, v9')
    a.I(f's_mov_b32 s27, {KS*1024}')
    a.I('v_mul_lo_u32 v9, v9, s27')
    a.I('v_and_b32 v10, 0x30, v1')
    a.I('v_and_b32 v11, 7, v1')
    a.I('v_add_u32 v10, v10, v11')
    a.I('v_lshl_add_u32 v4, v10, 4, v9')
    a.I('v_add_u32 v5, 128, v4')
    mainloop(a, 18, swap=True)
    srd(a, 8, 4, 5, WS.UQ_SZ, WS.UQ)
    srd(a, 12, 4, 5, WS.TQ_SZ, WS.TQ)
    srd(a, 16, 4, 5, WS.STAT1_SZ, WS.STAT1)
    a.I(f's_mul_i32 s29, s22, {9*16*4}')
    a.I('v_and_b32 v10, 15, v1')
    a.I('v_lshrrev_b32 v13, 4, v1')
    a.I('v_lshlrev_b32 v9, 2, v10')
    for nb in range(9):
        a.vmem(f'buffer_load_dword v{WF+nb}, v9, s[8:11], s29 offen offset:{nb*64}')
        a.vmem(f'buffer_load_dword v{WF+16+nb}, v9, s[12:15], s29 offen offset:{nb*64}')
    a.I('s_lshl_b32 s26, s21, 2'); a.I('s_add_u32 s26, s26, s20')
    a.I('s_lshl_b32 s27, s26, 8')
    a.I('v_lshrrev_b32 v11, 1, v13'); a.I('v_lshlrev_b32 v11, 7, v11')
    a.I('v_and_b32 v12, 1, v13'); a.I('v_lshl_add_u32 v11, v12, 5, v11')
    for b in range(2):
        a.vmem(f'buffer_load_dwordx4 {r4(XR+b*8)}, v11, s[16:19], s27 offen offset:{b*64}')
        a.vmem(f'buffer_load_dwordx4 {r4(XR+b*8+4)}, v11, s[16:19], s27 offen offset:{b*64+16}')
    a.I('s_waitcnt vmcnt(0)')
    for nb in range(9):
        for b in range(2):
            for r in range(4):
                v = acc(nb, b)+r
                mu, rs = XR+b*8+2*r, XR+b*8+2*r+1
                a.I(f'v_fma_f32 v{v}, -v{mu}, v{WF+nb}, v{v}')
                a.I(f'v_fma_f32 v{v}, v{v}, v{rs}, v{WF+16+nb}')
    srd(a, 16, 4, 5, WS.KVIMG_SZ, WS.KVIMG)
    a.I('s_and_b32 s30, s22, 3'); a.I('s_lshl_b32 s30, s30, 3')
    a.I('s_lshl_b32 s31, s30, 6'); a.I('s_add_u32 s31, s31, s26'); a.I(f's_mul_i32 s31, s31, {KV_TILE}')
    a.I('v_mul_u32_u24 v14, 19, v13')
    a.I('v_add_u32 v15, v14, v10')
    a.I('v_lshlrev_b32 v15, 4, v15')
    for nb in range(8):
        d = XR + 16 + (nb % 4)*4
        b0, b1 = acc(nb, 0), acc(nb, 1)
        a.I(f'v_cvt_pk_bf16_f32 v{d}, v{b0}, v{b0+1}')
        a.I(f'v_cvt_pk_bf16_f32 v{d+1}, v{b0+2}, v{b0+3}')
        a.I(f'v_cvt_pk_bf16_f32 v{d+2}, v{b1}, v{b1+1}')
        a.I(f'v_cvt_pk_bf16_f32 v{d+3}, v{b1+2}, v{b1+3}')
        a.I(f's_add_u32 s32, s31, {nb*64*KV_TILE}')
        a.vmem(f'buffer_store_dwordx4 {r4(d)}, v15, s[16:19], s32 offen offset:{VT_OFF}')
    a.I('v_lshrrev_b32 v9, 1, v10')
    a.I(f's_mov_b32 s32, {64*KV_TILE}')
    a.I('v_mul_lo_u32 v9, v9, s32')
    a.I('v_and_b32 v11, 1, v10')
    a.I('v_add_u32 v11, v11, v14')
    a.I('v_add_u32 v11, 16, v11')
    a.I('v_lshl_add_u32 v9, v11, 4, v9')
    d = XR + 32
    b0, b1 = acc(8, 0), acc(8, 1)
    a.I(f'v_cvt_pk_bf16_f32 v{d}, v{b0}, v{b0+1}')
    a.I(f'v_cvt_pk_bf16_f32 v{d+1}, v{b0+2}, v{b0+3}')
    a.I(f'v_cvt_pk_bf16_f32 v{d+2}, v{b1}, v{b1+1}')
    a.I(f'v_cvt_pk_bf16_f32 v{d+3}, v{b1+2}, v{b1+3}')
    a.vmem(f'buffer_store_dwordx4 {r4(d)}, v9, s[16:19], s31 offen offset:{VT_OFF}')
    a.I('v_lshrrev_b32 v9, 2, v1')
    a.I('v_mul_lo_u32 v9, v9, s32')
    a.I('v_and_b32 v11, 3, v1')
    a.I('v_mul_u32_u24 v11, 19, v11')
    a.I('v_add_u32 v11, 18, v11')
    a.I('v_lshl_add_u32 v9, v11, 4, v9')
    for j in range(4): a.I(f'v_mov_b32 v{XR+36+j}, 0x3f803f80')
    a.I('s_mov_b32 exec_hi, 0')
    a.vmem(f'buffer_store_dwordx4 {r4(XR+36)}, v9, s[16:19], s31 offen offset:{VT_OFF}')
    a.label('K1_END')
    a.I('s_endpgm')
    return kernel_text('k1_kernel', a, 208), (192, 256, NSLOT*STAGE)

def fm_addr(a, dst, nb_total_ks):
    a.I('s_lshl_b32 s26, s21, 3'); a.I('s_lshl_b32 s27, s20, 1'); a.I('s_add_u32 s26, s26, s27')
    a.I(f's_mul_i32 s27, s26, {nb_total_ks*1024}')
    a.I(f'v_add_u32 v{dst}, s27, v2')

def nb_soff(a, sreg, nb, T_sgpr='s22'):
    a.I(f's_mul_i32 {sreg}, {T_sgpr}, 9')
    a.I(f's_add_u32 {sreg}, {sreg}, {nb}')
    a.I(f's_and_b32 s35, {sreg}, 1')
    a.I(f's_lshr_b32 {sreg}, {sreg}, 1')
    a.I(f's_lshl_b32 {sreg}, {sreg}, 10')
    a.I('s_lshl_b32 s35, s35, 3')
    a.I(f's_add_u32 {sreg}, {sreg}, s35')

def k3():
    a = Asm()
    prologue(a, 'K3_END', 64)
    a.I('s_and_b32 s21, s2, 15'); a.I('s_lshr_b32 s22, s2, 4')
    a.I(f's_mul_i32 s26, s22, {18*9*1024}')
    a.I(f's_add_u32 s8, s4, s26'); a.I('s_addc_u32 s9, s5, 0')
    a.I(f's_add_u32 s8, s8, {WS.WOF}'); a.I('s_addc_u32 s9, s9, 0')
    a.I(f's_mov_b32 s10, {18*9*1024}'); a.I('s_mov_b32 s11, 0x00020000')
    srd(a, 12, 4, 5, WS.OF_SZ, WS.OF)
    x_offsets(a, KS)
    mainloop(a, 18)
    srd(a, 8, 4, 5, WS.MOD_SZ, WS.MOD)
    srd(a, 12, 4, 5, WS.XF_SZ, WS.XF)
    srd(a, 16, 4, 5, WS.X1F_SZ, WS.X1F)
    a.I('v_lshrrev_b32 v9, 4, v1'); a.I('v_lshlrev_b32 v9, 4, v9')
    a.I(f's_mul_i32 s29, s22, {144*4}'); a.I(f's_add_u32 s29, s29, {2*576*4}')
    for nb in range(9):
        a.vmem(f'buffer_load_dwordx4 {r4(WF+nb*4)}, v9, s[8:11], s29 offen offset:{nb*64}')
    fm_addr(a, 10, KS)
    a.I(f'v_add_u32 v11, {KS*1024}, v10')
    for nb in range(9):
        nb_soff(a, 's30', nb)
        for tb in range(2):
            a.vmem(f'buffer_load_dwordx2 v[{WF+36+(nb*2+tb)*2}:{WF+37+(nb*2+tb)*2}], v{10+tb}, s[12:15], s30 offen')
    a.I('s_waitcnt vmcnt(0)')
    for tb in range(2):
        a.I(f'v_mov_b32 v{XR+2*tb}, 0'); a.I(f'v_mov_b32 v{XR+2*tb+1}, 0')
    for nb in range(9):
        nb_soff(a, 's30', nb)
        for tb in range(2):
            x = WF+36+(nb*2+tb)*2
            b = acc(nb, tb)
            for r in range(4):
                if r % 2 == 0: a.I(f'v_lshlrev_b32 v12, 16, v{x+r//2}')
                else: a.I(f'v_and_b32 v12, 0xffff0000, v{x+r//2}')
                a.I(f'v_fma_f32 v{b+r}, v{b+r}, v{WF+nb*4+r}, v12')
            d = XR + 8 + ((nb*2+tb) % 8)*2
            a.I(f'v_cvt_pk_bf16_f32 v{d}, v{b}, v{b+1}')
            a.I(f'v_cvt_pk_bf16_f32 v{d+1}, v{b+2}, v{b+3}')
            a.vmem(f'buffer_store_dwordx2 v[{d}:{d+1}], v{10+tb}, s[16:19], s30 offen')
            for q in range(2):
                a.I(f'v_lshlrev_b32 v12, 16, v{d+q}')
                a.I(f'v_add_f32 v{XR+2*tb}, v{XR+2*tb}, v12')
                a.I(f'v_fmac_f32 v{XR+2*tb+1}, v12, v12')
                a.I(f'v_and_b32 v12, 0xffff0000, v{d+q}')
                a.I(f'v_add_f32 v{XR+2*tb}, v{XR+2*tb}, v12')
                a.I(f'v_fmac_f32 v{XR+2*tb+1}, v12, v12')
    for q in range(4):
        r = f'v{XR+q}'
        a.I(f'v_mov_b32 v12, {r}'); a.I(f'v_permlane16_swap_b32 {r}, v12'); a.I(f'v_add_f32 {r}, {r}, v12')
        a.I(f'v_mov_b32 v12, {r}'); a.I(f'v_permlane32_swap_b32 {r}, v12'); a.I(f'v_add_f32 {r}, {r}, v12')
    srd(a, 8, 4, 5, WS.STAT2_SZ, WS.STAT2)
    a.I('s_lshl_b32 s26, s21, 2'); a.I('s_add_u32 s26, s26, s20'); a.I('s_lshl_b32 s26, s26, 10')
    a.I('s_lshl_b32 s27, s22, 3'); a.I('s_add_u32 s26, s26, s27')
    a.I('v_and_b32 v12, 15, v1'); a.I('v_lshlrev_b32 v12, 5, v12')
    a.I('v_cmp_gt_u32 vcc, 16, v1')
    a.I('s_and_saveexec_b64 s[32:33], vcc')
    for tb in range(2):
        a.vmem(f'buffer_store_dwordx2 v[{XR+2*tb}:{XR+2*tb+1}], v12, s[8:11], s26 offen offset:{tb*512}')
    a.label('K3_END')
    a.I('s_endpgm')
    return kernel_text('k3_kernel', a, 208), (64, 256, NSLOT*STAGE)

def load_ln2_stats(a):
    srd(a, 16, 4, 5, WS.STAT2_SZ, WS.STAT2)
    a.I('s_lshl_b32 s26, s21, 2'); a.I('s_add_u32 s26, s26, s20'); a.I('s_lshl_b32 s26, s26, 10')
    a.I('v_and_b32 v12, 15, v1'); a.I('v_lshlrev_b32 v12, 5, v12')
    for tb in range(2):
        a.vmem(f'buffer_load_dwordx4 {r4(XR+8+tb*8)}, v12, s[16:19], s26 offen offset:{tb*512}')
        a.vmem(f'buffer_load_dwordx4 {r4(XR+12+tb*8)}, v12, s[16:19], s26 offen offset:{tb*512+16}')
def finish_ln2_stats(a):
    for tb in range(2):
        b = XR+8+tb*8
        mu, rs = XR+2*tb, XR+2*tb+1
        a.I(f'v_add_f32 v{mu}, v{b}, v{b+2}'); a.I(f'v_add_f32 v{mu}, v{mu}, v{b+4}'); a.I(f'v_add_f32 v{mu}, v{mu}, v{b+6}')
        a.I(f'v_add_f32 v{rs}, v{b+1}, v{b+3}'); a.I(f'v_add_f32 v{rs}, v{rs}, v{b+5}'); a.I(f'v_add_f32 v{rs}, v{rs}, v{b+7}')
        a.I(f'v_mul_f32 v{mu}, {hex(f32bits(1.0/576))}, v{mu}')
        a.I(f'v_mul_f32 v{rs}, {hex(f32bits(1.0/576))}, v{rs}')
        a.I(f'v_fma_f32 v{rs}, -v{mu}, v{mu}, v{rs}')
        a.I(f'v_max_f32 v{rs}, 0, v{rs}')
        a.I(f'v_add_f32 v{rs}, {hex(f32bits(1e-5))}, v{rs}')
        a.I(f'v_rsq_f32 v{rs}, v{rs}')

def k4():
    a = Asm()
    prologue(a, 'K4_END', 512)
    a.I('s_and_b32 s26, s2, 7'); a.I('s_lshr_b32 s27, s2, 3')
    a.I('s_and_b32 s21, s26, 1'); a.I('s_lshl_b32 s21, s21, 3'); a.I('s_and_b32 s28, s27, 7'); a.I('s_add_u32 s21, s21, s28')
    a.I('s_lshr_b32 s22, s26, 1'); a.I('s_lshl_b32 s22, s22, 3'); a.I('s_lshr_b32 s28, s27, 3'); a.I('s_add_u32 s22, s22, s28')
    a.I(f's_mul_i32 s26, s22, {18*9*1024}')
    a.I(f's_add_u32 s8, s4, s26'); a.I('s_addc_u32 s9, s5, 0')
    a.I(f's_add_u32 s8, s8, {WS.W1F}'); a.I('s_addc_u32 s9, s9, 0')
    a.I(f's_mov_b32 s10, {18*9*1024}'); a.I('s_mov_b32 s11, 0x00020000')
    srd(a, 12, 4, 5, WS.X1F_SZ, WS.X1F)
    x_offsets(a, KS)
    mainloop(a, 18)
    a.I(f's_mul_i32 s29, s22, {9*16*4}')
    ln_epilogue_loads_T(a, (WS.U1, WS.U1_SZ), (WS.T1, WS.T1_SZ), 's29')
    load_ln2_stats(a)
    a.I('s_waitcnt vmcnt(0)')
    finish_ln2_stats(a)
    srd(a, 16, 4, 5, WS.HF_SZ, WS.HF)
    fm_addr(a, 10, 144)
    a.I(f'v_add_u32 v11, {144*1024}, v10')
    for nb in range(9):
        nb_soff(a, 's30', nb)
        for tb in range(2):
            mu, rs = XR+2*tb, XR+2*tb+1
            b = acc(nb, tb)
            for r in range(4):
                v = b + r
                a.I(f'v_fma_f32 v{v}, -v{mu}, v{WF+nb*4+r}, v{v}')
                a.I(f'v_fma_f32 v{v}, v{v}, v{rs}, v{WF+36+nb*4+r}')
            for r in range(4): a.I(f'v_exp_f32 v{12+r}, -v{b+r}')
            for r in range(4): a.I(f'v_add_f32 v{12+r}, 1.0, v{12+r}')
            for r in range(4): a.I(f'v_rcp_f32 v{12+r}, v{12+r}')
            for r in range(4): a.I(f'v_mul_f32 v{b+r}, v{b+r}, v{12+r}')
            d = XR + 24 + ((nb*2+tb) % 8)*2
            a.I(f'v_cvt_pk_bf16_f32 v{d}, v{b}, v{b+1}')
            a.I(f'v_cvt_pk_bf16_f32 v{d+1}, v{b+2}, v{b+3}')
            a.vmem(f'buffer_store_dwordx2 v[{d}:{d+1}], v{10+tb}, s[16:19], s30 offen')
    a.label('K4_END')
    a.I('s_endpgm')
    return kernel_text('k4_kernel', a, 208), (512, 256, NSLOT*STAGE)

def k5():
    a = Asm()
    prologue(a, 'K5_END', 256)
    a.I('s_and_b32 s26, s2, 7'); a.I('s_lshr_b32 s27, s2, 3')
    a.I('s_and_b32 s21, s26, 1'); a.I('s_lshl_b32 s21, s21, 3'); a.I('s_and_b32 s28, s27, 7'); a.I('s_add_u32 s21, s21, s28')
    a.I('s_lshr_b32 s22, s27, 3')
    a.I('s_lshr_b32 s36, s26, 1')
    a.I('s_lshl_b32 s26, s36, 2'); a.I('s_add_u32 s26, s26, s22')
    a.I(f's_mul_i32 s26, s26, {36*9*1024}')
    a.I(f's_add_u32 s8, s4, s26'); a.I('s_addc_u32 s9, s5, 0')
    a.I(f's_add_u32 s8, s8, {WS.W2F}'); a.I('s_addc_u32 s9, s9, 0')
    a.I(f's_mov_b32 s10, {36*9*1024}'); a.I('s_mov_b32 s11, 0x00020000')
    srd(a, 12, 4, 5, WS.HF_SZ, WS.HF)
    a.I(f's_mul_i32 s37, s36, {36*1024}')
    x_offsets(a, 144, 's37')
    mainloop(a, 36)
    srd(a, 16, 4, 5, WS.PART_SZ, WS.PART)
    a.I('s_lshl_b32 s26, s21, 3'); a.I('s_lshl_b32 s27, s20, 1'); a.I('s_add_u32 s26, s26, s27')
    a.I('s_lshl_b32 s27, s36, 7'); a.I('s_add_u32 s26, s26, s27')
    a.I('s_mul_i32 s26, s26, 36')
    a.I('s_mul_i32 s27, s22, 9'); a.I('s_add_u32 s26, s26, s27')
    a.I('s_lshl_b32 s26, s26, 10')
    for tb in range(2):
        for nb in range(9):
            a.I(f's_add_u32 s27, s26, {(tb*36+nb)*1024}')
            a.vmem(f'buffer_store_dwordx4 {r4(acc(nb,tb))}, v2, s[16:19], s27 offen')
    a.label('K5_END')
    a.I('s_endpgm')
    return kernel_text('k5_kernel', a, 208), (256, 256, NSLOT*STAGE)

def k6():
    a = Asm()
    a.I('s_cmp_ge_u32 s2, 1152'); a.I('s_cbranch_scc1 K6_END')
    a.I(f's_load_dwordx2 s[4:5], s[0:1], {A_WS}')
    a.I(f's_load_dwordx2 s[6:7], s[0:1], {A_OUT}')
    a.I('v_lshrrev_b32 v1, 6, v0'); a.I('v_readfirstlane_b32 s20, v1')
    a.I('v_and_b32 v1, 63, v0'); a.I('v_lshlrev_b32 v2, 4, v1')
    a.I('s_lshl_b32 s21, s2, 2'); a.I('s_add_u32 s21, s21, s20')
    a.I('s_mul_i32 s22, s21, 1821'); a.I('s_lshr_b32 s22, s22, 16')
    a.I(f's_mov_b32 s23, {(1<<32)//36+1}')
    a.I('s_mul_hi_u32 s22, s21, s23')
    a.I('s_mul_i32 s23, s22, 36'); a.I('s_sub_u32 s23, s21, s23')
    a.I('s_waitcnt lgkmcnt(0)')
    srd(a, 8, 4, 5, WS.PART_SZ, WS.PART)
    srd(a, 12, 4, 5, WS.X1F_SZ, WS.X1F)
    srd(a, 16, 4, 5, WS.MOD_SZ, WS.MOD)
    srd(a, 24, 6, 7, S*D*2)
    a.I('s_lshl_b32 s28, s21, 10')
    for j in range(4):
        a.vmem(f'buffer_load_dwordx4 v[{8+4*j}:{11+4*j}], v2, s[8:11], s28 offen')
        if j < 3: a.I(f's_add_u32 s28, s28, {128*36*1024}')
    a.I('s_mul_i32 s28, s22, 18'); a.I('s_lshr_b32 s29, s23, 1'); a.I('s_add_u32 s28, s28, s29'); a.I('s_lshl_b32 s28, s28, 10')
    a.I('s_and_b32 s29, s23, 1'); a.I('s_lshl_b32 s29, s29, 3'); a.I('s_add_u32 s28, s28, s29')
    a.vmem('buffer_load_dwordx2 v[24:25], v2, s[12:15], s28 offen')
    a.I('v_lshrrev_b32 v3, 4, v1'); a.I('v_lshlrev_b32 v4, 4, v3')
    a.I('s_lshl_b32 s28, s23, 6'); a.I(f's_add_u32 s28, s28, {5*576*4}')
    a.vmem('buffer_load_dwordx4 v[28:31], v4, s[16:19], s28 offen')
    a.I('v_and_b32 v5, 15, v1'); a.I('v_mul_u32_u24 v5, 1152, v5'); a.I('v_lshl_add_u32 v5, v3, 3, v5')
    a.I(f's_mul_i32 s28, s22, {16*1152}'); a.I('s_lshl_b32 s29, s23, 5'); a.I('s_add_u32 s28, s28, s29')
    a.I('s_waitcnt vmcnt(0)')
    LN2 = math.log(2.0)
    for r in range(4):
        a.I(f'v_add_f32 v{8+r}, v{8+r}, v{12+r}'); a.I(f'v_add_f32 v{16+r}, v{16+r}, v{20+r}'); a.I(f'v_add_f32 v{8+r}, v{8+r}, v{16+r}')
        a.I(f'v_mul_f32 v{28+r}, {hex(f32bits(LN2))}, v{28+r}')
        if r % 2 == 0: a.I(f'v_lshlrev_b32 v6, 16, v{24+r//2}')
        else: a.I(f'v_and_b32 v6, 0xffff0000, v{24+r//2}')
        a.I(f'v_fma_f32 v{8+r}, v{8+r}, v{28+r}, v6')
    a.I('v_cvt_pk_bf16_f32 v32, v8, v9'); a.I('v_cvt_pk_bf16_f32 v33, v10, v11')
    a.vmem('buffer_store_dwordx2 v[32:33], v5, s[24:27], s28 offen')
    a.label('K6_END')
    a.I('s_endpgm')
    return kernel_text('k6_kernel', a, 40), (1152, 256, 0)
```

```python
from common import *

def bf16_round_f32(a, dst, src, tmp=None):
    a.I(f'v_cvt_pk_bf16_f32 {dst}, {src}, {src}')
    a.I(f'v_lshlrev_b32 {dst}, 16, {dst}')

def k0a():
    a = Asm()
    NG = 108
    a.I(f's_cmp_ge_u32 s2, {NG+64}')
    a.I('s_cbranch_scc1 K0A_END')
    a.I(f's_load_dwordx2 s[4:5], s[0:1], {A_WS}')
    a.I(f's_load_dwordx2 s[6:7], s[0:1], {A_X}')
    a.I(f's_load_dwordx2 s[8:9], s[0:1], {A_C}')
    a.I(f's_load_dwordx2 s[10:11], s[0:1], {A_WMOD}')
    a.I(f's_cmp_ge_u32 s2, {NG}')
    a.I('s_cbranch_scc1 K0A_STATS')
    a.I('s_waitcnt lgkmcnt(0)')
    srd(a, 12, 10, 11, 576*6912)
    srd(a, 16, 8, 9, 576*2)
    srd(a, 20, 4, 5, WS.MOD_SZ, WS.MOD)
    a.I('v_and_b32 v1, 3, v0')
    a.I('v_lshrrev_b32 v2, 2, v0')
    a.I('s_movk_i32 s24, 6912')
    a.I('v_mul_lo_u32 v3, v2, s24')
    a.I('v_lshl_add_u32 v3, v1, 4, v3')
    a.I('s_lshl_b32 s25, s2, 6')
    a.I('v_add_u32 v3, s25, v3')
    a.I('v_lshlrev_b32 v4, 1, v2')
    toks = []
    for p in range(9):
        a.vmem(f'buffer_load_ushort v{10+p}, v4, s[16:19], 0 offen offset:{p*128}')
    ctok = a.vm
    a.I('s_mov_b32 s26, 0')
    for p in range(9):
        toks.append(a.vmem(f'buffer_load_dwordx4 v[{20+4*p}:{23+4*p}], v3, s[12:15], s26 offen'))
        if p < 8: a.I(f's_add_u32 s26, s26, {64*6912}')
    a.wait(vm=ctok)
    for p in range(9):
        c = f'v{10+p}'
        a.I(f'v_lshlrev_b32 {c}, 16, {c}')
        a.I(f'v_mul_f32 v5, {-LOG2E}, {c}' .replace(str(-LOG2E), hex(f32bits(-LOG2E))))
        a.I('v_exp_f32 v5, v5')
        a.I('v_add_f32 v5, 1.0, v5')
        a.I('v_rcp_f32 v5, v5')
        a.I(f'v_mul_f32 {c}, {c}, v5')
        bf16_round_f32(a, c, c)
    for j in range(8): a.I(f'v_mov_b32 v{60+j}, 0')
    for p in range(9):
        a.wait(vm=toks[p])
        for j in range(4):
            w = f'v{20+4*p+j}'
            a.I(f'v_lshlrev_b32 v5, 16, {w}')
            a.I(f'v_and_b32 v6, 0xffff0000, {w}')
            a.I(f'v_fmac_f32 v{60+2*j}, v{10+p}, v5')
            a.I(f'v_fmac_f32 v{61+2*j}, v{10+p}, v6')
    a.I('v_lshlrev_b32 v7, 7, v2')
    a.I('v_lshl_add_u32 v7, v1, 5, v7')
    a.I('ds_write_b128 v7, v[60:63]')
    a.I('ds_write_b128 v7, v[64:67] offset:16')
    a.I('s_waitcnt lgkmcnt(0)')
    a.I('s_barrier')
    a.I('v_and_b32 v1, 31, v0')
    a.I('v_lshrrev_b32 v2, 5, v0')
    a.I('v_lshlrev_b32 v7, 10, v2')
    a.I('v_lshl_add_u32 v7, v1, 2, v7')
    for i in range(8): a.I(f'ds_read_b32 v{20+i}, v7 offset:{i*128}')
    a.I('s_waitcnt lgkmcnt(0)')
    for i in range(1, 8): a.I(f'v_add_f32 v20, v20, v{20+i}')
    a.I('v_lshlrev_b32 v8, 2, v0')
    a.I('ds_write_b32 v8, v20 offset:8192')
    a.I('s_waitcnt lgkmcnt(0)')
    a.I('s_barrier')
    a.I('v_cmp_gt_u32 vcc, 32, v0')
    a.I('s_and_saveexec_b64 s[28:29], vcc')
    a.I('s_cbranch_execz K0A_END')
    for i in range(8): a.I(f'ds_read_b32 v{20+i}, v8 offset:{8192+i*128}')
    a.I('s_waitcnt lgkmcnt(0)')
    for i in range(1, 8): a.I(f'v_add_f32 v20, v20, v{20+i}')
    bf16_round_f32(a, 'v20', 'v20')
    a.I('s_lshl_b32 s25, s2, 7')
    a.I('v_add_u32 v8, s25, v8')
    a.I('buffer_store_dword v20, v8, s[20:23], 0 offen')
    a.I('s_endpgm')
    a.label('K0A_STATS')
    a.I('s_waitcnt lgkmcnt(0)')
    srd(a, 12, 6, 7, S*1152)
    srd(a, 16, 4, 5, WS.STAT1_SZ, WS.STAT1)
    srd(a, 20, 4, 5, WS.XF_SZ, WS.XF)
    a.I(f's_sub_u32 s24, s2, {NG}')
    a.I('s_lshl_b32 s24, s24, 5')
    a.I('v_lshrrev_b32 v1, 3, v0')
    a.I('v_add_u32 v1, s24, v1')
    a.I('v_and_b32 v2, 7, v0')
    a.I('s_movk_i32 s25, 1152')
    a.I('v_mul_lo_u32 v3, v1, s25')
    a.I('v_lshl_add_u32 v3, v2, 4, v3')
    toks = [a.vmem(f'buffer_load_dwordx4 v[{20+4*i}:{23+4*i}], v3, s[12:15], 0 offen offset:{i*128}') for i in range(9)]
    a.I('v_lshrrev_b32 v4, 4, v1')
    a.I('v_mul_u32_u24 v4, 18, v4')
    a.I('v_lshrrev_b32 v5, 2, v2')
    a.I('v_add_u32 v4, v4, v5')
    a.I('v_lshlrev_b32 v4, 6, v4')
    a.I('v_and_b32 v5, 1, v2')
    a.I('v_lshl_add_u32 v4, v5, 5, v4')
    a.I('v_and_b32 v5, 15, v1')
    a.I('v_add_u32 v4, v4, v5')
    a.I('v_lshlrev_b32 v4, 4, v4')
    a.I('v_bfe_u32 v5, v2, 1, 1')
    a.I('v_lshl_add_u32 v4, v5, 3, v4')
    a.I('v_mov_b32 v6, 0')
    a.I('v_mov_b32 v7, 0')
    a.I('s_mov_b32 s26, 0')
    for i in range(9):
        a.wait(vm=toks[i])
        a.vmem(f'buffer_store_dwordx2 v[{20+4*i}:{21+4*i}], v4, s[20:23], s26 offen')
        a.vmem(f'buffer_store_dwordx2 v[{22+4*i}:{23+4*i}], v4, s[20:23], s26 offen offset:256')
        if i < 8: a.I('s_add_u32 s26, s26, 2048')
        for j in range(4):
            w = f'v{20+4*i+j}'
            a.I(f'v_lshlrev_b32 v8, 16, {w}')
            a.I(f'v_and_b32 v9, 0xffff0000, {w}')
            a.I('v_add_f32 v6, v6, v8')
            a.I('v_fmac_f32 v7, v8, v8')
            a.I('v_add_f32 v6, v6, v9')
            a.I('v_fmac_f32 v7, v9, v9')
    for dpp in ('quad_perm:[1,0,3,2]', 'quad_perm:[2,3,0,1]', 'row_half_mirror'):
        a.I(f'v_add_f32_dpp v6, v6, v6 {dpp} row_mask:0xf bank_mask:0xf')
        a.I(f'v_add_f32_dpp v7, v7, v7 {dpp} row_mask:0xf bank_mask:0xf')
    a.I(f'v_mul_f32 v6, {hex(f32bits(1.0/576))}, v6')
    a.I(f'v_mul_f32 v7, {hex(f32bits(1.0/576))}, v7')
    a.I('v_fma_f32 v7, -v6, v6, v7')
    a.I('v_max_f32 v7, 0, v7')
    a.I(f'v_add_f32 v7, {hex(f32bits(1e-5))}, v7')
    a.I('v_rsq_f32 v7, v7')
    a.I('v_lshlrev_b32 v8, 3, v1')
    a.I('v_cmp_eq_u32 vcc, 0, v2')
    a.I('s_and_saveexec_b64 s[28:29], vcc')
    a.I('s_cbranch_execz K0A_END')
    a.I('buffer_store_dwordx2 v[6:7], v8, s[16:19], 0 offen')
    a.label('K0A_END')
    a.I('s_endpgm')
    return kernel_text('k0a_kernel', a, 72), (NG+64, 256, 16384)

def k0b():
    a = Asm()
    a.I('s_cmp_ge_u32 s2, 180')
    a.I('s_cbranch_scc1 K0B_END')
    a.I(f's_load_dwordx2 s[4:5], s[0:1], {A_WS}')
    a.I(f's_load_dwordx2 s[6:7], s[0:1], {A_WQKV}')
    a.I(f's_load_dwordx2 s[8:9], s[0:1], {A_WO}')
    a.I(f's_load_dwordx2 s[10:11], s[0:1], {A_W1}')
    a.I(f's_load_dwordx2 s[12:13], s[0:1], {A_W2}')
    a.I('v_lshrrev_b32 v1, 6, v0')
    a.I('v_readfirstlane_b32 s14, v1')
    a.I('s_lshl_b32 s15, s2, 2')
    a.I('s_add_u32 s14, s14, s15')
    a.I('v_and_b32 v1, 63, v0')
    a.I('v_and_b32 v2, 15, v1')
    a.I('v_lshrrev_b32 v3, 4, v1')
    a.I('v_lshlrev_b32 v9, 4, v1')
    a.I('s_waitcnt lgkmcnt(0)')
    a.I('s_cmp_lt_u32 s14, 108')
    a.I('s_cbranch_scc1 K0B_QKV')
    a.I('s_cmp_lt_u32 s14, 144')
    a.I('s_cbranch_scc1 K0B_WO')
    a.I('s_cmp_lt_u32 s14, 432')
    a.I('s_cbranch_scc1 K0B_W1')

    PERM = [0,1,2,3,16,17,18,19]
    def set_roff(offs, stride):
        for i, o in enumerate(offs): a.I(f's_mov_b32 s{30+i}, {o*stride}')
    def div9():
        a.I('s_mul_i32 s15, s14, 7282')
        a.I('s_lshr_b32 s15, s15, 16')
        a.I('s_mul_i32 s42, s15, 9')
        a.I('s_sub_u32 s42, s14, s42')
    def copy_loop(nks, kstep_bytes):
        G = nks if nks <= 6 else (4 if nks % 6 else 6)
        assert nks % G == 0
        for g0 in range(0, nks, G):
            toks = []
            for q in range(G):
                for i in range(8):
                    a.I(f's_add_u32 s41, s40, s{30+i}')
                    a.vmem(f'buffer_load_ushort v{20+8*q+i}, v4, s[16:19], s41 offen')
                toks.append(a.vm)
                a.I(f's_add_u32 s40, s40, {kstep_bytes}')
            for q in range(G):
                a.wait(vm=toks[q])
                b = 20 + 8*q
                for j in range(4):
                    a.I(f'v_lshl_or_b32 v{b+j}, v{b+2*j+1}, 16, v{b+2*j}')
                a.vmem(f'buffer_store_dwordx4 v[{b}:{b+3}], v9, s[20:23], s39 offen')
                a.I(f's_add_u32 s39, s39, {9*1024}')
            a.I('s_waitcnt vmcnt(0)')

    a.I('s_sub_u32 s14, s14, 432')
    a.I('s_mul_i32 s50, s14, 1821')
    a.I('s_lshr_b32 s50, s50, 16')
    a.I('s_mul_i32 s42, s50, 36')
    a.I('s_sub_u32 s14, s14, s42')
    srd(a, 16, 12, 13, F*1152)
    srd(a, 20, 4, 5, WS.W2F_SZ, WS.W2F)
    set_roff(PERM, 1152)
    a.I('v_mul_u32_u24 v4, 4608, v3')
    a.I('v_lshl_add_u32 v4, v2, 1, v4')
    a.I('s_lshl_b32 s43, s14, 5')
    a.I('v_add_u32 v4, s43, v4')
    a.I(f's_mul_i32 s40, s50, {576*1152}')
    div9()
    a.I('s_lshr_b32 s43, s50, 1')
    a.I('s_lshl_b32 s43, s43, 2')
    a.I('s_add_u32 s43, s43, s15')
    a.I('s_mul_i32 s39, s43, 36')
    a.I('s_and_b32 s43, s50, 1')
    a.I('s_mul_i32 s43, s43, 18')
    a.I('s_add_u32 s39, s39, s43')
    a.I('s_mul_i32 s39, s39, 9')
    a.I('s_add_u32 s39, s39, s42')
    a.I('s_lshl_b32 s39, s39, 10')
    copy_loop(18, 32*1152)
    a.I('s_endpgm')

    def dst_tile9():
        div9()
        a.I(f's_mul_i32 s39, s15, {18*9}')
        a.I('s_add_u32 s39, s39, s42')
        a.I('s_lshl_b32 s39, s39, 10')

    a.label('K0B_WO')
    a.I('s_sub_u32 s14, s14, 108')
    srd(a, 16, 8, 9, 576*1152)
    srd(a, 20, 4, 5, WS.WOF_SZ, WS.WOF)
    set_roff([0,1,2,3,8,9,10,11], 1152)
    a.I('v_lshrrev_b32 v5, 1, v3')
    a.I('v_mul_u32_u24 v5, 18, v5')
    a.I('v_and_b32 v6, 1, v3')
    a.I('v_lshl_add_u32 v5, v6, 2, v5')
    a.I('v_mul_u32_u24 v4, 1152, v5')
    a.I('v_lshl_add_u32 v4, v2, 1, v4')
    a.I('s_lshl_b32 s43, s14, 5')
    a.I('v_add_u32 v4, s43, v4')
    a.I('s_mov_b32 s40, 0')
    dst_tile9()
    copy_loop(16, 36*1152)
    set_roff([0,1,18,19,36,37,54,55], 1152)
    a.I('v_mul_u32_u24 v5, 72, v3')
    a.I('v_add_u32 v5, 16, v5')
    a.I('v_mul_u32_u24 v4, 1152, v5')
    a.I('v_lshl_add_u32 v4, v2, 1, v4')
    a.I('s_lshl_b32 s43, s14, 5')
    a.I('v_add_u32 v4, s43, v4')
    a.I('s_mov_b32 s40, 0')
    copy_loop(2, 288*1152)
    a.I('s_endpgm')

    def scaled(rowstride, gidx, sidx, useg, tseg):
        srd(a, 24, 4, 5, WS.MOD_SZ, WS.MOD)
        set_roff(PERM, rowstride)
        a.I('v_lshlrev_b32 v5, 4, v3')
        a.I('v_mov_b32 v6, 0')
        a.I('v_mov_b32 v7, 0')
        a.I('s_mov_b32 s40, 0')
        a.I(f's_mov_b32 s45, {gidx*4}')
        a.I(f's_mov_b32 s46, {sidx*4}')
        G = 3
        for g0 in range(0, 18, G):
            toks = []
            for q in range(G):
                b = 20 + 24*q
                for i in range(8):
                    a.I(f's_add_u32 s41, s40, s{30+i}')
                    a.vmem(f'buffer_load_ushort v{b+i}, v4, s[16:19], s41 offen')
                a.vmem(f'buffer_load_dwordx4 v[{b+8}:{b+11}], v5, s[24:27], s45 offen')
                a.vmem(f'buffer_load_dwordx4 v[{b+12}:{b+15}], v5, s[24:27], s45 offen offset:64')
                a.vmem(f'buffer_load_dwordx4 v[{b+16}:{b+19}], v5, s[24:27], s46 offen')
                a.vmem(f'buffer_load_dwordx4 v[{b+20}:{b+23}], v5, s[24:27], s46 offen offset:64')
                toks.append(a.vm)
                a.I(f's_add_u32 s40, s40, {32*rowstride}')
                a.I('s_add_u32 s45, s45, 128')
                a.I('s_add_u32 s46, s46, 128')
            for q in range(G):
                b = 20 + 24*q
                a.wait(vm=toks[q])
                for i in range(8):
                    w, gk, sk = f'v{b+i}', f'v{b+8+i}', f'v{b+16+i}'
                    a.I(f'v_lshlrev_b32 {w}, 16, {w}')
                    a.I(f'v_add_f32 {gk}, 1.0, {gk}')
                    bf16_round_f32(a, gk, gk)
                    a.I(f'v_fmac_f32 v7, {sk}, {w}')
                    a.I(f'v_mul_f32 {w}, {gk}, {w}')
                    a.I(f'v_mul_f32 {w}, s43, {w}')
                for j in range(4):
                    a.I(f'v_cvt_pk_bf16_f32 v{b+8+j}, v{b+2*j}, v{b+2*j+1}')
                for j in range(4):
                    a.I(f'v_lshlrev_b32 v8, 16, v{b+8+j}')
                    a.I('v_add_f32 v6, v6, v8')
                    a.I(f'v_and_b32 v8, 0xffff0000, v{b+8+j}')
                    a.I('v_add_f32 v6, v6, v8')
                a.vmem(f'buffer_store_dwordx4 v[{b+8}:{b+11}], v9, s[20:23], s39 offen')
                a.I(f's_add_u32 s39, s39, {9*1024}')
            a.I('s_waitcnt vmcnt(0)')
        a.I('v_mul_f32 v7, s43, v7')
        for r in ('v6', 'v7'):
            a.I(f'v_mov_b32 v8, {r}')
            a.I(f'v_permlane16_swap_b32 {r}, v8')
            a.I(f'v_add_f32 {r}, {r}, v8')
            a.I(f'v_mov_b32 v8, {r}')
            a.I(f'v_permlane32_swap_b32 {r}, v8')
            a.I(f'v_add_f32 {r}, {r}, v8')
        srd(a, 24, 4, 5, useg[1], useg[0])
        srd(a, 28, 4, 5, tseg[1], tseg[0])
        a.I('v_lshlrev_b32 v8, 2, v2')
        a.I('s_lshl_b32 s44, s44, 6')
        a.I('v_cmp_gt_u32 vcc, 16, v1')
        a.I('s_and_saveexec_b64 s[46:47], vcc')
        a.I('buffer_store_dword v6, v8, s[24:27], s44 offen')
        a.I('buffer_store_dword v7, v8, s[28:31], s44 offen')
        a.I('s_endpgm')

    a.label('K0B_W1')
    a.I('s_sub_u32 s14, s14, 144')
    srd(a, 16, 10, 11, 576*9216)
    srd(a, 20, 4, 5, WS.W1F_SZ, WS.W1F)
    a.I('v_mul_u32_u24 v4, 36864, v3')
    a.I('v_lshl_add_u32 v4, v2, 1, v4')
    a.I('s_lshl_b32 s43, s14, 5')
    a.I('v_add_u32 v4, s43, v4')
    dst_tile9()
    a.I(f's_mov_b32 s43, {hex(f32bits(LOG2E))}')
    a.I('s_mov_b32 s44, s14')
    scaled(9216, 4*576, 3*576, (WS.U1, WS.U1_SZ), (WS.T1, WS.T1_SZ))
    a.label('K0B_QKV')
    div9()
    a.I('s_lshr_b32 s47, s15, 2')
    a.I('s_and_b32 s48, s15, 3')
    a.I('s_cmp_eq_u32 s42, 8')
    a.I('s_cbranch_scc1 K0B_Q8')
    a.I('s_cmp_eq_u32 s47, 2')
    a.I('s_cbranch_scc1 K0B_QV')
    a.I('s_and_b32 s49, s42, 6')
    a.I('v_lshrrev_b32 v10, 3, v2')
    a.I('v_add_u32 v10, s49, v10')
    a.I('v_bfe_u32 v11, v2, 2, 1')
    a.I('v_lshlrev_b32 v11, 3, v11')
    a.I('v_and_b32 v12, 3, v2')
    a.I('v_add_u32 v11, v11, v12')
    a.I('s_and_b32 s49, s42, 1')
    a.I('s_lshl_b32 s49, s49, 2')
    a.I('v_add_u32 v11, s49, v11')
    a.I('s_branch K0B_QGO')
    a.label('K0B_QV')
    a.I('v_mov_b32 v10, s42')
    a.I('v_mov_b32 v11, v2')
    a.I('s_branch K0B_QGO')
    a.label('K0B_Q8')
    a.I('v_lshrrev_b32 v10, 1, v2')
    a.I('v_and_b32 v11, 1, v2')
    a.I('v_add_u32 v11, 16, v11')
    a.label('K0B_QGO')
    a.I('s_lshl_b32 s49, s48, 3')
    a.I('v_add_u32 v10, s49, v10')
    a.I('v_mul_u32_u24 v10, 18, v10')
    a.I('v_add_u32 v10, v10, v11')
    a.I('s_mul_i32 s49, s47, 576')
    a.I('v_add_u32 v10, s49, v10')
    srd(a, 16, 6, 7, 576*3456)
    srd(a, 20, 4, 5, WS.WQKVF_SZ, WS.WQKVF)
    a.I('v_mul_u32_u24 v4, 13824, v3')
    a.I('v_lshl_add_u32 v4, v10, 1, v4')
    dst_tile9()
    a.I('s_mov_b32 s43, 1.0')
    a.I('s_cmp_eq_u32 s47, 0')
    a.I(f's_cselect_b32 s43, {hex(f32bits(QSCALE))}, s43')
    a.I('s_mov_b32 s44, s14')
    scaled(3456, 576, 0, (WS.UQ, WS.UQ_SZ), (WS.TQ, WS.TQ_SZ))
    a.label('K0B_END')
    a.I('s_endpgm')
    return kernel_text('k0b_kernel', a, 96), (180, 256, 0)
```

```python
import sys, os
sys.path.insert(0, os.path.dirname(__file__))
from common import *
import k0

NAME = 'adaLN_cond__mha_block__dense_activation_silu__prompt'
HEADER = open('cdna_kernels/' + NAME + '.s.ref').read().split('; Override')[0]

def assemble(kernels, path):
    out = [HEADER.rstrip('\n')]
    for (td, cfg, name) in kernels:
        out.append(f'; @launch kernel={name} grid=({cfg[0]},1,1) block=({cfg[1]},1,1) lds={cfg[2]}')
    out.append('.amdgcn_target "amdgcn-amd-amdhsa--gfx950"')
    seen = set()
    descs = []
    for (td, cfg, name) in kernels:
        if name in seen: continue
        seen.add(name)
        out.append(td[0]); descs.append(td[1])
    out.append('.section .rodata,"a"')
    for d in descs:
        out.append('.p2align 6'); out.append(d)
    open(path, 'w').write('\n'.join(out))

def all_kernels(upto=None):
    ks = []
    def add(r, name): ks.append((r[0], r[1], name))
    add(k0.k0a(), 'k0a_kernel')
    add(k0.k0b(), 'k0b_kernel')
    try:
        import gemm
        add(gemm.k1(), 'k1_kernel')
        import attn
        add(attn.k2(), 'k2_kernel')
        add(gemm.k3(), 'k3_kernel')
        add(gemm.k4(), 'k4_kernel')
        add(gemm.k5(), 'k5_kernel')
        add(gemm.k6(), 'k6_kernel')
    except ImportError as e:
        print('partial build:', e)
    return ks[:upto] if upto else ks

if __name__ == '__main__':
    path = sys.argv[1] if len(sys.argv) > 1 else 'cdna_kernels/' + NAME + '.s'
    assemble(all_kernels(), path)
    print('wrote', path, os.path.getsize(path), 'WS total', WS_TOTAL)
```

```python
from common import *

S0, S1, O, CI, P, QLO, QHI = 16, 32, 48, 64, 80, 88, 92
KLO = (96, 100); KHI = (104, 108); VF = (112, 120)
IMG = 64*KV_TILE
SPARE = IMG
def r(b, n): return f'v[{b}:{b+n-1}]'
def mf(d, a_, b_, c): return f'v_mfma_f32_32x32x16_bf16 {r(d,16)}, {r(a_,4)}, {r(b_,4)}, {c}'

def k2():
    a = Asm()
    a.I('s_cmp_ge_u32 s2, 256'); a.I('s_cbranch_scc1 K2_END')
    a.I(f's_load_dwordx2 s[4:5], s[0:1], {A_WS}')
    a.I('v_lshrrev_b32 v1, 6, v0'); a.I('v_readfirstlane_b32 s20, v1')
    a.I('v_and_b32 v1, 63, v0')
    a.I('s_and_b32 s21, s2, 7'); a.I('s_lshl_b32 s21, s21, 2'); a.I('s_bfe_u32 s22, s2, 0x20003'); a.I('s_add_u32 s21, s21, s22')
    a.I('s_lshr_b32 s22, s2, 5')
    a.I('s_and_b32 s23, s20, 7')
    a.I('s_lshr_b32 s24, s20, 3')
    a.I('s_lshl_b32 s25, s22, 3'); a.I('s_add_u32 s25, s25, s23')
    a.I('s_mov_b32 s40, 0')
    a.I('v_lshlrev_b32 v5, 4, v1')
    a.I('v_and_b32 v6, 31, v1'); a.I('v_lshlrev_b32 v7, 2, v6'); a.I('v_lshlrev_b32 v8, 2, v1')
    a.I('s_mul_i32 s44, s24, 72'); a.I('s_add_u32 s44, s44, s23'); a.I('s_lshl_b32 s44, s44, 10')
    a.I('s_waitcnt lgkmcnt(0)')
    a.I(f's_mul_i32 s26, s21, {IMG}')
    a.I('s_add_u32 s8, s4, s26'); a.I('s_addc_u32 s9, s5, 0')
    a.I(f's_add_u32 s8, s8, {WS.KVIMG}'); a.I('s_addc_u32 s9, s9, 0')
    a.I(f's_mov_b32 s10, {IMG}'); a.I('s_mov_b32 s11, 0x00020000')
    def dma(j):
        a.I(f's_add_u32 s26, s44, {j*8192}')
        a.I('s_mov_b32 m0, s26')
        a.vmem('buffer_load_dwordx4 v5, s[8:11], s26 offen lds')
    a.label('K2_RESTART')
    dma(0); dma(1)
    a.I('s_cmp_lg_u32 s40, 0'); a.I('s_cbranch_scc1 K2_SKIPQ0')
    srd(a, 12, 4, 5, WS.QIMG_SZ, WS.QIMG)
    srd(a, 16, 4, 5, WS.KMAX_SZ, WS.KMAX)
    a.I('s_lshl_b32 s26, s21, 6'); a.I('s_add_u32 s26, s26, s25'); a.I(f's_mul_i32 s26, s26, {QT_BYTES}')
    a.vmem(f'buffer_load_dwordx4 {r(QLO,4)}, v5, s[12:15], s26 offen')
    a.vmem(f'buffer_load_dword v{QHI}, v7, s[12:15], s26 offen offset:1024')
    a.I('s_lshl_b32 s26, s21, 8')
    a.vmem('buffer_load_dword v9, v8, s[16:19], s26 offen')
    a.I('v_mov_b32 v10, 0'); a.I(f'v_mov_b32 v11, {SPARE}')
    a.I('ds_write_b32 v11, v10 offset:8192')
    a.label('K2_SKIPQ0')
    stamp(a, 0)
    a.I(f's_mul_i32 s27, s24, {32*KV_TILE}')
    a.I('v_add_u32 v2, s27, v5'); a.I('v_add_u32 v3, s27, v7')
    a.I('v_min_u32 v4, 17, v6'); a.I('v_lshrrev_b32 v10, 5, v1'); a.I('v_mul_u32_u24 v11, 18, v10')
    a.I('v_add_u32 v4, v4, v11'); a.I('v_lshlrev_b32 v4, 4, v4'); a.I('v_add_u32 v4, s27, v4')
    for j in range(16): a.I(f'v_mov_b32 v{O+j}, 0')
    for j in range(16): a.I(f'v_mov_b32 v{VF[0]+j}, 0x3f803f80')
    a.I('s_mov_b32 s42, 0x3ffff'); a.I('s_mov_b32 s43, 0x3ffff')
    a.I('s_cmp_lg_u32 s40, 0'); a.I('s_cbranch_scc1 K2_SKIPQ')
    for j in range(1, 4): a.I(f'v_mov_b32 v{QHI+j}, 0')
    for b in KHI:
        for j in range(1, 4): a.I(f'v_mov_b32 v{b+j}, 0')
    a.I('s_waitcnt vmcnt(0)')
    a.I('v_cmp_eq_u32 vcc, 0, v10')
    a.I(f'v_cndmask_b32 v{QHI}, 0, v{QHI}, vcc')
    a.I('v_mov_b32 v12, 0')
    for q in [QLO, QLO+1, QLO+2, QLO+3, QHI]:
        a.I(f'v_lshlrev_b32 v13, 16, v{q}'); a.I('v_fmac_f32 v12, v13, v13')
        a.I(f'v_and_b32 v13, 0xffff0000, v{q}'); a.I('v_fmac_f32 v12, v13, v13')
    a.I('v_mov_b32 v13, v12'); a.I('v_permlane32_swap_b32 v12, v13'); a.I('v_add_f32 v12, v12, v13')
    for dpp in ('quad_perm:[1,0,3,2]', 'quad_perm:[2,3,0,1]', 'row_half_mirror', 'row_mirror'):
        a.I(f'v_max_f32_dpp v9, v9, v9 {dpp} row_mask:0xf bank_mask:0xf')
    a.I('v_mov_b32 v13, v9'); a.I('v_permlane16_swap_b32 v9, v13'); a.I('v_max_f32 v9, v9, v13')
    a.I('v_mov_b32 v13, v9'); a.I('v_permlane32_swap_b32 v9, v13'); a.I('v_max_f32 v9, v9, v13')
    a.I('v_mul_f32 v12, v12, v9'); a.I('v_sqrt_f32 v12, v12')
    a.I(f'v_mul_f32 v12, {hexf(-1.015625)}, v12')
    for j in range(16): a.I(f'v_mov_b32 v{CI+j}, v12')
    a.label('K2_SKIPQ')
    stamp(a, 1)
    a.I('s_cmp_eq_u32 s40, 0'); a.I('s_cbranch_scc1 K2_MAIN')
    for j in range(2, 9): dma(j)
    a.I('s_waitcnt vmcnt(0) lgkmcnt(0)'); a.I('s_barrier')
    a.I('v_mov_b32 v12, 0xff800000')
    a.I('v_mov_b32 v14, v2'); a.I('v_mov_b32 v15, v3')
    a.I('s_mov_b32 s28, 32')
    a.label('K2_MAXLOOP')
    a.I(f'ds_read_b128 {r(KLO[0],4)}, v14'); a.I(f'ds_read_b32 v{KHI[0]}, v15 offset:1024')
    a.I('s_waitcnt lgkmcnt(0)')
    a.I(mf(S0, KLO[0], QLO, '0')); a.I(mf(S0, KHI[0], QHI, r(S0,16)))
    for j in range(0, 16, 2): a.I(f'v_max3_f32 v12, v12, v{S0+j}, v{S0+j+1}')
    a.I(f'v_add_u32 v14, {KV_TILE}, v14'); a.I(f'v_add_u32 v15, {KV_TILE}, v15')
    a.I('s_sub_u32 s28, s28, 1'); a.I('s_cmp_lg_u32 s28, 0'); a.I('s_cbranch_scc1 K2_MAXLOOP')
    a.I('v_mov_b32 v13, v12'); a.I('v_permlane32_swap_b32 v12, v13'); a.I('v_max_f32 v12, v12, v13')
    a.I('s_lshl_b32 s28, s20, 8'); a.I(f's_add_u32 s28, s28, {SPARE}'); a.I('v_add_u32 v14, s28, v8')
    a.I('ds_write_b32 v14, v12')
    a.I('s_waitcnt lgkmcnt(0)'); a.I('s_barrier')
    a.I('s_xor_b32 s28, s20, 8'); a.I('s_lshl_b32 s28, s28, 8'); a.I(f's_add_u32 s28, s28, {SPARE}'); a.I('v_add_u32 v14, s28, v8')
    a.I('ds_read_b32 v13, v14'); a.I('s_waitcnt lgkmcnt(0)')
    a.I('v_max_f32 v12, v12, v13'); a.I('v_sub_f32 v12, 0, v12')
    for j in range(16): a.I(f'v_mov_b32 v{CI+j}, v12')
    a.label('K2_MAIN')
    a.I('s_waitcnt vmcnt(0) lgkmcnt(0)'); a.I('s_barrier')
    stamp(a, 2)
    def rdK(t, buf):
        a.I(f'ds_read_b128 {r(KLO[buf],4)}, v2 offset:{t*KV_TILE}')
        a.I(f'ds_read_b32 v{KHI[buf]}, v3 offset:{t*KV_TILE+1024}')
    def rdV(t, buf):
        a.I('s_mov_b64 exec, s[42:43]')
        a.I(f'ds_read_b128 {r(VF[buf],4)}, v4 offset:{t*KV_TILE+VT_OFF}')
        a.I(f'ds_read_b128 {r(VF[buf]+4,4)}, v4 offset:{t*KV_TILE+VT_OFF+576}')
        a.I('s_mov_b64 exec, -1')
    rdK(0, 0); rdK(1, 1); rdV(0, 0)
    for j in range(4): a.I(f'v_mov_b32 v{P+4+j}, 0')
    a.I('s_waitcnt lgkmcnt(0)')
    a.I(mf(S0, KLO[0], QLO, r(CI,16))); a.I(mf(S0, KHI[0], QHI, r(S0,16)))
    U = 8
    def tile(t, extra=None):
        cur = (S0, S1)[t & 1]; nxt = (S0, S1)[(t+1) & 1]
        kb = (t+1) & 1
        a.I('s_waitcnt lgkmcnt(0)')
        a.I(mf(nxt, KLO[kb], QLO, r(CI,16)))
        a.I(mf(O, VF[(t+1) & 1]+4, P+4, r(O,16)))
        for j in range(8): a.I(f'v_exp_f32 v{cur+j}, v{cur+j}')
        a.I(mf(nxt, KHI[kb], QHI, r(nxt,16)))
        rdK(t+2, t & 1); rdV(t+1, (t+1) & 1)
        if extra: extra()
        for j in range(4): a.I(f'v_cvt_pk_bf16_f32 v{P+j}, v{cur+2*j}, v{cur+2*j+1}')
        for j in range(8): a.I(f'v_exp_f32 v{cur+8+j}, v{cur+8+j}')
        a.I(mf(O, VF[t & 1], P, r(O,16)))
        for j in range(4): a.I(f'v_cvt_pk_bf16_f32 v{P+4+j}, v{cur+8+2*j}, v{cur+8+2*j+1}')
    PF = 81
    a.I('s_setprio 3')
    dl = [[2, 3], [4, 5], [6, 7], [8]]
    for t in range(U):
        if t == 5:
            a.I('s_waitcnt vmcnt(0)'); a.I('s_barrier')
        tile(t, (lambda t=t: [dma(j) for j in dl[t]]) if t < 4 else None)
    for v in (2, 3, 4): a.I(f'v_add_u32 v{v}, {U*KV_TILE}, v{v}')
    a.I('s_mov_b32 s28, 3')
    a.label('K2_LOOP')
    a.I('s_cmp_eq_u32 s28, 3'); a.I('s_cbranch_scc1 K2_P2')
    a.I('s_cmp_eq_u32 s28, 2'); a.I('s_cbranch_scc1 K2_P1')
    a.I('s_setprio 0'); a.I('s_branch K2_PD')
    a.label('K2_P1'); a.I('s_setprio 1'); a.I('s_branch K2_PD')
    a.label('K2_P2'); a.I('s_setprio 2')
    a.label('K2_PD')
    for t in range(U): tile(t)
    for v in (2, 3, 4): a.I(f'v_add_u32 v{v}, {U*KV_TILE}, v{v}')
    a.I('s_sub_u32 s28, s28, 1'); a.I('s_cmp_lg_u32 s28, 0'); a.I('s_cbranch_scc1 K2_LOOP')
    a.I(mf(O, VF[1]+4, P+4, r(O,16)))
    stamp(a, 3)
    a.I('s_waitcnt lgkmcnt(0)')
    a.I('s_barrier')
    a.I('s_mul_i32 s28, s23, 3072'); a.I('v_add_u32 v14, s28, v5')
    a.I('s_cmp_eq_u32 s24, 0'); a.I('s_cbranch_scc1 K2_M0')
    for j in range(3): a.I(f'ds_write_b128 v14, {r(O+4*j,4)} offset:{j*1024}')
    a.I('s_waitcnt lgkmcnt(0)')
    a.I('s_barrier')
    a.I('s_branch K2_M1')
    a.label('K2_M0')
    a.I('s_barrier')
    for j in range(3): a.I(f'ds_read_b128 {r(S0+4*j,4)}, v14 offset:{j*1024}')
    a.I('s_waitcnt lgkmcnt(0)')
    for j in range(12): a.I(f'v_add_f32 v{O+j}, v{O+j}, v{S0+j}')
    a.I(f's_mov_b32 s29, {hexf(2.0**-90)}')
    a.I(f'v_cmp_nle_f32 vcc, s29, v{O+10}')
    a.I('s_cmp_eq_u64 vcc, 0'); a.I('s_cbranch_scc1 K2_M1')
    a.I('v_mov_b32 v12, 1'); a.I(f'v_mov_b32 v13, {SPARE}'); a.I('ds_write_b32 v13, v12 offset:8192')
    a.I('s_waitcnt lgkmcnt(0)')
    a.label('K2_M1')
    a.I('s_barrier')
    a.I(f'v_mov_b32 v13, {SPARE}'); a.I('ds_read_b32 v12, v13 offset:8192'); a.I('s_waitcnt lgkmcnt(0)')
    a.I('v_readfirstlane_b32 s29, v12')
    a.I('s_cmp_eq_u32 s29, 0'); a.I('s_cbranch_scc1 K2_FIN')
    a.I('s_cmp_lg_u32 s40, 0'); a.I('s_cbranch_scc1 K2_FIN')
    a.I('s_mov_b32 s40, 1')
    a.I('s_barrier')
    a.I('s_branch K2_RESTART')
    a.label('K2_FIN')
    stamp(a, 4)
    a.I('s_cmp_lg_u32 s24, 0'); a.I('s_cbranch_scc1 K2_END')
    a.I(f'v_rcp_f32 v12, v{O+10}')
    for j in range(10): a.I(f'v_mul_f32 v{O+j}, v{O+j}, v12')
    for j in range(5): a.I(f'v_cvt_pk_bf16_f32 v{S0+j}, v{O+2*j}, v{O+2*j+1}')
    srd(a, 12, 4, 5, WS.OF_SZ, WS.OF)
    a.I('v_bfe_u32 v12, v1, 4, 1'); a.I('s_lshl_b32 s28, s25, 1'); a.I('v_add_u32 v12, s28, v12')
    a.I('v_mul_u32_u24 v12, 18, v12'); a.I('v_lshlrev_b32 v12, 10, v12')
    a.I('v_and_b32 v13, 15, v1'); a.I('v_lshl_add_u32 v12, v13, 4, v12')
    a.I('v_lshrrev_b32 v14, 5, v1'); a.I('v_lshl_add_u32 v14, v14, 8, v12')
    a.I('s_lshr_b32 s28, s21, 1'); a.I('s_lshl_b32 s28, s28, 10'); a.I('s_and_b32 s29, s21, 1'); a.I('s_lshl_b32 s29, s29, 9'); a.I('s_add_u32 s28, s28, s29')
    a.vmem(f'buffer_store_dwordx4 {r(S0,4)}, v14, s[12:15], s28 offen')
    a.I('s_lshr_b32 s28, s21, 4'); a.I('s_add_u32 s28, s28, 16'); a.I('s_lshl_b32 s28, s28, 10')
    a.I('s_bfe_u32 s29, s21, 0x20002'); a.I('s_lshl_b32 s29, s29, 8'); a.I('s_add_u32 s28, s28, s29')
    a.I('s_and_b32 s29, s21, 3'); a.I('s_lshl_b32 s29, s29, 2'); a.I('s_add_u32 s28, s28, s29')
    a.I('s_mov_b32 exec_hi, 0')
    a.vmem(f'buffer_store_dword v{S0+4}, v12, s[12:15], s28 offen')
    a.label('K2_END')
    a.I('s_endpgm')
    return kernel_text('k2_kernel', a, 128), (256, 1024, 163840)
```

```python
from asmlib import Asm, Inst
import math

S, D, H, DH, F = 2048, 576, 32, 18, 4608
KS = 18
LOG2E = 1.4426950408889634
QSCALE = LOG2E / math.sqrt(18.0)

A_X, A_WQKV, A_WO, A_BX, A_W1, A_W2, A_C, A_WMOD, A_OUT, A_DBG, A_WS = [8*i for i in range(11)]

def align(x, a): return (x + a - 1) // a * a
class WS: pass
_off = 0
def region(name, size):
    global _off
    _off = align(_off, 4096)
    setattr(WS, name, _off); setattr(WS, name + '_SZ', size)
    _off += size
region('MODP', 2*3456*4)
region('MOD', 3456*4)
region('G2', 576*4)
region('TAB2', 4608)
region('NF', 128*KS*1024)
region('XF', 128*KS*1024)
region('WQKVF', 12*KS*9*1024)
region('WOF', 4*KS*9*1024)
region('W1S', 8*3*4*KS*3*1024)
region('W2S', 8*4*KS*9*1024)
region('UT1', 2*F*4)
QT_BYTES = 1152
KV_TILE = 2304
VT_OFF = 1152
DV = 18
region('QIMG', H*64*QT_BYTES)
region('KVIMG', H*64*KV_TILE)
region('KMAX', H*64*4)
region('OF', 128*KS*1024)
region('X1F', 128*KS*1024)
region('X1G', 128*KS*1024)
region('STAT2', S*8*8)
region('PART', 8*64*36*1024)
WS_TOTAL = _off

def f32bits(x):
    import struct
    return struct.unpack('<I', struct.pack('<f', x))[0]

def srd(a, sreg, base_lo, base_hi, size, off=0):
    if off:
        a.I(f's_add_u32 s{sreg}, s{base_lo}, {off}')
        a.I(f's_addc_u32 s{sreg+1}, s{base_hi}, 0')
    else:
        a.I(f's_mov_b32 s{sreg}, s{base_lo}')
        a.I(f's_mov_b32 s{sreg+1}, s{base_hi}')
    a.I(f's_mov_b32 s{sreg+2}, {size}')
    a.I(f's_mov_b32 s{sreg+3}, 0x00020000')

import os
STAMP = os.environ.get('STAMP', '0') == '1'
STAMP_OFF = 240 << 20
KIDX = {}
def stamp(a, i):
    if STAMP:
        a.I(f's_memtime s[{80+2*i}:{81+2*i}]')

def add_stamps(a, name):
    from asmlib import Inst
    kidx = KIDX.setdefault(name, len(KIDX))
    items = a.items
    pre = f"""s_memrealtime s[96:97]
s_memtime s[78:79]
s_load_dwordx2 s[98:99], s[0:1], {A_WS}
v_readfirstlane_b32 s93, v0
s_lshr_b32 s93, s93, 6
s_lshl_b32 s92, s2, 4
s_add_u32 s93, s93, s92
s_lshl_b32 s93, s93, 5
s_add_u32 s93, s93, {STAMP_OFF + (kidx << 20)}
"""
    pre += "".join(f"s_mov_b32 s{80+2*i}, 0\n" for i in range(6))
    pre += "s_waitcnt lgkmcnt(0)\n" + "".join(f"s_mov_b32 s{80+2*i}, s78\n" for i in range(6))
    new = [('i', Inst(l)) for l in pre.strip().split('\n')]
    for it in items:
        if it[0] == 'i' and it[1].base == 's_endpgm':
            seq = """s_mov_b64 exec, 1
s_waitcnt vmcnt(0) lgkmcnt(0)
s_memrealtime s[94:95]
s_memtime s[90:91]
s_waitcnt lgkmcnt(0)
v_mov_b32 v0, s93
v_mov_b32 v2, s96
v_mov_b32 v3, s94
""" + "".join(f"s_sub_u32 s{80+2*i}, s{80+2*i}, s78\nv_mov_b32 v{4+i}, s{80+2*i}\n" for i in range(6)) + """global_store_dwordx4 v0, v[2:5], s[98:99]
global_store_dwordx4 v0, v[6:9], s[98:99] offset:16
"""
            for l in seq.strip().split('\n'): new.append(('i', Inst(l)))
        new.append(it)
    a.items = new

def kernel_text(name, a, vgprs, sgprs=100, accum=None, extra_desc=''):
    if STAMP: add_stamps(a, name)
    body, nn = a.finalize()
    if accum is None: accum = (vgprs + 3)//4*4
    txt = f""".text
.globl {name}
.p2align 8
.type {name},@function
{name}:
{body}"""
    desc = f""".amdhsa_kernel {name}
  .amdhsa_next_free_vgpr {vgprs}
  .amdhsa_next_free_sgpr {sgprs}
  .amdhsa_accum_offset {accum}
  .amdhsa_group_segment_fixed_size 0
  .amdhsa_kernarg_size 88
  .amdhsa_user_sgpr_count 2
  .amdhsa_user_sgpr_kernarg_segment_ptr 1
  .amdhsa_system_sgpr_workgroup_id_x 1
  .amdhsa_float_denorm_mode_32 3
  .amdhsa_float_denorm_mode_16_64 3
{extra_desc}.end_amdhsa_kernel
"""
    return txt, desc

def magic(d, xmax):
    for sh in range(8, 32):
        M = -(-(1 << sh) // d)
        if M >= (1 << 24) or xmax * M >= (1 << 32): continue
        if all((x * M) >> sh == x // d for x in range(xmax + 1)): return M, sh
    raise ValueError((d, xmax))

def vdiv(a, dst, src, d, xmax, stmp='s60'):
    M, sh = magic(d, xmax)
    a.I(f's_mov_b32 {stmp}, {M}')
    a.I(f'v_mul_u32_u24 {dst}, {stmp}, {src}')
    a.I(f'v_lshrrev_b32 {dst}, {sh}, {dst}')
def sdiv(a, dst, src, d, xmax):
    M, sh = magic(d, xmax)
    a.I(f's_mul_i32 {dst}, {src}, {M}')
    a.I(f's_lshr_b32 {dst}, {dst}, {sh}')
def r4(b, p='v'): return f'{p}[{b}:{b+3}]'
def r2(b, p='v'): return f'{p}[{b}:{b+1}]'
def hexf(x): return hex(f32bits(x))
def bf16_round_f32(a, dst, src):
    a.I(f'v_cvt_pk_bf16_f32 {dst}, {src}, {src}')
    a.I(f'v_lshlrev_b32 {dst}, 16, {dst}')
```

```python
from common import *

def wave_setup(a):
    a.I('v_lshrrev_b32 v1, 6, v0')
    a.I('v_readfirstlane_b32 s20, v1')
    a.I('v_and_b32 v1, 63, v0')
    a.I('v_lshlrev_b32 v2, 4, v1')

def apply_gs(a, raw, dst, T, G, Sx, emit=None):
    L = []
    for q in range(4):
        L.append(f'v_lshlrev_b32 v{T+2*q}, 16, {raw(q)}')
        L.append(f'v_and_b32 v{T+2*q+1}, 0xffff0000, {raw(q)}')
    for q in range(8):
        L.append(f'v_fma_f32 v{T+q}, v{T+q}, v{G+q}, v{Sx+q}')
    for q in range(4):
        L.append(f'v_cvt_pk_bf16_f32 {dst(q)}, v{T+2*q}, v{T+2*q+1}')
    return L

ACC, WF, XR = 16, 88, 160
XRING, XD = 7, 6
NSLOT, STAGE = 5, 18432
UTOFF = NSLOT*STAGE
def acc(nb, tb): return ACC + (nb*2 + tb)*4

def k1_main(a, swap):
    nks, nst = 18, 9
    wtok, xtok, ltok = {}, {}, {}
    def dma_list(st):
        slot = st % NSLOT
        pre = [('s', f's_add_u32 m0, s23, {slot*STAGE}'), ('s', f's_mov_b32 s24, {st*STAGE}')]
        g = [pre + [('s', 's_mov_b32 exec_hi, 0'), ('v', 'buffer_load_dwordx4 v3, s[8:11], s24 offen lds'), ('s', 's_mov_b32 exec_hi, -1')]]
        for o in (512, 1536, 2560, 3584): g.append([('v', f'buffer_load_dwordx4 v3, s[8:11], s24 offen offset:{o} lds')])
        return g
    def emit_group(g):
        for k, t in g:
            if k == 'v': a.vmem(t)
            else: a.I(t)
    def dma(st):
        for g in dma_list(st): emit_group(g)
        wtok[st] = a.vm
    def xload(ks):
        sl = ks % XRING
        a.I(f's_mov_b32 s25, {ks*1024}')
        a.vmem(f'buffer_load_dwordx4 {r4(XR+sl*8)}, v4, s[12:15], s25 offen')
        a.vmem(f'buffer_load_dwordx4 {r4(XR+sl*8+4)}, v5, s[12:15], s25 offen')
        xtok[ks] = a.vm
    def wread(ks, nb):
        st = ks // 2; slot = st % NSLOT
        base = 6 + slot // 3
        off = (slot % 3)*STAGE + ((ks & 1)*9 + nb)*1024
        ltok[(ks, nb)] = a.lds(f'ds_read_b128 {r4(WF + (ks & 1)*36 + nb*4)}, v{base} offset:{off}')
    dma(0); xload(0); xload(1)
    dma(1); xload(2); xload(3)
    srd(a, 16, 4, 5, WS.UTP_SZ, WS.UTP)
    UB = 216
    vdiv(a, 'v9', 'v0', 72, 255); a.I('v_mul_u32_u24 v10, 72, v9'); a.I('v_sub_u32 v10, v0, v10')
    a.I('v_cmp_le_u32 vcc, 36, v10'); a.I(f'v_mov_b32 v11, {18*6912 - 36*16}'); a.I('v_cndmask_b32 v11, 0, v11, vcc')
    a.I('v_lshl_add_u32 v11, v10, 4, v11'); a.I(f's_mov_b32 s26, {6*6912}'); a.I('v_mul_lo_u32 v12, v9, s26'); a.I('v_add_u32 v11, v11, v12')
    a.I('v_lshlrev_b32 v250, 4, v10'); a.I(f'v_add_u32 v250, {UTOFF}, v250')
    a.I('s_movk_i32 s26, 216'); a.I('v_cmp_gt_u32 vcc, s26, v0'); a.I('v_mov_b32 v12, 0x7fffffff'); a.I('v_cndmask_b32 v11, v12, v11, vcc')
    a.I('v_cndmask_b32 v251, 0, 1, vcc') if False else None
    a.I('v_mov_b32 v12, 0'); a.I('v_lshlrev_b32 v13, 2, v0'); a.I(f'v_add_u32 v13, {UTOFF}, v13')
    a.lds('ds_write_b32 v13, v12'); a.lds('ds_write_b32 v13, v12 offset:1024')
    a.I(f's_mul_i32 s26, s22, {144*4}')
    for i in range(6):
        a.I(f's_add_u32 s27, s26, {i*6912}')
        a.vmem(f'buffer_load_dwordx4 {r4(UB+4*i)}, v11, s[16:19], s27 offen')
    uttok = a.vm
    dma(2); xload(4); xload(5)
    stamp(a, 0)
    a.wait(vm=wtok[0])
    a.I('s_barrier')
    stamp(a, 1)
    for nb in range(9): wread(0, nb)
    for ks in range(nks):
        if ks == 6: stamp(a, 4)
        if ks & 1 and ks + 1 < nks:
            a.wait(vm=wtok[(ks + 1)//2])
            a.I('s_barrier')
        st = (ks + 6)//2
        pend = dma_list(st) if (ks % 2 == 0 and 3 <= st < nst) else []
        xs = XR + (ks % XRING)*8
        for nb in range(9):
            wf = WF + (ks & 1)*36 + nb*4
            if nb == 0: a.wait(vm=xtok[ks], lg=ltok[(ks, 2)])
            elif nb % 3 == 0: a.wait(lg=ltok[(ks, nb+2)])
            for tb in range(2):
                c = '0' if ks == 0 else r4(acc(nb, tb))
                if swap: a.I(f'v_mfma_f32_16x16x32_bf16 {r4(acc(nb,tb))}, {r4(xs+tb*4)}, {r4(wf)}, {c}')
                else:    a.I(f'v_mfma_f32_16x16x32_bf16 {r4(acc(nb,tb))}, {r4(wf)}, {r4(xs+tb*4)}, {c}')
            if ks + 1 < nks: wread(ks + 1, nb)
            if nb == 8 and ks + XD < nks: xload(ks + XD)
            if pend and nb in (0, 2, 4, 5, 7):
                emit_group(pend.pop(0))
                if not pend: wtok[st] = a.vm
        if ks == 5:
            a.wait(vm=uttok)
            for i in range(1, 6):
                for z in range(4): a.I(f'v_add_f32 v{UB+z}, v{UB+z}, v{UB+4*i+z}')
            a.I('s_movk_i32 s26, 216'); a.I('v_cmp_gt_u32 vcc, s26, v0'); a.I('s_and_saveexec_b64 s[36:37], vcc')
            for z in range(4): a.lds(f'ds_add_f32 v250, v{UB+z} offset:{4*z}')
            a.I('s_mov_b64 exec, s[36:37]')
        assert not pend
    stamp(a, 2)
    a.I('s_waitcnt lgkmcnt(0)')
    a.I('s_barrier')
    stamp(a, 3)

def k1():
    a = Asm()
    a.I('s_cmp_ge_u32 s2, 256'); a.I('s_cbranch_scc1 K1_END')
    a.I(f's_load_dwordx2 s[4:5], s[0:1], {A_WS}')
    wave_setup(a)
    a.I('s_cmp_ge_u32 s2, 192'); a.I('s_cbranch_scc1 K1_UT')
    a.I('s_mul_i32 s23, s20, 4608'); a.I('v_add_u32 v3, s23, v2')
    a.I('v_mov_b32 v6, v2'); a.I(f'v_add_u32 v7, {3*STAGE}, v2')
    a.I('s_and_b32 s26, s2, 7'); a.I('s_lshr_b32 s27, s2, 3')
    a.I('s_lshr_b32 s21, s26, 1'); a.I('s_lshl_b32 s21, s21, 2'); a.I('s_and_b32 s28, s27, 3'); a.I('s_add_u32 s21, s21, s28')
    a.I('s_and_b32 s22, s26, 1'); a.I('s_mul_i32 s22, s22, 6'); a.I('s_lshr_b32 s28, s27, 2'); a.I('s_add_u32 s22, s22, s28')
    a.I('s_lshl_b32 s26, s21, 3'); a.I('s_lshl_b32 s27, s20, 1'); a.I('s_add_u32 s29, s26, s27')
    a.I('s_lshl_b32 s34, s21, 2'); a.I('s_add_u32 s34, s34, s20')
    a.I('s_waitcnt lgkmcnt(0)')
    a.I(f's_mul_i32 s26, s22, {18*9*1024}')
    a.I('s_add_u32 s8, s4, s26'); a.I('s_addc_u32 s9, s5, 0')
    a.I(f's_add_u32 s8, s8, {WS.WQKVF}'); a.I('s_addc_u32 s9, s9, 0')
    a.I(f's_mov_b32 s10, {18*9*1024}'); a.I('s_mov_b32 s11, 0x00020000')
    srd(a, 12, 4, 5, WS.XF_SZ, WS.XF)
    srd(a, 40, 4, 5, WS.STAT1_SZ, WS.STAT1)
    a.I(f's_mul_i32 s27, s29, {KS*1024}')
    a.I('s_lshl_b32 s35, s34, 8')
    a.I('s_cmp_ge_u32 s22, 8'); a.I('s_cbranch_scc1 K1_V')
    a.I('v_add_u32 v4, s27, v2'); a.I(f'v_add_u32 v5, {KS*1024}, v4')
    a.I('v_and_b32 v10, 15, v1'); a.I('v_lshlrev_b32 v11, 3, v10')
    a.vmem('buffer_load_dwordx2 v[252:253], v11, s[40:43], s35 offen')
    a.vmem('buffer_load_dwordx2 v[254:255], v11, s[40:43], s35 offen offset:128')
    k1_main(a, False)
    a.I('v_and_b32 v10, 15, v1'); a.I('v_lshrrev_b32 v13, 4, v1')
    a.I('v_lshlrev_b32 v9, 4, v13'); a.I(f'v_add_u32 v9, {UTOFF}, v9')
    for nb in range(9):
        a.I(f'ds_read_b128 {r4(WF+nb*4)}, v9 offset:{nb*64}'); a.I(f'ds_read_b128 {r4(WF+36+nb*4)}, v9 offset:{576+nb*64}')
    a.I('s_mov_b32 s26, s34')
    a.I('s_and_b32 s30, s22, 3'); a.I('s_lshl_b32 s30, s30, 3')
    a.I('s_waitcnt lgkmcnt(0)')
    for tb in range(2):
        mu, rs = 252+2*tb, 253+2*tb
        for nb in range(9):
            for r in range(4):
                v = acc(nb, tb)+r
                a.I(f'v_fma_f32 v{v}, -v{mu}, v{WF+nb*4+r}, v{v}')
            for r in range(4):
                v = acc(nb, tb)+r
                a.I(f'v_fma_f32 v{v}, v{v}, v{rs}, v{WF+36+nb*4+r}')
    def qk_store(img_off, img_sz, tilebytes, hi_off):
        srd(a, 16, 4, 5, img_sz, img_off)
        a.I('v_lshrrev_b32 v14, 1, v13'); a.I('v_add_u32 v14, s30, v14'); a.I('v_lshlrev_b32 v14, 6, v14'); a.I('v_add_u32 v14, s26, v14')
        a.I(f's_movk_i32 s31, {tilebytes}'); a.I('v_mul_lo_u32 v14, v14, s31')
        a.I('v_and_b32 v15, 1, v13'); a.I('v_lshl_add_u32 v14, v15, 9, v14'); a.I('v_lshl_add_u32 v14, v10, 4, v14')
        for tb in range(2):
            for p in range(4):
                d = XR + (tb*4+p)*4
                b0, b1 = acc(2*p, tb), acc(2*p+1, tb)
                a.I(f'v_cvt_pk_bf16_f32 v{d}, v{b0}, v{b0+1}'); a.I(f'v_cvt_pk_bf16_f32 v{d+1}, v{b0+2}, v{b0+3}')
                a.I(f'v_cvt_pk_bf16_f32 v{d+2}, v{b1}, v{b1+1}'); a.I(f'v_cvt_pk_bf16_f32 v{d+3}, v{b1+2}, v{b1+3}')
                a.I(f's_mov_b32 s31, {p*2*64*tilebytes}')
                a.vmem(f'buffer_store_dwordx4 {r4(d)}, v14, s[16:19], s31 offen offset:{tb*256}')
        a.I('v_lshlrev_b32 v14, 1, v13'); a.I('v_add_u32 v14, s30, v14'); a.I('v_lshlrev_b32 v14, 6, v14'); a.I('v_add_u32 v14, s26, v14')
        a.I(f's_movk_i32 s31, {tilebytes}'); a.I('v_mul_lo_u32 v14, v14, s31'); a.I('v_lshl_add_u32 v14, v10, 2, v14')
        a.I(f's_mov_b32 s31, {64*tilebytes}')
        for tb in range(2):
            b = acc(8, tb); d = XR + 40 + tb*2
            a.I(f'v_cvt_pk_bf16_f32 v{d}, v{b}, v{b+1}'); a.I(f'v_cvt_pk_bf16_f32 v{d+1}, v{b+2}, v{b+3}')
            a.vmem(f'buffer_store_dword v{d}, v14, s[16:19], 0 offen offset:{hi_off+tb*64}')
            a.vmem(f'buffer_store_dword v{d+1}, v14, s[16:19], s31 offen offset:{hi_off+tb*64}')
    a.I('s_cmp_ge_u32 s22, 4'); a.I('s_cbranch_scc1 K1_K')
    qk_store(WS.QIMG, WS.QIMG_SZ, QT_BYTES, 1024)
    a.I('s_endpgm')
    a.label('K1_K')
    qk_store(WS.KVIMG, WS.KVIMG_SZ, KV_TILE, 1024)
    for p in range(4):
        for tb in range(2):
            b0, b1 = acc(2*p, tb), acc(2*p+1, tb)
            d = WF + p*2 + tb
            a.I(f'v_mul_f32 v{d}, v{b0}, v{b0}')
            for v in [b0+1, b0+2, b0+3, b1, b1+1, b1+2, b1+3]: a.I(f'v_fmac_f32 v{d}, v{v}, v{v}')
    for p in range(4):
        for tb in range(2):
            d = WF + p*2 + tb
            a.I(f'v_mov_b32 v9, v{d}'); a.I(f'v_permlane16_swap_b32 v{d}, v9'); a.I(f'v_add_f32 v{d}, v{d}, v9')
        a.I(f'v_max_f32 v{WF+16+p}, v{WF+p*2}, v{WF+p*2+1}')
    for e in range(2):
        for tb in range(2):
            b = acc(8, tb)
            d = WF + 24 + e*2 + tb
            a.I(f'v_mul_f32 v{d}, v{b+2*e}, v{b+2*e}'); a.I(f'v_fmac_f32 v{d}, v{b+2*e+1}, v{b+2*e+1}')
        a.I(f'v_max_f32 v{WF+20+e}, v{WF+24+e*2}, v{WF+25+e*2}')
    for q in range(6):
        d = WF + 16 + q
        for dpp in ('quad_perm:[1,0,3,2]', 'quad_perm:[2,3,0,1]', 'row_half_mirror', 'row_mirror'):
            a.I(f'v_max_f32_dpp v{d}, v{d}, v{d} {dpp} row_mask:0xf bank_mask:0xf')
    a.I('s_lshl_b32 s28, s20, 6')
    a.I('v_lshrrev_b32 v9, 5, v1'); a.I('v_lshlrev_b32 v9, 3, v9'); a.I('v_add_u32 v9, s28, v9')
    a.I('v_lshlrev_b32 v11, 4, v13'); a.I('v_add_u32 v11, s28, v11')
    for p in range(4): a.I(f'ds_write_b32 v9, v{WF+16+p} offset:{p*16}')
    for e in range(2): a.I(f'ds_write_b32 v11, v{WF+20+e} offset:{e*8+4}')
    a.I('v_and_b32 v12, 7, v1'); a.I('v_lshlrev_b32 v12, 3, v12'); a.I('v_add_u32 v12, s28, v12')
    a.I(f'ds_read_b64 {r2(WF+30)}, v12'); a.I('s_waitcnt lgkmcnt(0)')
    a.I(f'v_add_f32 v9, v{WF+30}, v{WF+31}')
    srd(a, 16, 4, 5, WS.KMAX_SZ, WS.KMAX)
    a.I('v_and_b32 v14, 7, v1'); a.I('v_add_u32 v14, s30, v14'); a.I('v_lshlrev_b32 v14, 6, v14'); a.I('v_add_u32 v14, s26, v14'); a.I('v_lshlrev_b32 v14, 2, v14')
    a.I('s_mov_b64 exec, 0xff')
    a.I('buffer_store_dword v9, v14, s[16:19], 0 offen')
    a.I('s_endpgm')
    a.label('K1_V')
    a.I('v_bfe_u32 v9, v1, 3, 1'); a.I(f's_mov_b32 s28, {KS*1024}'); a.I('v_mul_lo_u32 v9, v9, s28'); a.I('v_add_u32 v9, s27, v9')
    a.I('v_and_b32 v10, 0x30, v1'); a.I('v_and_b32 v11, 7, v1'); a.I('v_add_u32 v10, v10, v11')
    a.I('v_lshl_add_u32 v4, v10, 4, v9'); a.I('v_add_u32 v5, 128, v4')
    k1_main(a, True)
    a.I('v_and_b32 v10, 15, v1'); a.I('v_lshrrev_b32 v13, 4, v1')
    a.I('v_lshlrev_b32 v9, 2, v10'); a.I(f'v_add_u32 v9, {UTOFF}, v9')
    for nb in range(9):
        a.I(f'ds_read_b32 v{WF+nb}, v9 offset:{nb*64}'); a.I(f'ds_read_b32 v{WF+16+nb}, v9 offset:{576+nb*64}')
    a.I('v_lshrrev_b32 v11, 1, v13'); a.I('v_lshlrev_b32 v11, 7, v11'); a.I('v_and_b32 v12, 1, v13'); a.I('v_lshl_add_u32 v11, v12, 5, v11')
    for b in range(2):
        a.vmem(f'buffer_load_dwordx4 {r4(XR+b*8)}, v11, s[40:43], s35 offen offset:{b*64}')
        a.vmem(f'buffer_load_dwordx4 {r4(XR+b*8+4)}, v11, s[40:43], s35 offen offset:{b*64+16}')
    a.I('s_mov_b32 s26, s34')
    srd(a, 16, 4, 5, WS.KVIMG_SZ, WS.KVIMG)
    a.I('s_and_b32 s30, s22, 3'); a.I('s_lshl_b32 s30, s30, 3')
    a.I('s_lshl_b32 s31, s30, 6'); a.I('s_add_u32 s31, s31, s26'); a.I(f's_mul_i32 s31, s31, {KV_TILE}')
    a.I(f'v_mul_u32_u24 v14, {DV}, v13'); a.I('v_add_u32 v15, v14, v10'); a.I('v_lshlrev_b32 v15, 4, v15')
    a.I('s_waitcnt vmcnt(0) lgkmcnt(0)')
    for nb in range(9):
        for b in range(2):
            for r in range(4):
                v = acc(nb, b)+r
                a.I(f'v_fma_f32 v{v}, -v{XR+b*8+2*r}, v{WF+nb}, v{v}')
            for r in range(4):
                v = acc(nb, b)+r
                a.I(f'v_fma_f32 v{v}, v{v}, v{XR+b*8+2*r+1}, v{WF+16+nb}')
        d = XR + 16 + (nb % 6)*4
        b0, b1 = acc(nb, 0), acc(nb, 1)
        a.I(f'v_cvt_pk_bf16_f32 v{d}, v{b0}, v{b0+1}'); a.I(f'v_cvt_pk_bf16_f32 v{d+1}, v{b0+2}, v{b0+3}')
        a.I(f'v_cvt_pk_bf16_f32 v{d+2}, v{b1}, v{b1+1}'); a.I(f'v_cvt_pk_bf16_f32 v{d+3}, v{b1+2}, v{b1+3}')
        if nb < 8:
            a.I(f's_add_u32 s32, s31, {nb*64*KV_TILE}')
            a.vmem(f'buffer_store_dwordx4 {r4(d)}, v15, s[16:19], s32 offen offset:{VT_OFF}')
        else:
            a.I('v_lshrrev_b32 v9, 1, v10'); a.I(f's_mov_b32 s32, {64*KV_TILE}'); a.I('v_mul_lo_u32 v9, v9, s32')
            a.I('v_and_b32 v11, 1, v10'); a.I('v_add_u32 v11, v11, v14'); a.I('v_add_u32 v11, 16, v11'); a.I('v_lshl_add_u32 v9, v11, 4, v9')
            a.vmem(f'buffer_store_dwordx4 {r4(d)}, v9, s[16:19], s31 offen offset:{VT_OFF}')
    a.I('s_endpgm')
    a.label('K1_UT')
    a.I('s_sub_u32 s21, s2, 192'); a.I('s_lshl_b32 s21, s21, 2'); a.I('s_add_u32 s21, s21, s20')
    a.I('s_waitcnt lgkmcnt(0)')
    srd(a, 8, 4, 5, WS.W1S_SZ, WS.W1S); srd(a, 12, 4, 5, WS.TAB2_SZ, WS.TAB2); srd(a, 16, 4, 5, WS.UT1_SZ, WS.UT1)
    a.I('v_and_b32 v3, 15, v1'); a.I('v_lshrrev_b32 v4, 4, v1'); a.I('v_lshlrev_b32 v5, 6, v4'); a.I('v_lshl_add_u32 v5, v3, 5, v5')
    a.I('v_cmp_gt_u32 vcc, 2, v3'); a.I('v_mov_b32 v6, 0x7fffffff'); a.I('v_cndmask_b32 v5, v6, v5, vcc')
    for ks in range(18):
        b = 16 + (ks % 6)*8
        if ks == 16: a.I('s_movk_i32 s25, 4096')
        so = '0' if ks < 16 else 's25'
        a.vmem(f'buffer_load_dwordx4 {r4(b)}, v5, s[12:15], {so} offen offset:{(ks*256) % 4096}')
        a.vmem(f'buffer_load_dwordx4 {r4(b+4)}, v5, s[12:15], {so} offen offset:{(ks*256) % 4096 + 16}')
        if ks % 6 == 5:
            a.I('s_waitcnt vmcnt(0)')
            for k2 in range(ks-5, ks+1):
                b2 = 16 + (k2 % 6)*8; d = 80 + k2*4
                for q in range(4): a.I(f'v_cvt_pk_bf16_f32 v{d+q}, v{b2+2*q}, v{b2+2*q+1}')
    a.label('K1_UTL')
    sdiv(a, 's22', 's21', 3, 287); a.I('s_mul_i32 s23, s22, 3'); a.I('s_sub_u32 s23, s21, s23')
    a.I('s_mul_i32 s24, s22, 54'); a.I('s_add_u32 s24, s24, s23'); a.I('s_lshl_b32 s24, s24, 10')
    for ks in range(18):
        a.I(f's_add_u32 s25, s24, {ks*3072}')
        a.vmem(f'buffer_load_dwordx4 {r4(160+4*ks)}, v2, s[8:11], s25 offen')
    a.I('s_waitcnt vmcnt(0)')
    for ks in range(18):
        a.I(f'v_mfma_f32_16x16x32_bf16 v[8:11], {r4(160+4*ks)}, {r4(80+ks*4)}, {"0" if ks == 0 else "v[8:11]"}')
    a.I(f's_mov_b32 s25, {F*4}'); a.I('v_mul_lo_u32 v7, v3, s25'); a.I('v_lshl_add_u32 v7, v4, 4, v7'); a.I('s_lshl_b32 s25, s21, 6')
    a.I('v_cmp_gt_u32 vcc, 2, v3'); a.I('s_and_saveexec_b64 s[46:47], vcc')
    a.vmem('buffer_store_dwordx4 v[8:11], v7, s[16:19], s25 offen')
    a.I('s_mov_b64 exec, s[46:47]')
    a.I('s_add_u32 s21, s21, 256'); a.I('s_cmp_lt_u32 s21, 288'); a.I('s_cbranch_scc1 K1_UTL')
    a.label('K1_END')
    a.I('s_endpgm')
    return kernel_text('k1_kernel', a, 256), (256, 256, UTOFF + 2048)

def k3():
    a = Asm()
    A3 = 16
    def ac(nb, tb): return A3 + (nb*2+tb)*4
    a.I(f's_cmp_ge_u32 s2, 256'); a.I('s_cbranch_scc1 K3_END')
    a.I(f's_load_dwordx2 s[4:5], s[0:1], {A_WS}')
    wave_setup(a)
    a.I('s_and_b32 s21, s2, 7'); a.I('s_lshl_b32 s21, s21, 3'); a.I('s_bfe_u32 s26, s2, 0x30003'); a.I('s_add_u32 s21, s21, s26')
    a.I('s_lshr_b32 s22, s2, 6')
    a.I('s_waitcnt lgkmcnt(0)')
    a.I(f's_mul_i32 s26, s22, {18*9*1024}')
    a.I('s_add_u32 s8, s4, s26'); a.I('s_addc_u32 s9, s5, 0')
    a.I(f's_add_u32 s8, s8, {WS.WOF}'); a.I('s_addc_u32 s9, s9, 0')
    a.I(f's_mov_b32 s10, {18*9*1024}'); a.I('s_mov_b32 s11, 0x00020000')
    srd(a, 12, 4, 5, WS.OF_SZ, WS.OF)
    a.I(f's_mul_i32 s27, s21, {2*KS*1024}')
    a.I('s_lshl_b32 s28, s20, 10'); a.I('s_add_u32 s27, s27, s28')
    a.I('s_mul_i32 s29, s20, 9216')
    toks = []
    for i in range(5):
        a.I(f's_add_u32 s30, s27, {i*4096}')
        a.vmem(f'buffer_load_dwordx4 {r4(180+8*i,"a")}, v2, s[12:15], s30 offen')
        a.I(f's_add_u32 s30, s30, {KS*1024}')
        a.vmem(f'buffer_load_dwordx4 {r4(184+8*i,"a")}, v2, s[12:15], s30 offen')
        for nb in range(9):
            if nb % 4 == 0: a.I(f's_add_u32 s30, s29, {i*36864 + nb*1024}')
            a.vmem(f'buffer_load_dwordx4 {r4(36*i+4*nb,"a")}, v2, s[8:11], s30 offen offset:{(nb % 4)*1024}')
            toks.append(a.vm)
    stamp(a, 0)
    for i in range(5):
        for nb in range(9):
            if nb % 3 == 0: a.wait(vm=toks[i*9+nb+2])
            for tb in range(2):
                c = '0' if i == 0 else r4(ac(nb, tb))
                a.I(f'v_mfma_f32_16x16x32_bf16 {r4(ac(nb,tb))}, {r4(36*i+4*nb,"a")}, {r4(180+8*i+4*tb,"a")}, {c}')
        if i == 0:
            srd(a, 16, 4, 5, WS.MOD_SZ, WS.MOD); srd(a, 24, 4, 5, WS.XF_SZ, WS.XF); srd(a, 48, 4, 5, WS.G2_SZ, WS.G2)
            a.I('s_lshr_b32 s31, s20, 1'); a.I('s_mul_i32 s31, s31, 5')
            a.I('s_mul_i32 s32, s22, 9'); a.I('s_add_u32 s32, s32, s31')
            a.I('v_lshrrev_b32 v9, 4, v1'); a.I('v_lshlrev_b32 v9, 4, v9')
            a.I('s_lshl_b32 s52, s32, 6'); a.I(f's_add_u32 s33, s52, {2*576*4}')
            for q in range(5): a.vmem(f'buffer_load_dwordx4 {r4(96+4*q)}, v9, s[16:19], s33 offen offset:{q*64}')
            for q in range(5): a.vmem(f'buffer_load_dwordx4 {r4(144+4*q)}, v9, s[48:51], s52 offen offset:{q*64}')
            a.I('s_and_b32 s34, s20, 1'); a.I('s_lshl_b32 s35, s21, 1'); a.I('s_add_u32 s34, s34, s35')
            a.I(f's_mul_i32 s35, s34, {KS*1024}'); a.I('v_add_u32 v10, s35, v2')
            for q in range(5):
                a.I(f's_add_u32 s36, s32, {q}'); a.I('s_and_b32 s37, s36, 1'); a.I('s_lshr_b32 s36, s36, 1'); a.I('s_lshl_b32 s36, s36, 10')
                a.I('s_lshl_b32 s37, s37, 3'); a.I(f's_add_u32 s{40+q}, s36, s37')
                a.vmem(f'buffer_load_dwordx2 {r2(116+2*q)}, v10, s[24:27], s{40+q} offen')
    stamp(a, 2)
    a.I('s_mul_i32 s38, s20, 18432'); a.I('v_add_u32 v11, s38, v2')
    for nb in range(9):
        for tb in range(2): a.I(f'ds_write_b128 v11, {r4(ac(nb,tb))} offset:{(nb*2+tb)*1024}')
    a.I('s_waitcnt lgkmcnt(0)'); a.I('s_barrier')
    stamp(a, 3)
    a.I('s_lshl_b32 s38, s31, 1'); a.I('s_and_b32 s39, s20, 1'); a.I('s_add_u32 s38, s38, s39'); a.I('s_lshl_b32 s38, s38, 10')
    a.I('v_add_u32 v11, s38, v2'); a.I(f'v_add_u32 v12, {2*18432}, v11')
    for q in range(5):
        for wv in range(4):
            a.I(f'ds_read_b128 {r4(A3+q*16+wv*4)}, v{11 + wv//2} offset:{(wv % 2)*18432 + q*2048}')
    srd(a, 8, 4, 5, WS.X1F_SZ, WS.X1F); srd(a, 12, 4, 5, WS.X1G_SZ, WS.X1G)
    a.I('v_mov_b32 v13, 0'); a.I('v_mov_b32 v14, 0')
    a.I('s_waitcnt vmcnt(0) lgkmcnt(0)')
    for q in range(5):
        if q == 4:
            a.I('s_cmp_ge_u32 s20, 2'); a.I('s_cbranch_scc1 K3_SKIP5')
        b = A3 + q*16
        for r in range(4):
            a.I(f'v_add_f32 v{b+r}, v{b+r}, v{b+4+r}'); a.I(f'v_add_f32 v{b+8+r}, v{b+8+r}, v{b+12+r}')
        for r in range(4):
            a.I(f'v_add_f32 v{b+r}, v{b+r}, v{b+8+r}')
            x = 116 + 2*q + r//2
            if r % 2 == 0: a.I(f'v_lshlrev_b32 v{b+4+r}, 16, v{x}')
            else: a.I(f'v_and_b32 v{b+4+r}, 0xffff0000, v{x}')
        for r in range(4): a.I(f'v_fma_f32 v{b+r}, v{b+r}, v{96+4*q+r}, v{b+4+r}')
        d = 128 + 2*q
        a.I(f'v_cvt_pk_bf16_f32 v{d}, v{b}, v{b+1}'); a.I(f'v_cvt_pk_bf16_f32 v{d+1}, v{b+2}, v{b+3}')
        a.vmem(f'buffer_store_dwordx2 {r2(d)}, v10, s[8:11], s{40+q} offen')
        for z in range(2):
            a.I(f'v_lshlrev_b32 v{b+4+2*z}, 16, v{d+z}'); a.I(f'v_and_b32 v{b+5+2*z}, 0xffff0000, v{d+z}')
        for r in range(4):
            a.I(f'v_add_f32 v13, v13, v{b+4+r}'); a.I(f'v_fmac_f32 v14, v{b+4+r}, v{b+4+r}')
            a.I(f'v_mul_f32 v{b+8+r}, v{b+4+r}, v{144+4*q+r}')
        a.I(f'v_cvt_pk_bf16_f32 v{b+12}, v{b+8}, v{b+9}'); a.I(f'v_cvt_pk_bf16_f32 v{b+13}, v{b+10}, v{b+11}')
        a.vmem(f'buffer_store_dwordx2 {r2(b+12)}, v10, s[12:15], s{40+q} offen')
    a.label('K3_SKIP5')
    for r in ('v13', 'v14'):
        a.I(f'v_mov_b32 v15, {r}'); a.I(f'v_permlane16_swap_b32 {r}, v15'); a.I(f'v_add_f32 {r}, {r}, v15')
        a.I(f'v_mov_b32 v15, {r}'); a.I(f'v_permlane32_swap_b32 {r}, v15'); a.I(f'v_add_f32 {r}, {r}, v15')
    a.I('v_mov_b32 v140, v13'); a.I('v_mov_b32 v141, v14')
    srd(a, 8, 4, 5, WS.STAT2_SZ, WS.STAT2)
    a.I('s_lshl_b32 s36, s34, 10'); a.I('s_lshl_b32 s37, s22, 4'); a.I('s_add_u32 s36, s36, s37')
    a.I('s_lshr_b32 s37, s20, 1'); a.I('s_lshl_b32 s37, s37, 3'); a.I('s_add_u32 s36, s36, s37')
    a.I('v_and_b32 v15, 15, v1'); a.I('v_lshlrev_b32 v15, 6, v15')
    a.I('v_cmp_gt_u32 vcc, 16, v1'); a.I('s_and_saveexec_b64 s[46:47], vcc')
    a.vmem('buffer_store_dwordx2 v[140:141], v15, s[8:11], s36 offen')
    a.I('s_endpgm')
    a.label('K3_END')
    a.I('s_endpgm')
    return kernel_text('k3_kernel', a, 164+220, accum=164), (256, 256, 4*18432)

YA, YB = 16, 64
OUTV, OUTA = 112, 160
CR, CM, UU = 224, 228, 232
XOFF, HOFF, UTL = 0, 73728, 147456
NR = 32
BF = 128
def outreg(nb, tb):
    if nb < 7: return r4(OUTV+(nb*4+tb)*4)
    return r4(OUTA+((nb-7)*4+tb)*4, 'a')
def k4():
    a = Asm()
    a.I('s_cmp_ge_u32 s2, 256'); a.I('s_cbranch_scc1 K4_END')
    a.I(f's_load_dwordx2 s[4:5], s[0:1], {A_WS}')
    wave_setup(a)
    a.I('s_and_b32 s26, s2, 7'); a.I('s_lshr_b32 s27, s2, 3')
    a.I('s_and_b32 s22, s26, 3'); a.I('s_lshl_b32 s22, s22, 1'); a.I('s_and_b32 s28, s27, 1'); a.I('s_add_u32 s22, s22, s28')
    a.I('s_lshr_b32 s21, s26, 2'); a.I('s_lshl_b32 s21, s21, 4'); a.I('s_lshr_b32 s28, s27, 1'); a.I('s_add_u32 s21, s21, s28')
    a.I('v_and_b32 v3, 15, v1'); a.I('v_lshlrev_b32 v3, 6, v3')
    a.I('s_waitcnt lgkmcnt(0)')
    srd(a, 16, 4, 5, WS.X1G_SZ, WS.X1G); srd(a, 8, 4, 5, WS.W1S_SZ, WS.W1S)
    a.I('s_lshl_b32 s28, s21, 2'); a.I('s_add_u32 s28, s28, s20'); a.I(f's_mul_i32 s29, s28, {KS*1024}')
    a.I('s_lshl_b32 s30, s20, 10')
    a.I('s_mul_i32 s31, s22, 12'); a.I('s_add_u32 s31, s31, s20'); a.I(f's_mul_i32 s31, s31, {54*1024}')
    a.I('s_lshl_b32 s32, s22, 2'); a.I('s_add_u32 s32, s32, s20'); a.I(f's_mul_i32 s32, s32, {162*1024}')
    xt = []
    def xdma(ks):
        a.I(f's_add_u32 m0, s30, {ks*4096}'); a.I(f's_add_u32 s34, s29, {ks*1024}')
        xt.append(a.vmem('buffer_load_dwordx4 v2, s[16:19], s34 offen lds'))
    wt = {}; wstate = {}
    def wissue(q):
        if q >= 324 or q in wt: return
        sl = q % NR
        if q < 162:
            c, rem = q // 54, q % 54
            off = c*4*54*1024 + rem*1024; base, srdn = 's31', 8
        else:
            off = (q-162)*1024; base, srdn = 's32', 12
        key = (base, off & ~4095)
        if wstate.get('k') != key:
            a.I(f's_add_u32 s33, {base}, {off & ~4095}'); wstate['k'] = key
        wt[q] = a.vmem(f'buffer_load_dwordx4 {r4(4*sl,"a")}, v2, s[{srdn}:{srdn+3}], s33 offen offset:{off & 4095}')
    for ks in range(4): xdma(ks)
    for q in range(6): wissue(q)
    for ks in range(4, 18): xdma(ks)
    srd(a, 12, 4, 5, WS.W2S_SZ, WS.W2S); srd(a, 40, 4, 5, WS.STAT2_SZ, WS.STAT2); srd(a, 24, 4, 5, WS.UT1_SZ, WS.UT1)
    a.I('s_mul_i32 s34, s20, 1152'); a.I(f's_add_u32 m0, s34, {UTL}')
    a.I('s_lshr_b32 s35, s20, 1'); a.I(f's_mul_i32 s35, s35, {F*4}'); a.I('s_and_b32 s36, s20, 1'); a.I('s_mul_i32 s36, s36, 1152'); a.I('s_add_u32 s35, s35, s36')
    a.I(f's_mul_i32 s36, s22, 2304'); a.I('s_add_u32 s35, s35, s36')
    a.vmem('buffer_load_dwordx4 v2, s[24:27], s35 offen lds')
    a.I('s_mov_b64 exec, 0xff'); a.vmem('buffer_load_dwordx4 v2, s[24:27], s35 offen offset:1024 lds'); a.I('s_mov_b64 exec, -1')
    for tb in range(4):
        a.I(f's_lshl_b32 s35, s21, 2'); a.I(f's_add_u32 s35, s35, {tb}'); a.I('s_lshl_b32 s35, s35, 10')
        for q in range(4): a.vmem(f'buffer_load_dwordx4 {r4(OUTV+tb*16+4*q)}, v3, s[40:43], s35 offen offset:{q*16}')
    sttok = a.vm
    nxt_w = [6]
    for q in range(6, 12): wissue(q)
    nxt_w = [12]
    stamp(a, 0)
    a.I('v_mov_b32 v3, v2'); a.I('v_add_u32 v4, 36864, v2'); a.I(f'v_add_u32 v5, {HOFF}, v2'); a.I(f'v_add_u32 v6, {HOFF+36864}, v2')
    for fb in range(3):
        a.I('s_mul_i32 s35, s20, 3'); a.I(f's_add_u32 s35, s35, {fb}'); a.I('s_and_b32 s36, s35, 1'); a.I('s_lshr_b32 s35, s35, 1')
        a.I('s_lshl_b32 s35, s35, 12'); a.I('s_lshl_b32 s36, s36, 3'); a.I('s_add_u32 s35, s35, s36'); a.I(f'v_add_u32 v{7+fb}, s35, v5')
    a.I('v_lshrrev_b32 v14, 4, v1'); a.I('v_lshlrev_b32 v14, 4, v14'); a.I('s_mul_i32 s35, s20, 192'); a.I(f's_add_u32 s35, s35, {UTL}'); a.I(f'v_add_u32 v{240}, s35, v14')
    btok = {}
    def bread(kind, ks, st):
        base = (3 if kind == 'x' else 5) + (ks // 9)
        for tb in range(4):
            btok[(kind, ks, tb)] = a.lds(f'ds_read_b128 {r4(BF+st*16+tb*4,"a")}, v{base} offset:{((ks % 9)*4+tb)*1024}')
    TS = 10
    def silu_list(Y, c):
        L = []
        for fb in range(3):
            L.append(('dsr', f'ds_read_b128 {r4(UU)}, v240 offset:{(192*c+16*fb)*4}')); L.append(('dsr', f'ds_read_b128 {r4(UU+4)}, v240 offset:{(192*c+16*fb)*4+2304}'))
            L.append(('wl',))
            for tb in range(4):
                b = Y + (fb*4+tb)*4
                if tb == 0:
                    for r in range(4): L.append(('i', f'v_mul_f32 v{UU+4+r}, {hexf(LOG2E)}, v{UU+4+r}'))
                for r in range(4): L.append(('i', f'v_fma_f32 v{244+r}, -v{CM+tb}, v{UU+r}, v{UU+4+r}'))
                for r in range(4): L.append(('i', f'v_fma_f32 v{b+r}, v{b+r}, v{CR+tb}, v{244+r}'))
                for r in range(4): L.append(('i', f'v_exp_f32 v{TS+r}, -v{b+r}'))
                for r in range(4): L.append(('i', f'v_add_f32 v{TS+r}, 1.0, v{TS+r}'))
                for r in range(4): L.append(('i', f'v_rcp_f32 v{TS+r}, v{TS+r}'))
                for r in range(4): L.append(('i', f'v_mul_f32 v{b+r}, v{b+r}, v{TS+r}'))
                L.append(('i', f'v_cvt_pk_bf16_f32 v14, v{b}, v{b+1}')); L.append(('i', f'v_cvt_pk_bf16_f32 v15, v{b+2}, v{b+3}'))
                L.append(('ds', f'ds_write_b64 v{7+fb}, v[14:15] offset:{(24*c+tb)*1024}'))
        return L
    sst = {}
    def emit_item(it):
        if it[0] == 'ds': a.lds(it[1])
        elif it[0] == 'dsr': sst['t'] = a.lds(it[1])
        elif it[0] == 'wl': a.wait(lg=sst['t'])
        else: a.I(it[1])
    side = []
    def emit_side(n):
        k = 0
        while side and k < n:
            it = side.pop(0); emit_item(it)
            if it[0] in ('i', 'ds'): k += 1
    q = 0; step = 0
    a.wait(vm=xt[3]); a.I('s_barrier')
    stamp(a, 1)
    bread('x', 0, 0)
    def pump():
        nis = 0
        while nxt_w[0] < min(q + NR, 324) and nis < 2:
            wissue(nxt_w[0]); nxt_w[0] += 1; nis += 1
    for c in range(3):
        Y = (YA, YB)[c % 2]
        if c > 0: side = silu_list((YA, YB)[(c-1) % 2], c-1)
        for ks in range(18):
            cur = step % 2
            if c == 0 and ks == 2:
                a.wait(vm=xt[17]); a.I('s_barrier')
            if c == 0 and ks == 12:
                a.I('s_barrier')
            if c == 0 and ks == 8:
                a.wait(vm=sttok)
                for tb in range(4):
                    b = OUTV + tb*16
                    for z in range(1, 8):
                        a.I(f'v_add_f32 v{b}, v{b}, v{b+2*z}'); a.I(f'v_add_f32 v{b+1}, v{b+1}, v{b+2*z+1}')
                    a.I(f'v_mul_f32 v{b}, {hexf(1.0/576)}, v{b}'); a.I(f'v_mul_f32 v{b+1}, {hexf(1.0/576)}, v{b+1}')
                    a.I(f'v_fma_f32 v{b+1}, -v{b}, v{b}, v{b+1}'); a.I(f'v_max_f32 v{b+1}, 0, v{b+1}'); a.I(f'v_add_f32 v{b+1}, {hexf(1e-5)}, v{b+1}')
                    a.I(f'v_rsq_f32 v{b+1}, v{b+1}')
                    a.I(f'v_mul_f32 v{CR+tb}, {hexf(LOG2E)}, v{b+1}'); a.I(f'v_mul_f32 v{CM+tb}, v{CR+tb}, v{b}')
            if ks + 1 < 18: bread('x', ks+1, 1-cur)
            elif c < 2: bread('x', 0, 1-cur)
            a.wait(vm=wt[q+2], lg=btok[('x', ks, 3)])
            for fb in range(3):
                for tb in range(4):
                    cc = '0' if ks == 0 else r4(Y+(fb*4+tb)*4)
                    a.I(f'v_mfma_f32_16x16x32_bf16 {r4(Y+(fb*4+tb)*4)}, {r4(4*(q % NR),"a")}, {r4(BF+cur*16+tb*4,"a")}, {cc}')
                    if side and ks >= 1: emit_side(2 if tb % 2 == 0 else 1)
                q += 1
                pump()
            step += 1
        emit_side(10**6)
        if c == 0: stamp(a, 4)
    stamp(a, 2)
    a.I('s_waitcnt lgkmcnt(0)'); a.I('s_barrier')
    side = silu_list(YA, 2)
    cur = step % 2
    bread('h', 0, cur)
    for ks in range(18):
        cur = step % 2
        if ks == 10:
            emit_side(10**6)
            a.I('s_waitcnt lgkmcnt(0)'); a.I('s_barrier')
        if ks + 1 < 18: bread('h', ks+1, 1-cur)
        for nb in range(9):
            if nb % 3 == 0:
                if nb == 0: a.wait(vm=wt[q+2], lg=btok[('h', ks, 3)])
                else: a.wait(vm=wt[q+2])
            for tb in range(4):
                cc = '0' if ks == 0 else outreg(nb, tb)
                a.I(f'v_mfma_f32_16x16x32_bf16 {outreg(nb,tb)}, {r4(4*(q % NR),"a")}, {r4(BF+cur*16+tb*4,"a")}, {cc}')
                if side: emit_side(1)
            q += 1
            pump()
        step += 1
    stamp(a, 3)
    srd(a, 16, 4, 5, WS.PART_SZ, WS.PART)
    a.I('s_lshl_b32 s28, s22, 6'); a.I('s_lshl_b32 s29, s21, 1'); a.I('s_add_u32 s28, s28, s29'); a.I('s_mul_i32 s28, s28, 36')
    a.I('s_mul_i32 s29, s20, 9'); a.I('s_add_u32 s28, s28, s29'); a.I('s_lshl_b32 s28, s28, 10')
    for nb in range(9):
        for pr in range(2):
            if nb < 7:
                b0, b1 = OUTV+(nb*4+2*pr)*4, OUTV+(nb*4+2*pr+1)*4
            else:
                b0, b1 = YB, YB+4
                for z in range(8): a.I(f'v_accvgpr_read_b32 v{YB+z}, a{OUTA+((nb-7)*4+2*pr)*4+z}')
            d = YA + ((nb*2+pr) % 8)*4
            a.I(f'v_cvt_pk_bf16_f32 v{d}, v{b0}, v{b0+1}'); a.I(f'v_cvt_pk_bf16_f32 v{d+1}, v{b0+2}, v{b0+3}')
            a.I(f'v_cvt_pk_bf16_f32 v{d+2}, v{b1}, v{b1+1}'); a.I(f'v_cvt_pk_bf16_f32 v{d+3}, v{b1+2}, v{b1+3}')
            a.I(f's_add_u32 s29, s28, {(pr*36+nb)*1024}')
            a.vmem(f'buffer_store_dwordx4 {r4(d)}, v2, s[16:19], s29 offen')
    a.label('K4_END')
    a.I('s_endpgm')
    return kernel_text('k4_kernel', a, 256+192, accum=256), (256, 256, UTL + 4608)

def k5():
    a = Asm()
    NWG = 64*36//4
    a.I(f's_cmp_ge_u32 s2, {NWG}'); a.I('s_cbranch_scc1 K5_END')
    a.I(f's_load_dwordx2 s[4:5], s[0:1], {A_WS}'); a.I(f's_load_dwordx2 s[6:7], s[0:1], {A_OUT}')
    wave_setup(a)
    a.I('s_lshl_b32 s21, s2, 2'); a.I('s_add_u32 s21, s21, s20')
    sdiv(a, 's22', 's21', 36, 2303)
    a.I('s_mul_i32 s23, s22, 36'); a.I('s_sub_u32 s23, s21, s23')
    a.I('s_waitcnt lgkmcnt(0)')
    srd(a, 8, 4, 5, WS.PART_SZ, WS.PART); srd(a, 12, 4, 5, WS.X1F_SZ, WS.X1F); srd(a, 16, 4, 5, WS.MOD_SZ, WS.MOD); srd(a, 24, 6, 7, S*D*2)
    a.I('s_lshl_b32 s28, s21, 10')
    for j in range(8):
        a.vmem(f'buffer_load_dwordx4 {r4(16+4*j)}, v2, s[8:11], s28 offen')
        if j < 7: a.I(f's_add_u32 s28, s28, {64*36*1024}')
    a.I('s_mul_i32 s28, s22, 36'); a.I('s_lshr_b32 s29, s23, 1'); a.I('s_add_u32 s28, s28, s29'); a.I('s_lshl_b32 s28, s28, 10')
    a.I('s_and_b32 s29, s23, 1'); a.I('s_lshl_b32 s29, s29, 3'); a.I('s_add_u32 s28, s28, s29')
    a.vmem('buffer_load_dwordx2 v[48:49], v2, s[12:15], s28 offen')
    a.I(f's_add_u32 s28, s28, {18*1024}')
    a.vmem('buffer_load_dwordx2 v[50:51], v2, s[12:15], s28 offen')
    a.I('v_lshrrev_b32 v3, 4, v1'); a.I('v_lshlrev_b32 v4, 4, v3')
    a.I('s_lshl_b32 s28, s23, 6'); a.I(f's_add_u32 s28, s28, {5*576*4}')
    a.vmem('buffer_load_dwordx4 v[52:55], v4, s[16:19], s28 offen')
    a.I('v_and_b32 v5, 15, v1'); a.I('v_mul_u32_u24 v5, 1152, v5'); a.I('v_lshl_add_u32 v5, v3, 3, v5')
    a.I(f's_mul_i32 s28, s22, {32*1152}'); a.I('s_lshl_b32 s29, s23, 5'); a.I('s_add_u32 s28, s28, s29')
    for r in range(8): a.I(f'v_mov_b32 v{56+r}, 0')
    a.I('s_waitcnt vmcnt(0)')
    for j in range(8):
        for z in range(4):
            a.I(f'v_lshlrev_b32 v6, 16, v{16+4*j+z}'); a.I(f'v_and_b32 v7, 0xffff0000, v{16+4*j+z}')
            a.I(f'v_add_f32 v{56+2*z}, v{56+2*z}, v6'); a.I(f'v_add_f32 v{57+2*z}, v{57+2*z}, v7')
    LN2 = math.log(2.0)
    for r in range(4): a.I(f'v_mul_f32 v{52+r}, {hexf(LN2)}, v{52+r}')
    for h in range(2):
        for r in range(4):
            x = 48 + 2*h + r//2
            if r % 2 == 0: a.I(f'v_lshlrev_b32 v6, 16, v{x}')
            else: a.I(f'v_and_b32 v6, 0xffff0000, v{x}')
            a.I(f'v_fma_f32 v{56+4*h+r}, v{56+4*h+r}, v{52+r}, v6')
        a.I(f'v_cvt_pk_bf16_f32 v{64+2*h}, v{56+4*h}, v{57+4*h}'); a.I(f'v_cvt_pk_bf16_f32 v{65+2*h}, v{58+4*h}, v{59+4*h}')
        a.vmem(f'buffer_store_dwordx2 {r2(64+2*h)}, v5, s[24:27], s28 offen')
        if h == 0: a.I(f's_add_u32 s28, s28, {16*1152}')
    a.label('K5_END')
    a.I('s_endpgm')
    return kernel_text('k5_kernel', a, 72), (NWG, 256, 0)
```

```python
from common import *

NG, NL, NW = 72, 64, 72
NPREP = 36 + 162 + 288
CB = 176

def relayout_unit(a, nthreads_valid, src_srd, dst_srd, rowstride, rows_fn, vsrc, vdst, s_src, s_dst, lab):
    R = 20
    a.I(f'v_cmp_gt_u32 vcc, {nthreads_valid}, v0') if nthreads_valid <= 64 else (a.I(f's_movk_i32 s61, {nthreads_valid}'), a.I('v_cmp_gt_u32 vcc, s61, v0'))
    a.I('s_and_saveexec_b64 s[62:63], vcc')
    a.I(f's_cbranch_execz {lab}')
    toks = []
    for g4 in range(4):
        for i in range(8):
            a.I(f's_add_u32 s64, {s_src}, {rows_fn(g4, i)*rowstride}')
            a.vmem(f'buffer_load_dword v{R+g4*8+i}, {vsrc}, s[{src_srd}:{src_srd+3}], s64 offen')
        toks.append(a.vm)
    a.I('s_mov_b32 s65, 0x05040100'); a.I('s_mov_b32 s66, 0x07060302')
    for g4 in range(4):
        a.wait(vm=toks[g4])
        b = R + g4*8; d = 56 + g4*8
        for q in range(4):
            a.I(f'v_perm_b32 v{d+q}, v{b+2*q+1}, v{b+2*q}, s65')
            a.I(f'v_perm_b32 v{d+4+q}, v{b+2*q+1}, v{b+2*q}, s66')
        a.vmem(f'buffer_store_dwordx4 {r4(d)}, {vdst}, s[{dst_srd}:{dst_srd+3}], {s_dst} offen offset:{g4*256}')
        a.vmem(f'buffer_store_dwordx4 {r4(d+4)}, {vdst}, s[{dst_srd}:{dst_srd+3}], {s_dst} offen offset:{g4*256+16}')
    a.label(lab)

PERM_ROWS = lambda g4, i: 16*(i >> 2) + 4*g4 + (i & 3)

def qkv_dest(a):
    vdiv(a, 'v3', 'v1', 576, 1727)
    a.I('v_mul_u32_u24 v4, 576, v3'); a.I('v_sub_u32 v4, v1, v4')
    vdiv(a, 'v5', 'v4', 18, 575)
    a.I('v_mul_u32_u24 v6, 18, v5'); a.I('v_sub_u32 v6, v4, v6')
    a.I('v_lshrrev_b32 v7, 3, v5')
    a.I('v_lshl_add_u32 v7, v3, 2, v7')
    a.I('v_and_b32 v8, 7, v5')
    a.I('v_and_b32 v9, 6, v8'); a.I('v_bfe_u32 v10, v6, 2, 1'); a.I('v_add_u32 v9, v9, v10')
    a.I('v_and_b32 v10, 1, v8'); a.I('v_lshlrev_b32 v10, 3, v10')
    a.I('v_bfe_u32 v11, v6, 3, 1'); a.I('v_lshl_add_u32 v10, v11, 2, v10')
    a.I('v_and_b32 v11, 3, v6'); a.I('v_add_u32 v10, v10, v11')
    a.I('v_cmp_eq_u32 vcc, 2, v3')
    a.I('v_cndmask_b32 v9, v9, v8, vcc'); a.I('v_cndmask_b32 v10, v10, v6, vcc')
    a.I('v_lshlrev_b32 v11, 1, v8'); a.I('v_add_u32 v11, v11, v6'); a.I('v_subrev_u32 v11, 16, v11')
    a.I('v_cmp_le_u32 vcc, 16, v6')
    a.I('v_cndmask_b32 v9, v9, 8, vcc') if False else (a.I('v_mov_b32 v12, 8'), a.I('v_cndmask_b32 v9, v9, v12, vcc'))
    a.I('v_cndmask_b32 v10, v10, v11, vcc')
    a.I('v_mul_u32_u24 v7, 162, v7'); a.I('v_add_u32 v7, v7, v9'); a.I('v_lshlrev_b32 v2, 10, v7')
    a.I('v_lshl_add_u32 v2, v10, 4, v2')

def gemv32(a, ncol_groups, colbyte_sgprs, res_regs, lds_base=0):
    a.I('v_and_b32 v1, 3, v0'); a.I('v_lshrrev_b32 v2, 2, v0')
    a.I('s_movk_i32 s24, 6912'); a.I('v_mul_lo_u32 v3, v2, s24'); a.I('v_lshl_add_u32 v3, v1, 4, v3')
    a.I('v_lshlrev_b32 v4, 1, v2')
    for p in range(9): a.vmem(f'buffer_load_ushort v{CB+p}, v4, s[16:19], 0 offen offset:{p*128}')
    for gi in range(ncol_groups):
        a.I(f's_mov_b32 s26, {colbyte_sgprs[gi]}')
        for p in range(9):
            a.vmem(f'buffer_load_dwordx4 {r4(res_regs + gi*36 + 4*p)}, v3, s[12:15], s26 offen')
            if p < 8: a.I(f's_add_u32 s26, s26, {64*6912}')

def gemv32_silu(a):
    for p in range(9):
        c = f'v{CB+p}'
        a.I(f'v_lshlrev_b32 {c}, 16, {c}'); a.I(f'v_mul_f32 v5, {hexf(-LOG2E)}, {c}')
        a.I('v_exp_f32 v5, v5'); a.I('v_add_f32 v5, 1.0, v5'); a.I('v_rcp_f32 v5, v5'); a.I(f'v_mul_f32 {c}, {c}, v5')
        bf16_round_f32(a, c, c)

def gemv32_finish(a, ncol_groups, res_regs, lds_base, accb):
    a.I('v_lshlrev_b32 v7, 7, v2'); a.I('v_lshl_add_u32 v7, v1, 5, v7')
    for gi in range(ncol_groups):
        for j in range(8): a.I(f'v_mov_b32 v{accb+j}, 0')
        for p in range(9):
            for j in range(4):
                w = f'v{res_regs+gi*36+4*p+j}'
                a.I(f'v_lshlrev_b32 v5, 16, {w}'); a.I(f'v_and_b32 v6, 0xffff0000, {w}')
                a.I(f'v_fmac_f32 v{accb+2*j}, v{CB+p}, v5'); a.I(f'v_fmac_f32 v{accb+1+2*j}, v{CB+p}, v6')
        a.I(f'ds_write_b128 v7, {r4(accb)} offset:{lds_base+gi*8192}'); a.I(f'ds_write_b128 v7, {r4(accb+4)} offset:{lds_base+gi*8192+16}')
    a.I('s_waitcnt lgkmcnt(0)'); a.I('s_barrier')
    a.I('v_and_b32 v1, 31, v0'); a.I('v_lshrrev_b32 v2, 5, v0')
    a.I('v_lshlrev_b32 v7, 10, v2'); a.I('v_lshl_add_u32 v7, v1, 2, v7')
    a.I('v_lshlrev_b32 v8, 2, v0')
    for gi in range(ncol_groups):
        for i in range(8): a.I(f'ds_read_b32 v{accb+i}, v7 offset:{lds_base+gi*8192+i*128}')
        a.I('s_waitcnt lgkmcnt(0)')
        for i in range(1, 8): a.I(f'v_add_f32 v{accb}, v{accb}, v{accb+i}')
        a.I(f'ds_write_b32 v8, v{accb} offset:{lds_base+16384+gi*1024}')
    a.I('s_waitcnt lgkmcnt(0)'); a.I('s_barrier')
    a.I('v_lshlrev_b32 v8, 2, v1')
    for gi in range(ncol_groups):
        for i in range(8): a.I(f'ds_read_b32 v{accb+8+i}, v8 offset:{lds_base+16384+gi*1024+i*128}')
        a.I('s_waitcnt lgkmcnt(0)')
        for i in range(1, 8): a.I(f'v_add_f32 v{accb+8}, v{accb+8}, v{accb+8+i}')
        bf16_round_f32(a, f'v{accb+gi}', f'v{accb+8}')

def k0():
    a = Asm()
    a.I(f's_cmp_ge_u32 s2, {NG+NL+NW+NPREP}')
    a.I('s_cbranch_scc1 K0_END')
    a.I(f's_cmp_ge_u32 s2, {NG+NL+NW}'); a.I('s_cbranch_scc1 K0_PREP')
    a.I(f's_load_dwordx2 s[4:5], s[0:1], {A_WS}')
    a.I(f's_load_dwordx2 s[6:7], s[0:1], {A_X}')
    a.I(f's_load_dwordx2 s[8:9], s[0:1], {A_C}')
    a.I(f's_load_dwordx2 s[10:11], s[0:1], {A_WMOD}')
    a.I(f's_load_dwordx2 s[30:31], s[0:1], {A_WQKV}')
    a.I(f's_cmp_lt_u32 s2, {NW}'); a.I('s_cbranch_scc1 K0_W')
    a.I(f's_cmp_lt_u32 s2, {NW+NL}'); a.I('s_cbranch_scc1 K0_LN')
    a.I(f's_sub_u32 s32, s2, {NW+NL}')
    a.I('s_add_u32 s33, s32, 36'); a.I('s_lshl_b32 s34, s33, 6')
    a.I('s_waitcnt lgkmcnt(0)')
    srd(a, 12, 10, 11, 576*6912); srd(a, 16, 8, 9, 576*2)
    gemv32(a, 1, ['s34'], 20)
    a.I('s_waitcnt vmcnt(9)'); gemv32_silu(a)
    a.I('s_waitcnt vmcnt(0)')
    gemv32_finish(a, 1, 20, 0, 60)
    a.I('v_cmp_gt_u32 vcc, 32, v0'); a.I('s_and_saveexec_b64 s[28:29], vcc'); a.I('s_cbranch_execz K0_END')
    srd(a, 12, 4, 5, WS.MOD_SZ, WS.MOD)
    a.I('v_lshlrev_b32 v8, 2, v0'); a.I('s_lshl_b32 s25, s33, 7')
    a.I('buffer_store_dword v60, v8, s[12:15], s25 offen')
    sdiv(a, 's26', 's33', 18, 107); a.I('s_mul_i32 s27, s26, 18'); a.I('s_sub_u32 s27, s33, s27')
    a.I('v_bfe_u32 v9, v0, 2, 2'); a.I('v_lshlrev_b32 v9, 4, v9'); a.I('v_lshrrev_b32 v10, 4, v0'); a.I('v_lshl_add_u32 v9, v10, 2, v9')
    a.I('v_and_b32 v10, 3, v0'); a.I('v_add_u32 v9, v9, v10'); a.I('v_lshlrev_b32 v9, 2, v9')
    a.I('s_lshl_b32 s28, s27, 8')
    srd(a, 20, 4, 5, WS.TAB2_SZ, WS.TAB2); srd(a, 16, 4, 5, WS.G2_SZ, WS.G2)
    a.I('s_cmp_eq_u32 s26, 3'); a.I('s_cbranch_scc1 K0_P3')
    a.I('s_cmp_eq_u32 s26, 4'); a.I('s_cbranch_scc1 K0_P4')
    a.I('s_endpgm')
    a.label('K0_P3')
    a.I('buffer_store_dword v60, v9, s[20:23], s28 offen offset:32'); a.I('s_endpgm')
    a.label('K0_P4')
    a.I('v_add_f32 v21, 1.0, v60'); bf16_round_f32(a, 'v21', 'v21')
    a.I('buffer_store_dword v21, v9, s[20:23], s28 offen')
    a.I('s_lshl_b32 s27, s27, 7'); a.I('buffer_store_dword v21, v8, s[16:19], s27 offen'); a.I('s_endpgm')
    a.label('K0_LN')
    a.I(f's_sub_u32 s24, s2, {NW}'); a.I('s_lshl_b32 s24, s24, 5')
    a.I('v_lshrrev_b32 v1, 3, v0'); a.I('v_add_u32 v1, s24, v1')
    a.I('v_and_b32 v2, 7, v0')
    a.I('s_movk_i32 s25, 1152'); a.I('v_mul_lo_u32 v3, v1, s25'); a.I('v_lshl_add_u32 v3, v2, 4, v3')
    a.I('s_waitcnt lgkmcnt(0)')
    srd(a, 12, 6, 7, S*1152)
    toks = [a.vmem(f'buffer_load_dwordx4 v[{20+4*i}:{23+4*i}], v3, s[12:15], 0 offen offset:{i*128}') for i in range(9)]
    srd(a, 16, 4, 5, WS.STAT1_SZ, WS.STAT1); srd(a, 20, 4, 5, WS.XF_SZ, WS.XF)
    a.I('v_lshrrev_b32 v4, 4, v1'); a.I('v_mul_u32_u24 v4, 18, v4')
    a.I('v_lshrrev_b32 v5, 2, v2'); a.I('v_add_u32 v4, v4, v5'); a.I('v_lshlrev_b32 v4, 6, v4')
    a.I('v_and_b32 v5, 1, v2'); a.I('v_lshl_add_u32 v4, v5, 5, v4')
    a.I('v_and_b32 v5, 15, v1'); a.I('v_add_u32 v4, v4, v5'); a.I('v_lshlrev_b32 v4, 4, v4')
    a.I('v_bfe_u32 v5, v2, 1, 1'); a.I('v_lshl_add_u32 v4, v5, 3, v4')
    a.I('v_mov_b32 v6, 0'); a.I('v_mov_b32 v7, 0'); a.I('s_mov_b32 s26, 0')
    for i in range(9):
        a.wait(vm=toks[i])
        a.vmem(f'buffer_store_dwordx2 v[{20+4*i}:{21+4*i}], v4, s[20:23], s26 offen')
        a.vmem(f'buffer_store_dwordx2 v[{22+4*i}:{23+4*i}], v4, s[20:23], s26 offen offset:256')
        if i < 8: a.I('s_add_u32 s26, s26, 2048')
        for j in range(4):
            w = f'v{20+4*i+j}'
            a.I(f'v_lshlrev_b32 v8, 16, {w}'); a.I(f'v_and_b32 v9, 0xffff0000, {w}')
            a.I('v_add_f32 v6, v6, v8'); a.I('v_fmac_f32 v7, v8, v8'); a.I('v_add_f32 v6, v6, v9'); a.I('v_fmac_f32 v7, v9, v9')
    for dpp in ('quad_perm:[1,0,3,2]', 'quad_perm:[2,3,0,1]', 'row_half_mirror'):
        a.I(f'v_add_f32_dpp v6, v6, v6 {dpp} row_mask:0xf bank_mask:0xf')
        a.I(f'v_add_f32_dpp v7, v7, v7 {dpp} row_mask:0xf bank_mask:0xf')
    a.I(f'v_mul_f32 v6, {hexf(1.0/576)}, v6'); a.I(f'v_mul_f32 v7, {hexf(1.0/576)}, v7')
    a.I('v_fma_f32 v7, -v6, v6, v7'); a.I('v_max_f32 v7, 0, v7'); a.I(f'v_add_f32 v7, {hexf(1e-5)}, v7'); a.I('v_rsq_f32 v7, v7')
    a.I('v_lshlrev_b32 v8, 3, v1'); a.I('v_cmp_eq_u32 vcc, 0, v2'); a.I('s_and_saveexec_b64 s[28:29], vcc'); a.I('s_cbranch_execz K0_END')
    a.I('buffer_store_dwordx2 v[6:7], v8, s[16:19], 0 offen')
    a.I('s_endpgm')
    a.label('K0_W')
    a.I('s_and_b32 s35, s2, 3'); a.I('s_lshr_b32 s36, s2, 2')
    a.I('s_lshl_b32 s34, s36, 6'); a.I(f's_add_u32 s37, s34, {576*2}')
    a.I('s_waitcnt lgkmcnt(0)')
    srd(a, 12, 10, 11, 576*6912); srd(a, 16, 8, 9, 576*2)
    gemv32(a, 2, ['s34', 's37'], 20)
    a.I('s_mul_i32 s25, s35, 216'); a.I('v_add_u32 v140, s25, v0'); a.I('v_lshlrev_b32 v140, 1, v140'); a.I('v_min_u32 v140, 1726, v140')
    a.I('v_lshlrev_b32 v141, 1, v140')
    srd(a, 20, 30, 31, 576*3456)
    a.I(f's_mul_i32 s27, s36, {32*3456}')
    for g4 in range(4):
        for i in range(8):
            a.I(f's_add_u32 s38, s27, {PERM_ROWS(g4, i)*3456}')
            a.vmem(f'buffer_load_dword v{100+g4*8+i}, v141, s[20:23], s38 offen')
    wtok = a.vm
    a.I('v_mov_b32 v145, v1'); a.I('v_mov_b32 v146, v2')
    a.I('v_mov_b32 v1, v140')
    qkv_dest(a)
    a.I(f'v_mov_b32 v144, 1.0'); a.I(f'v_mov_b32 v19, {hexf(QSCALE)}'); a.I('v_cmp_eq_u32 vcc, 0, v3'); a.I('v_cndmask_b32 v144, v144, v19, vcc')
    a.I('v_mov_b32 v142, v2')
    a.I('v_lshrrev_b32 v19, 10, v2'); vdiv(a, 'v5', 'v19', 162, 1943)
    a.I('v_mul_u32_u24 v6, 162, v5'); a.I('v_sub_u32 v6, v19, v6')
    a.I('v_mul_u32_u24 v5, 144, v5'); a.I('v_lshl_add_u32 v5, v6, 4, v5'); a.I('v_bfe_u32 v6, v2, 4, 4'); a.I('v_add_u32 v5, v5, v6')
    a.I('v_lshlrev_b32 v143, 2, v5')
    a.I('v_mov_b32 v1, v145'); a.I('v_mov_b32 v2, v146')
    a.I('s_waitcnt vmcnt(50)'); gemv32_silu(a)
    a.I(f's_waitcnt vmcnt(32)')
    gemv32_finish(a, 2, 20, 0, 160)
    a.I('v_add_f32 v162, 1.0, v161'); bf16_round_f32(a, 'v162', 'v162')
    a.I('v_cmp_gt_u32 vcc, 32, v0'); a.I('s_and_saveexec_b64 s[28:29], vcc')
    a.I('v_lshlrev_b32 v8, 2, v0')
    a.I('ds_write_b32 v8, v162 offset:20480'); a.I('ds_write_b32 v8, v160 offset:20608')
    a.I('s_mov_b64 exec, s[28:29]')
    a.I('s_waitcnt lgkmcnt(0)'); a.I('s_barrier')
    a.I('v_mov_b32 v2, v142'); a.I('v_mov_b32 v13, v144'); a.I('v_mov_b32 v15, v143')
    srd(a, 16, 4, 5, WS.WQKVF_SZ, WS.WQKVF); srd(a, 24, 4, 5, WS.UTP_SZ, WS.UTP)
    a.I(f's_mul_i32 s28, s36, {9*1024}')
    a.I('s_movk_i32 s61, 216'); a.I('v_cmp_gt_u32 vcc, s61, v0'); a.I('s_and_saveexec_b64 s[62:63], vcc'); a.I('s_cbranch_execz K0_END')
    for z in range(4): a.I(f'v_mov_b32 v{150+z}, 0')
    a.I('v_mov_b32 v17, 0')
    a.wait(vm=wtok)
    for g4 in range(4):
        a.I(f'ds_read_b128 v[20:23], v17 offset:{20480+g4*16}'); a.I(f'ds_read_b128 v[24:27], v17 offset:{20480+64+g4*16}')
        a.I(f'ds_read_b128 v[28:31], v17 offset:{20608+g4*16}'); a.I(f'ds_read_b128 v[32:35], v17 offset:{20608+64+g4*16}')
        a.I('s_waitcnt lgkmcnt(0)')
        for i in range(8): a.I(f'v_mul_f32 v{20+i}, v{20+i}, v13')
        b = 100 + g4*8
        for i in range(8):
            a.I(f'v_lshlrev_b32 v{40+i}, 16, v{b+i}'); a.I(f'v_and_b32 v{48+i}, 0xffff0000, v{b+i}')
            a.I(f'v_fmac_f32 v152, v{28+i}, v{40+i}'); a.I(f'v_fmac_f32 v153, v{28+i}, v{48+i}')
            a.I(f'v_mul_f32 v{40+i}, v{40+i}, v{20+i}'); a.I(f'v_mul_f32 v{48+i}, v{48+i}, v{20+i}')
        d = 60 + (g4 % 2)*8
        for q in range(4):
            a.I(f'v_cvt_pk_bf16_f32 v{d+q}, v{40+2*q}, v{41+2*q}'); a.I(f'v_cvt_pk_bf16_f32 v{d+4+q}, v{48+2*q}, v{49+2*q}')
        a.vmem(f'buffer_store_dwordx4 {r4(d)}, v2, s[16:19], s28 offen offset:{g4*256}')
        a.vmem(f'buffer_store_dwordx4 {r4(d+4)}, v2, s[16:19], s28 offen offset:{g4*256+16}')
        for q in range(4):
            a.I(f'v_lshlrev_b32 v18, 16, v{d+q}'); a.I('v_add_f32 v150, v150, v18'); a.I(f'v_and_b32 v18, 0xffff0000, v{d+q}'); a.I('v_add_f32 v150, v150, v18')
            a.I(f'v_lshlrev_b32 v18, 16, v{d+4+q}'); a.I('v_add_f32 v151, v151, v18'); a.I(f'v_and_b32 v18, 0xffff0000, v{d+4+q}'); a.I('v_add_f32 v151, v151, v18')
    a.I('v_mul_f32 v152, v152, v13'); a.I('v_mul_f32 v153, v153, v13')
    a.I(f's_mul_i32 s29, s36, {1728*4}')
    a.vmem('buffer_store_dwordx2 v[150:151], v15, s[24:27], s29 offen')
    a.I(f's_add_u32 s29, s29, {18*1728*4}')
    a.vmem('buffer_store_dwordx2 v[152:153], v15, s[24:27], s29 offen')
    a.I('s_endpgm')
    a.label('K0_PREP')
    a.I(f's_load_dwordx2 s[4:5], s[0:1], {A_WS}')
    a.I(f's_load_dwordx2 s[6:7], s[0:1], {A_WO}')
    a.I(f's_load_dwordx2 s[8:9], s[0:1], {A_W1}')
    a.I(f's_load_dwordx2 s[10:11], s[0:1], {A_W2}')
    a.I(f's_sub_u32 s3, s2, {NG+NL+NW}')
    prep_body(a, 's3', 'K0P')
    a.label('K0_END')
    a.I('s_endpgm')
    return kernel_text('k0_kernel', a, 188), (NG+NL+NW+NPREP, 256, 24576)

def prep():
    a = Asm()
    NU = 36 + 162 + 288
    a.I(f's_cmp_ge_u32 s2, {NU}'); a.I('s_cbranch_scc1 PREP_END')
    a.I(f's_load_dwordx2 s[4:5], s[0:1], {A_WS}')
    a.I(f's_load_dwordx2 s[6:7], s[0:1], {A_WO}')
    a.I(f's_load_dwordx2 s[8:9], s[0:1], {A_W1}')
    a.I(f's_load_dwordx2 s[10:11], s[0:1], {A_W2}')
    prep_body(a, 's2', 'PREP')
    a.label('PREP_END')
    a.I('s_endpgm')
    return kernel_text('prep_kernel', a, 96), (NU, 256, 0)

def prep_body(a, su, L):
    a.I(f's_cmp_ge_u32 {su}, 198'); a.I(f's_cbranch_scc1 {L}_W2')
    a.I(f's_cmp_ge_u32 {su}, 36'); a.I(f's_cbranch_scc1 {L}_W1')
    a.I(f's_lshr_b32 s26, {su}, 1'); a.I(f's_and_b32 s25, {su}, 1')
    a.I('s_mul_i32 s25, s25, 144'); a.I('v_add_u32 v1, s25, v0'); a.I('v_lshlrev_b32 v1, 1, v1'); a.I('v_min_u32 v1, 574, v1')
    a.I('v_lshrrev_b32 v3, 4, v1')
    vdiv(a, 'v4', 'v3', 9, 35)
    a.I('v_mul_u32_u24 v5, 9, v4'); a.I('v_sub_u32 v5, v3, v5')
    a.I('v_mul_u32_u24 v4, 162, v4'); a.I('v_add_u32 v4, v4, v5'); a.I('v_lshlrev_b32 v2, 10, v4')
    a.I('v_and_b32 v5, 15, v1'); a.I('v_lshl_add_u32 v2, v5, 4, v2')
    a.I('v_lshlrev_b32 v13, 1, v1')
    a.I('s_waitcnt lgkmcnt(0)')
    srd(a, 12, 6, 7, 576*1152); srd(a, 16, 4, 5, WS.WOF_SZ, WS.WOF)
    a.I(f's_mul_i32 s28, s26, {9*1024}')
    a.I('s_cmp_ge_u32 s26, 16'); a.I(f's_cbranch_scc1 {L}_WO2')
    a.I(f's_mul_i32 s27, s26, {36*1152}')
    relayout_unit(a, 144, 12, 16, 1152, lambda g4, i: 18*(g4 >> 1) + 4*(g4 & 1) + 8*(i >> 2) + (i & 3), 'v13', 'v2', 's27', 's28', f'{L}_D1')
    a.I('s_endpgm')
    a.label(f'{L}_WO2')
    a.I('s_sub_u32 s27, s26, 16'); a.I(f's_mul_i32 s27, s27, {288*1152}')
    relayout_unit(a, 144, 12, 16, 1152, lambda g4, i: 72*g4 + 18*(i >> 1) + 16 + (i & 1), 'v13', 'v2', 's27', 's28', f'{L}_D2')
    a.I('s_endpgm')
    a.label(f'{L}_W1')
    a.I(f's_sub_u32 s24, {su}, 36')
    sdiv(a, 's26', 's24', 9, 161); a.I('s_mul_i32 s25, s26, 9'); a.I('s_sub_u32 s25, s24, s25')
    a.I('s_lshl_b32 s25, s25, 8'); a.I('v_add_u32 v1, s25, v0'); a.I('v_lshlrev_b32 v1, 1, v1')
    a.I('v_lshrrev_b32 v3, 4, v1')
    vdiv(a, 'v4', 'v3', 3, 287)
    a.I('v_mul_u32_u24 v5, 3, v4'); a.I('v_sub_u32 v5, v3, v5')
    a.I('v_mul_u32_u24 v4, 54, v4'); a.I('v_add_u32 v4, v4, v5'); a.I('v_lshlrev_b32 v2, 10, v4')
    a.I('v_and_b32 v5, 15, v1'); a.I('v_lshl_add_u32 v2, v5, 4, v2')
    a.I('v_lshlrev_b32 v13, 1, v1')
    a.I('s_waitcnt lgkmcnt(0)')
    srd(a, 12, 8, 9, 576*9216); srd(a, 16, 4, 5, WS.W1S_SZ, WS.W1S)
    a.I(f's_mul_i32 s27, s26, {32*9216}'); a.I(f's_mul_i32 s28, s26, {3*1024}')
    relayout_unit(a, 256, 12, 16, 9216, PERM_ROWS, 'v13', 'v2', 's27', 's28', f'{L}_D3')
    a.I('s_endpgm')
    a.label(f'{L}_W2')
    a.I(f's_sub_u32 s24, {su}, 198')
    a.I('s_lshr_b32 s26, s24, 1'); a.I('s_and_b32 s25, s24, 1')
    a.I('s_mul_i32 s25, s25, 144'); a.I('v_add_u32 v1, s25, v0'); a.I('v_lshlrev_b32 v1, 1, v1'); a.I('v_min_u32 v1, 574, v1')
    a.I('v_lshrrev_b32 v3, 4, v1')
    vdiv(a, 'v4', 'v3', 9, 35)
    a.I('v_mul_u32_u24 v5, 9, v4'); a.I('v_sub_u32 v5, v3, v5')
    a.I('v_mul_u32_u24 v4, 162, v4'); a.I('v_add_u32 v4, v4, v5'); a.I('v_lshlrev_b32 v2, 10, v4')
    a.I('v_and_b32 v5, 15, v1'); a.I('v_lshl_add_u32 v2, v5, 4, v2')
    a.I('v_lshlrev_b32 v13, 1, v1')
    sdiv(a, 's29', 's26', 18, 143); a.I('s_mul_i32 s25, s29, 18'); a.I('s_sub_u32 s25, s26, s25')
    a.I('s_waitcnt lgkmcnt(0)')
    srd(a, 12, 10, 11, F*1152); srd(a, 16, 4, 5, WS.W2S_SZ, WS.W2S)
    a.I(f's_mul_i32 s27, s26, {32*1152}')
    a.I(f's_mul_i32 s28, s29, {4*162*1024}'); a.I(f's_mul_i32 s25, s25, {9*1024}'); a.I('s_add_u32 s28, s28, s25')
    relayout_unit(a, 144, 12, 16, 1152, PERM_ROWS, 'v13', 'v2', 's27', 's28', f'{L}_D4')
    a.I('s_endpgm')
```

```python
import sys, os
sys.path.insert(0, os.path.dirname(__file__))
from common import *
import k0

NAME = 'adaLN_cond__mha_block__dense_activation_silu__prompt'
HEADER = open('cdna_kernels/' + NAME + '.s.ref').read().split('; Override')[0]

def assemble(kernels, path):
    out = [HEADER.rstrip('\n')]
    for (td, cfg, name) in kernels:
        out.append(f'; @launch kernel={name} grid=({cfg[0]},1,1) block=({cfg[1]},1,1) lds={cfg[2]}')
    out.append('.amdgcn_target "amdgcn-amd-amdhsa--gfx950"')
    seen = set()
    descs = []
    for (td, cfg, name) in kernels:
        if name in seen: continue
        seen.add(name)
        out.append(td[0]); descs.append(td[1])
    out.append('.section .rodata,"a"')
    for d in descs:
        out.append('.p2align 6'); out.append(d)
    open(path, 'w').write('\n'.join(out))

def all_kernels(upto=None):
    import gemm, attn
    ks = []
    def add(r, name): ks.append((r[0], r[1], name))
    add(k0.k0(), 'k0_kernel')
    add(gemm.k1(), 'k1_kernel')
    add(attn.k2(), 'k2_kernel')
    add(gemm.k3(), 'k3_kernel')
    add(gemm.k4(), 'k4_kernel')
    add(gemm.k5(), 'k5_kernel')
    return ks[:upto] if upto else ks

if __name__ == '__main__':
    path = sys.argv[1] if len(sys.argv) > 1 else 'cdna_kernels/' + NAME + '.s'
    assemble(all_kernels(), path)
    print('wrote', path, os.path.getsize(path), 'WS total', WS_TOTAL)
```

```python
from common import *

S0, S1, O, CI, P, QLO, QHI = 16, 32, 48, 64, 80, 88, 92
KLO = (96, 100); KHI = (104, 108); VF = (112, 120)
IMG = 64*KV_TILE
SPARE = IMG
def r(b, n): return f'v[{b}:{b+n-1}]'
def mf(d, a_, b_, c): return f'v_mfma_f32_32x32x16_bf16 {r(d,16)}, {r(a_,4)}, {r(b_,4)}, {c}'

NFR1, NFR2, NFRO = 288*18, 36*144, 36*18
NFR = NFR1 + NFR2 + NFRO
def prep_issue(a, L):
    a.I('s_mov_b32 s60, -1')
    a.I(f's_cmp_ge_u32 s52, {NFR}'); a.I(f's_cbranch_scc1 {L}_E')
    a.I('v_lshrrev_b32 v9, 1, v1')
    a.I('v_and_b32 v10, 1, v1'); a.I('v_lshlrev_b32 v10, 4, v10')
    a.I(f's_cmp_ge_u32 s52, {NFR1+NFR2}'); a.I(f's_cbranch_scc1 {L}_O')
    a.I(f's_cmp_ge_u32 s52, {NFR1}'); a.I(f's_cbranch_scc1 {L}_2')
    sdiv(a, 's53', 's52', 288, NFR1-1); a.I('s_mul_i32 s54, s53, 288'); a.I('s_sub_u32 s54, s52, s54')
    sdiv(a, 's55', 's54', 3, 287); a.I('s_mul_i32 s61, s55, 3'); a.I('s_sub_u32 s61, s54, s61')
    a.I('s_mul_i32 s60, s55, 54'); a.I('s_mul_i32 s62, s53, 3'); a.I('s_add_u32 s60, s60, s62'); a.I('s_add_u32 s60, s60, s61'); a.I('s_lshl_b32 s60, s60, 10')
    srd(a, 56, 4, 5, WS.W1S_SZ, WS.W1S); srd(a, 64, 46, 47, 576*9216)
    a.I('v_mul_u32_u24 v9, 9216, v9'); a.I(f's_mul_i32 s61, s53, {32*9216}'); a.I('s_lshl_b32 s62, s54, 5'); a.I('s_add_u32 s61, s61, s62')
    a.I(f's_branch {L}_G')
    a.label(f'{L}_2')
    a.I(f's_sub_u32 s52, s52, {NFR1}')
    sdiv(a, 's53', 's52', 36, NFR2-1); a.I('s_mul_i32 s54, s53, 36'); a.I('s_sub_u32 s54, s52, s54')
    sdiv(a, 's55', 's54', 3, 35); a.I('s_mul_i32 s61, s55, 3'); a.I('s_sub_u32 s61, s54, s61')
    sdiv(a, 's62', 's53', 18, 143); a.I('s_mul_i32 s63, s62, 18'); a.I('s_sub_u32 s63, s53, s63')
    a.I('s_mul_i32 s60, s62, 12'); a.I('s_add_u32 s60, s60, s55'); a.I('s_mul_i32 s60, s60, 18'); a.I('s_add_u32 s60, s60, s63'); a.I('s_mul_i32 s60, s60, 3')
    a.I('s_add_u32 s60, s60, s61'); a.I('s_lshl_b32 s60, s60, 10')
    srd(a, 56, 4, 5, WS.W2S_SZ, WS.W2S); srd(a, 64, 48, 49, F*1152)
    a.I('v_mul_u32_u24 v9, 1152, v9'); a.I(f's_mul_i32 s61, s53, {32*1152}'); a.I('s_lshl_b32 s62, s54, 5'); a.I('s_add_u32 s61, s61, s62')
    a.I(f's_branch {L}_G')
    a.label(f'{L}_O')
    a.I(f's_sub_u32 s52, s52, {NFR1+NFR2}')
    sdiv(a, 's53', 's52', 36, NFRO-1); a.I('s_mul_i32 s54, s53, 36'); a.I('s_sub_u32 s54, s52, s54')
    sdiv(a, 's55', 's54', 9, 35); a.I('s_mul_i32 s61, s55, 9'); a.I('s_sub_u32 s61, s54, s61')
    a.I('s_mul_i32 s60, s55, 18'); a.I('s_add_u32 s60, s60, s53'); a.I('s_mul_i32 s60, s60, 9'); a.I('s_add_u32 s60, s60, s61'); a.I('s_lshl_b32 s60, s60, 10')
    srd(a, 56, 4, 5, WS.WOF_SZ, WS.WOF); srd(a, 64, 50, 51, 576*1152)
    a.I('v_bfe_u32 v11, v9, 2, 2')
    a.I('s_cmp_ge_u32 s53, 16'); a.I(f's_cbranch_scc1 {L}_O2')
    a.I('v_lshrrev_b32 v12, 1, v11'); a.I('v_mul_u32_u24 v12, 18, v12'); a.I('v_and_b32 v11, 1, v11'); a.I('v_lshl_add_u32 v12, v11, 2, v12')
    a.I('v_lshrrev_b32 v11, 4, v9'); a.I('v_lshl_add_u32 v12, v11, 3, v12'); a.I('v_and_b32 v11, 3, v9'); a.I('v_add_u32 v9, v12, v11')
    a.I('s_mul_i32 s61, s53, 36'); a.I(f's_branch {L}_O3')
    a.label(f'{L}_O2')
    a.I('v_mul_u32_u24 v12, 72, v11'); a.I('v_lshrrev_b32 v11, 4, v9'); a.I('v_lshlrev_b32 v11, 1, v11'); a.I('v_bfe_u32 v13, v9, 1, 1'); a.I('v_add_u32 v11, v11, v13')
    a.I('v_mul_u32_u24 v11, 18, v11'); a.I('v_add_u32 v12, v12, v11'); a.I('v_and_b32 v11, 1, v9'); a.I('v_add_u32 v12, v12, v11'); a.I('v_add_u32 v9, 16, v12')
    a.I('s_sub_u32 s61, s53, 16'); a.I('s_mul_i32 s61, s61, 288')
    a.label(f'{L}_O3')
    a.I('v_mul_u32_u24 v9, 1152, v9'); a.I('s_mul_i32 s61, s61, 1152'); a.I('s_lshl_b32 s62, s54, 5'); a.I('s_add_u32 s61, s61, s62')
    a.label(f'{L}_G')
    a.I('v_add_u32 v9, v9, v10')
    a.I('s_lshl_b32 s62, s20, 10'); a.I(f's_add_u32 m0, s62, {SPARE}')
    a.I('buffer_load_dwordx4 v9, s[64:67], s61 offen lds')
    a.label(f'{L}_E')

def prep_consume(a, L):
    a.I('s_cmp_eq_u32 s60, -1'); a.I(f's_cbranch_scc1 {L}_E')
    a.I('s_waitcnt vmcnt(0)')
    a.I('v_lshrrev_b32 v9, 2, v1'); a.I('v_lshlrev_b32 v9, 5, v9'); a.I('v_and_b32 v10, 3, v1'); a.I('v_lshl_add_u32 v9, v10, 3, v9')
    a.I('s_lshl_b32 s62, s20, 10'); a.I(f's_add_u32 s62, s62, {SPARE}'); a.I('v_add_u32 v9, s62, v9')
    a.I('ds_read_b64_tr_b16 v[12:13], v9'); a.I('ds_read_b64_tr_b16 v[14:15], v9 offset:512')
    a.I('s_waitcnt lgkmcnt(0)')
    a.I('buffer_store_dwordx4 v[12:15], v5, s[56:59], s60 offen')
    a.label(f'{L}_E')

def k2():
    a = Asm()
    a.I('s_cmp_ge_u32 s2, 256'); a.I('s_cbranch_scc1 K2_END')
    a.I(f's_load_dwordx2 s[4:5], s[0:1], {A_WS}')
    a.I(f's_load_dwordx2 s[46:47], s[0:1], {A_W1}')
    a.I(f's_load_dwordx2 s[48:49], s[0:1], {A_W2}')
    a.I(f's_load_dwordx2 s[50:51], s[0:1], {A_WO}')
    a.I('v_lshrrev_b32 v1, 6, v0'); a.I('v_readfirstlane_b32 s20, v1')
    a.I('v_and_b32 v1, 63, v0')
    a.I('s_and_b32 s21, s2, 7'); a.I('s_lshl_b32 s21, s21, 2'); a.I('s_bfe_u32 s22, s2, 0x20003'); a.I('s_add_u32 s21, s21, s22')
    a.I('s_lshr_b32 s22, s2, 5')
    a.I('s_and_b32 s23, s20, 7')
    a.I('s_lshr_b32 s24, s20, 3')
    a.I('s_lshl_b32 s25, s22, 3'); a.I('s_add_u32 s25, s25, s23')
    a.I('s_mov_b32 s40, 0')
    a.I('v_lshlrev_b32 v5, 4, v1')
    a.I('v_and_b32 v6, 31, v1'); a.I('v_lshlrev_b32 v7, 2, v6'); a.I('v_lshlrev_b32 v8, 2, v1')
    a.I('s_mul_i32 s44, s24, 72'); a.I('s_add_u32 s44, s44, s23'); a.I('s_lshl_b32 s44, s44, 10')
    a.I('s_waitcnt lgkmcnt(0)')
    a.I(f's_mul_i32 s26, s21, {IMG}')
    a.I('s_add_u32 s8, s4, s26'); a.I('s_addc_u32 s9, s5, 0')
    a.I(f's_add_u32 s8, s8, {WS.KVIMG}'); a.I('s_addc_u32 s9, s9, 0')
    a.I(f's_mov_b32 s10, {IMG}'); a.I('s_mov_b32 s11, 0x00020000')
    def dma(j):
        a.I(f's_add_u32 s26, s44, {j*8192}')
        a.I('s_mov_b32 m0, s26')
        a.vmem('buffer_load_dwordx4 v5, s[8:11], s26 offen lds')
    a.label('K2_RESTART')
    dma(0); dma(1)
    a.I('s_cmp_lg_u32 s40, 0'); a.I('s_cbranch_scc1 K2_SKIPQ0')
    srd(a, 12, 4, 5, WS.QIMG_SZ, WS.QIMG)
    srd(a, 16, 4, 5, WS.KMAX_SZ, WS.KMAX)
    a.I('s_lshl_b32 s26, s21, 6'); a.I('s_add_u32 s26, s26, s25'); a.I(f's_mul_i32 s26, s26, {QT_BYTES}')
    a.vmem(f'buffer_load_dwordx4 {r(QLO,4)}, v5, s[12:15], s26 offen')
    a.vmem(f'buffer_load_dword v{QHI}, v7, s[12:15], s26 offen offset:1024')
    a.I('s_lshl_b32 s26, s21, 8')
    a.vmem('buffer_load_dword v9, v8, s[16:19], s26 offen')
    a.label('K2_SKIPQ0')
    stamp(a, 0)
    a.I(f's_mul_i32 s27, s24, {32*KV_TILE}')
    a.I('v_add_u32 v2, s27, v5'); a.I('v_add_u32 v3, s27, v7')
    a.I('v_min_u32 v4, 17, v6'); a.I('v_lshrrev_b32 v10, 5, v1'); a.I('v_mul_u32_u24 v11, 18, v10')
    a.I('v_add_u32 v4, v4, v11'); a.I('v_lshlrev_b32 v4, 4, v4'); a.I('v_add_u32 v4, s27, v4')
    for j in range(16): a.I(f'v_mov_b32 v{O+j}, 0')
    for j in range(16): a.I(f'v_mov_b32 v{VF[0]+j}, 0x3f803f80')
    a.I('s_mov_b32 s42, 0x3ffff'); a.I('s_mov_b32 s43, 0x3ffff')
    a.I('s_cmp_lg_u32 s40, 0'); a.I('s_cbranch_scc1 K2_SKIPQ')
    for j in range(1, 4): a.I(f'v_mov_b32 v{QHI+j}, 0')
    for b in KHI:
        for j in range(1, 4): a.I(f'v_mov_b32 v{b+j}, 0')
    a.I('s_waitcnt vmcnt(0)')
    a.I('v_cmp_eq_u32 vcc, 0, v10')
    a.I(f'v_cndmask_b32 v{QHI}, 0, v{QHI}, vcc')
    a.I('v_mov_b32 v12, 0')
    for q in [QLO, QLO+1, QLO+2, QLO+3, QHI]:
        a.I(f'v_lshlrev_b32 v13, 16, v{q}'); a.I('v_fmac_f32 v12, v13, v13')
        a.I(f'v_and_b32 v13, 0xffff0000, v{q}'); a.I('v_fmac_f32 v12, v13, v13')
    a.I('v_mov_b32 v13, v12'); a.I('v_permlane32_swap_b32 v12, v13'); a.I('v_add_f32 v12, v12, v13')
    for dpp in ('quad_perm:[1,0,3,2]', 'quad_perm:[2,3,0,1]', 'row_half_mirror', 'row_mirror'):
        a.I(f'v_max_f32_dpp v9, v9, v9 {dpp} row_mask:0xf bank_mask:0xf')
    a.I('v_mov_b32 v13, v9'); a.I('v_permlane16_swap_b32 v9, v13'); a.I('v_max_f32 v9, v9, v13')
    a.I('v_mov_b32 v13, v9'); a.I('v_permlane32_swap_b32 v9, v13'); a.I('v_max_f32 v9, v9, v13')
    a.I('v_mul_f32 v12, v12, v9'); a.I('v_sqrt_f32 v12, v12')
    a.I(f'v_mul_f32 v12, {hexf(-1.015625)}, v12')
    for j in range(16): a.I(f'v_mov_b32 v{CI+j}, v12')
    a.label('K2_SKIPQ')
    stamp(a, 1)
    a.I('s_cmp_eq_u32 s40, 0'); a.I('s_cbranch_scc1 K2_MAIN')
    for j in range(2, 9): dma(j)
    a.I('s_waitcnt vmcnt(0) lgkmcnt(0)'); a.I('s_barrier')
    a.I('v_mov_b32 v12, 0xff800000')
    a.I('v_mov_b32 v14, v2'); a.I('v_mov_b32 v15, v3')
    a.I('s_mov_b32 s28, 32')
    a.label('K2_MAXLOOP')
    a.I(f'ds_read_b128 {r(KLO[0],4)}, v14'); a.I(f'ds_read_b32 v{KHI[0]}, v15 offset:1024')
    a.I('s_waitcnt lgkmcnt(0)')
    a.I(mf(S0, KLO[0], QLO, '0')); a.I(mf(S0, KHI[0], QHI, r(S0,16)))
    for j in range(0, 16, 2): a.I(f'v_max3_f32 v12, v12, v{S0+j}, v{S0+j+1}')
    a.I(f'v_add_u32 v14, {KV_TILE}, v14'); a.I(f'v_add_u32 v15, {KV_TILE}, v15')
    a.I('s_sub_u32 s28, s28, 1'); a.I('s_cmp_lg_u32 s28, 0'); a.I('s_cbranch_scc1 K2_MAXLOOP')
    a.I('v_mov_b32 v13, v12'); a.I('v_permlane32_swap_b32 v12, v13'); a.I('v_max_f32 v12, v12, v13')
    a.I('s_lshl_b32 s28, s20, 8'); a.I(f's_add_u32 s28, s28, {SPARE}'); a.I('v_add_u32 v14, s28, v8')
    a.I('ds_write_b32 v14, v12')
    a.I('s_waitcnt lgkmcnt(0)'); a.I('s_barrier')
    a.I('s_xor_b32 s28, s20, 8'); a.I('s_lshl_b32 s28, s28, 8'); a.I(f's_add_u32 s28, s28, {SPARE}'); a.I('v_add_u32 v14, s28, v8')
    a.I('ds_read_b32 v13, v14'); a.I('s_waitcnt lgkmcnt(0)')
    a.I('v_max_f32 v12, v12, v13'); a.I('v_sub_f32 v12, 0, v12')
    for j in range(16): a.I(f'v_mov_b32 v{CI+j}, v12')
    a.label('K2_MAIN')
    a.I('s_waitcnt vmcnt(0) lgkmcnt(0)'); a.I('s_barrier')
    stamp(a, 2)
    def rdK(t, buf):
        a.I(f'ds_read_b128 {r(KLO[buf],4)}, v2 offset:{t*KV_TILE}')
        a.I(f'ds_read_b32 v{KHI[buf]}, v3 offset:{t*KV_TILE+1024}')
    def rdV(t, buf):
        a.I('s_mov_b64 exec, s[42:43]')
        a.I(f'ds_read_b128 {r(VF[buf],4)}, v4 offset:{t*KV_TILE+VT_OFF}')
        a.I(f'ds_read_b128 {r(VF[buf]+4,4)}, v4 offset:{t*KV_TILE+VT_OFF+576}')
        a.I('s_mov_b64 exec, -1')
    rdK(0, 0); rdK(1, 1); rdV(0, 0)
    for j in range(4): a.I(f'v_mov_b32 v{P+4+j}, 0')
    a.I('s_waitcnt lgkmcnt(0)')
    a.I(mf(S0, KLO[0], QLO, r(CI,16))); a.I(mf(S0, KHI[0], QHI, r(S0,16)))
    U = 8
    def tile(t, extra=None):
        cur = (S0, S1)[t & 1]; nxt = (S0, S1)[(t+1) & 1]
        kb = (t+1) & 1
        a.I('s_waitcnt lgkmcnt(0)')
        a.I(mf(nxt, KLO[kb], QLO, r(CI,16)))
        a.I(mf(O, VF[(t+1) & 1]+4, P+4, r(O,16)))
        for j in range(8): a.I(f'v_exp_f32 v{cur+j}, v{cur+j}')
        a.I(mf(nxt, KHI[kb], QHI, r(nxt,16)))
        rdK(t+2, t & 1); rdV(t+1, (t+1) & 1)
        if extra: extra()
        for j in range(4): a.I(f'v_cvt_pk_bf16_f32 v{P+j}, v{cur+2*j}, v{cur+2*j+1}')
        for j in range(8): a.I(f'v_exp_f32 v{cur+8+j}, v{cur+8+j}')
        a.I(mf(O, VF[t & 1], P, r(O,16)))
        for j in range(4): a.I(f'v_cvt_pk_bf16_f32 v{P+4+j}, v{cur+8+2*j}, v{cur+8+2*j+1}')
    PF = 81
    a.I('s_setprio 3')
    dl = [[2, 3], [4, 5], [6, 7], [8]]
    for t in range(U):
        if t == 5:
            a.I('s_waitcnt vmcnt(0)'); a.I('s_barrier')
        if t == 6:
            a.I('s_mul_i32 s52, s2, 48'); a.I('s_add_u32 s52, s52, s20'); a.I('s_mov_b32 s68, s52')
            prep_issue(a, 'K2_PI0')
        tile(t, (lambda t=t: [dma(j) for j in dl[t]]) if t < 4 else None)
    for v in (2, 3, 4): a.I(f'v_add_u32 v{v}, {U*KV_TILE}, v{v}')
    a.I('s_mov_b32 s28, 3')
    a.label('K2_LOOP')
    a.I('s_cmp_eq_u32 s28, 3'); a.I('s_cbranch_scc1 K2_P2')
    a.I('s_cmp_eq_u32 s28, 2'); a.I('s_cbranch_scc1 K2_P1')
    a.I('s_setprio 0'); a.I('s_branch K2_PD')
    a.label('K2_P1'); a.I('s_setprio 1'); a.I('s_branch K2_PD')
    a.label('K2_P2'); a.I('s_setprio 2')
    a.label('K2_PD')
    prep_consume(a, 'K2_PC')
    a.I('s_add_u32 s68, s68, 16'); a.I('s_mov_b32 s52, s68'); a.I('s_mov_b32 s60, -1')
    a.I('s_cmp_eq_u32 s28, 1'); a.I('s_cbranch_scc1 K2_PI1_E')
    prep_issue(a, 'K2_PI1')
    for t in range(U): tile(t)
    for v in (2, 3, 4): a.I(f'v_add_u32 v{v}, {U*KV_TILE}, v{v}')
    a.I('s_sub_u32 s28, s28, 1'); a.I('s_cmp_lg_u32 s28, 0'); a.I('s_cbranch_scc1 K2_LOOP')
    a.I(mf(O, VF[1]+4, P+4, r(O,16)))
    stamp(a, 3)
    a.I('v_mov_b32 v12, 0'); a.I(f'v_mov_b32 v13, {SPARE}')
    a.I('s_cmp_lg_u32 s20, 0'); a.I('s_cbranch_scc1 K2_NZ'); a.I('ds_write_b32 v13, v12'); a.label('K2_NZ')
    a.I('s_waitcnt lgkmcnt(0)')
    a.I('s_barrier')
    a.I('s_mul_i32 s28, s23, 3072'); a.I('v_add_u32 v14, s28, v5')
    a.I('s_cmp_eq_u32 s24, 0'); a.I('s_cbranch_scc1 K2_M0')
    for j in range(3): a.I(f'ds_write_b128 v14, {r(O+4*j,4)} offset:{j*1024}')
    a.I('s_waitcnt lgkmcnt(0)')
    a.I('s_barrier')
    a.I('s_branch K2_M1')
    a.label('K2_M0')
    a.I('s_barrier')
    for j in range(3): a.I(f'ds_read_b128 {r(S0+4*j,4)}, v14 offset:{j*1024}')
    a.I('s_waitcnt lgkmcnt(0)')
    for j in range(12): a.I(f'v_add_f32 v{O+j}, v{O+j}, v{S0+j}')
    a.I(f's_mov_b32 s29, {hexf(2.0**-90)}')
    a.I(f'v_cmp_nle_f32 vcc, s29, v{O+10}')
    a.I('s_cmp_eq_u64 vcc, 0'); a.I('s_cbranch_scc1 K2_M1')
    a.I('v_mov_b32 v12, 1'); a.I(f'v_mov_b32 v13, {SPARE}'); a.I('ds_write_b32 v13, v12')
    a.I('s_waitcnt lgkmcnt(0)')
    a.label('K2_M1')
    a.I('s_barrier')
    a.I(f'v_mov_b32 v13, {SPARE}'); a.I('ds_read_b32 v12, v13'); a.I('s_waitcnt lgkmcnt(0)')
    a.I('v_readfirstlane_b32 s29, v12')
    a.I('s_cmp_eq_u32 s29, 0'); a.I('s_cbranch_scc1 K2_FIN')
    a.I('s_cmp_lg_u32 s40, 0'); a.I('s_cbranch_scc1 K2_FIN')
    a.I('s_mov_b32 s40, 1')
    a.I('s_barrier')
    a.I('s_branch K2_RESTART')
    a.label('K2_FIN')
    stamp(a, 4)
    a.I('s_cmp_lg_u32 s24, 0'); a.I('s_cbranch_scc1 K2_END')
    a.I(f'v_rcp_f32 v12, v{O+10}')
    for j in range(10): a.I(f'v_mul_f32 v{O+j}, v{O+j}, v12')
    for j in range(5): a.I(f'v_cvt_pk_bf16_f32 v{S0+j}, v{O+2*j}, v{O+2*j+1}')
    srd(a, 12, 4, 5, WS.OF_SZ, WS.OF)
    a.I('v_bfe_u32 v12, v1, 4, 1'); a.I('s_lshl_b32 s28, s25, 1'); a.I('v_add_u32 v12, s28, v12')
    a.I('v_mul_u32_u24 v12, 18, v12'); a.I('v_lshlrev_b32 v12, 10, v12')
    a.I('v_and_b32 v13, 15, v1'); a.I('v_lshl_add_u32 v12, v13, 4, v12')
    a.I('v_lshrrev_b32 v14, 5, v1'); a.I('v_lshl_add_u32 v14, v14, 8, v12')
    a.I('s_lshr_b32 s28, s21, 1'); a.I('s_lshl_b32 s28, s28, 10'); a.I('s_and_b32 s29, s21, 1'); a.I('s_lshl_b32 s29, s29, 9'); a.I('s_add_u32 s28, s28, s29')
    a.vmem(f'buffer_store_dwordx4 {r(S0,4)}, v14, s[12:15], s28 offen')
    a.I('s_lshr_b32 s28, s21, 4'); a.I('s_add_u32 s28, s28, 16'); a.I('s_lshl_b32 s28, s28, 10')
    a.I('s_bfe_u32 s29, s21, 0x20002'); a.I('s_lshl_b32 s29, s29, 8'); a.I('s_add_u32 s28, s28, s29')
    a.I('s_and_b32 s29, s21, 3'); a.I('s_lshl_b32 s29, s29, 2'); a.I('s_add_u32 s28, s28, s29')
    a.I('s_mov_b32 exec_hi, 0')
    a.vmem(f'buffer_store_dword v{S0+4}, v12, s[12:15], s28 offen')
    a.label('K2_END')
    a.I('s_endpgm')
    return kernel_text('k2_kernel', a, 128), (256, 1024, 163840)
```

```python
from common import *
import os

def wave_setup(a):
    a.I('v_lshrrev_b32 v1, 6, v0')
    a.I('v_readfirstlane_b32 s20, v1')
    a.I('v_and_b32 v1, 63, v0')
    a.I('v_lshlrev_b32 v2, 4, v1')

def apply_gs(a, raw, dst, T, G, Sx, emit=None):
    L = []
    for q in range(4):
        L.append(f'v_lshlrev_b32 v{T+2*q}, 16, {raw(q)}')
        L.append(f'v_and_b32 v{T+2*q+1}, 0xffff0000, {raw(q)}')
    for q in range(8):
        L.append(f'v_fma_f32 v{T+q}, v{T+q}, v{G+q}, v{Sx+q}')
    for q in range(4):
        L.append(f'v_cvt_pk_bf16_f32 {dst(q)}, v{T+2*q}, v{T+2*q+1}')
    return L

ACC = 16
WF, NWF = 88, 12
XB = 136
XR, XRING, XD = 16, 8, 7
GV, TT, XO, MT = 80, 112, 120, 136
NSLOT, STAGE = 5, 18432
XOFF1 = NSLOT*STAGE
GTOFF = XOFF1 + 6*8192
K1_LDS = GTOFF + 4608
def acc(nb, tb): return ACC + (nb*2 + tb)*4

def k1_consumer(a, swap):
    nks = 18
    ltok, xtok = {}, {}
    def wreg(z): return WF + (z % NWF)*4
    def wread(z):
        ks, nb = divmod(z, 9)
        st = ks // 2; slot = st % NSLOT
        base = 6 + slot // 3
        off = (slot % 3)*STAGE + ((ks & 1)*9 + nb)*1024
        ltok[z] = a.lds(f'ds_read_b128 {r4(wreg(z))}, v{base} offset:{off}')
    def xread(ks):
        for tb in range(2):
            xtok[ks] = a.lds(f'ds_read_b128 {r4(XB+(ks & 1)*8+tb*4)}, v{9+tb} offset:{(ks % 6)*8192}')
    a.I('s_barrier')
    stamp(a, 1)
    xread(0)
    for z in range(9): wread(z)
    nz = 9
    for ks in range(nks):
        if ks == 6: stamp(a, 4)
        if ks & 1 and ks + 1 < nks: a.I('s_barrier')
        if ks + 1 < nks: xread(ks + 1)
        xb = XB + (ks & 1)*8
        for nb in range(9):
            z = ks*9 + nb
            if nb == 0: a.wait(lg=max(ltok[z+2], xtok[ks]))
            elif nb % 3 == 0: a.wait(lg=ltok[z+2])
            wf = wreg(z)
            for tb in range(2):
                c = '0' if ks == 0 else r4(acc(nb, tb))
                if swap: a.I(f'v_mfma_f32_16x16x32_bf16 {r4(acc(nb,tb))}, {r4(xb+tb*4)}, {r4(wf)}, {c}')
                else:    a.I(f'v_mfma_f32_16x16x32_bf16 {r4(acc(nb,tb))}, {r4(wf)}, {r4(xb+tb*4)}, {c}')
            if nz < nks*9: wread(nz); nz += 1
    stamp(a, 2)
    a.I('s_barrier')
    stamp(a, 3)

def k1_loader(a):
    nst = 9
    wtok = {}
    def W(st):
        slot = st % NSLOT
        a.I(f's_add_u32 m0, s23, {slot*STAGE}'); a.I(f's_mov_b32 s24, {st*STAGE}')
        a.I('s_mov_b32 exec_hi, 0'); a.vmem('buffer_load_dwordx4 v3, s[8:11], s24 offen lds'); a.I('s_mov_b32 exec_hi, -1')
        for o in (512, 1536, 2560, 3584): a.vmem(f'buffer_load_dwordx4 v3, s[8:11], s24 offen offset:{o} lds')
        wtok[st] = a.vm
    W(0); W(1); W(2)
    a.I('s_barrier')
    a.wait(vm=wtok[0]); a.I('s_barrier')
    for s in range(1, nst):
        if s + 2 < nst: W(s+2)
        a.wait(vm=wtok[s]); a.I('s_barrier')
    a.I('s_barrier')
    a.I('s_endpgm')

def k1_producer(a):
    nks, nst = 18, 9
    xtok, gtok = {}, {}
    def xload_items(ks):
        sl = ks % XRING
        def f0():
            a.I(f's_mov_b32 s25, {ks*1024}'); a.vmem(f'buffer_load_dwordx4 {r4(XR+sl*8)}, v4, s[12:15], s25 offen')
        def f1():
            a.vmem(f'buffer_load_dwordx4 {r4(XR+sl*8+4)}, v5, s[12:15], s25 offen'); xtok[ks] = a.vm
        return [f0, f1]
    def gread(ks):
        for q in range(4): a.lds(f'ds_read_b128 {r4(GV+(ks & 1)*16+4*q)}, v8 offset:{ks*256+q*16}')
        gtok[ks] = a.lg
    def produce(ks):
        vm_items = xload_items(ks + XD) if ks + XD < nks else []
        sl = ks % XRING; G = GV + (ks & 1)*16
        a.wait(vm=xtok[ks], lg=gtok[ks])
        for tb in range(2):
            raw = XR+sl*8+tb*4; dst = XO+(ks & 1)*8+tb*4
            for q in range(4):
                a.I(f'v_lshlrev_b32 v{TT+2*q}, 16, v{raw+q}'); a.I(f'v_and_b32 v{TT+2*q+1}, 0xffff0000, v{raw+q}')
            for q in range(8): a.I(f'v_fma_f32 v{TT+q}, v{TT+q}, v{G+q}, v{G+8+q}')
            for q in range(4): a.I(f'v_cvt_pk_bf16_f32 v{dst+q}, v{TT+2*q}, v{TT+2*q+1}')
            a.lds(f'ds_write_b128 v9, {r4(dst)} offset:{(ks % 6)*8192 + tb*1024}')
            if vm_items: vm_items.pop(0)()
        if ks + 2 < nks: gread(ks + 2)
    srd(a, 16, 4, 5, WS.MODP_SZ, WS.MODP)
    a.I('v_lshlrev_b32 v11, 2, v10')
    for i in range(3):
        for z, idx in enumerate((0, 3456, 576, 3456+576)):
            a.I(f's_mov_b32 s26, {(idx+256*i)*4}'); a.vmem(f'buffer_load_dword v{MT+4*i+z}, v11, s[16:19], s26 offen')
    mtok = a.vm
    for ks in range(XD):
        for f in xload_items(ks): f()
    a.wait(vm=mtok)
    for i in range(3):
        b = MT + 4*i
        a.I(f'v_add_f32 v{b}, v{b}, v{b+1}'); bf16_round_f32(a, f'v{b}', f'v{b}')
        a.I(f'v_add_f32 v{b+2}, v{b+2}, v{b+3}'); bf16_round_f32(a, f'v{b+2}', f'v{b+2}')
        a.I(f'v_add_f32 v{b+2}, 1.0, v{b+2}'); bf16_round_f32(a, f'v{b+2}', f'v{b+2}')
        a.I(f'v_mul_f32 v{b}, s31, v{b}'); a.I(f'v_mul_f32 v{b+2}, s31, v{b+2}')
        a.I(f'v_add_u32 v12, {256*i}, v10')
        a.I('v_lshrrev_b32 v13, 5, v12'); a.I('v_lshlrev_b32 v13, 2, v13'); a.I('v_bfe_u32 v14, v12, 2, 2'); a.I('v_add_u32 v13, v13, v14')
        a.I('v_bfe_u32 v14, v12, 4, 1'); a.I('v_lshlrev_b32 v14, 2, v14'); a.I('v_and_b32 v15, 3, v12'); a.I('v_add_u32 v14, v14, v15')
        a.I('v_lshlrev_b32 v15, 6, v13'); a.I('v_lshl_add_u32 v15, v14, 2, v15'); a.I(f'v_add_u32 v15, {GTOFF}, v15')
        if i == 2:
            a.I('v_cmp_gt_u32 vcc, 64, v10'); a.I('s_and_saveexec_b64 s[36:37], vcc')
        a.lds(f'ds_write_b32 v15, v{b+2}'); a.lds(f'ds_write_b32 v15, v{b} offset:32')
        if i == 2: a.I('s_mov_b64 exec, s[36:37]')
    a.I('s_waitcnt lgkmcnt(0)'); a.I('s_barrier')
    gread(0); gread(1)
    for s in range(nst):
        produce(2*s); produce(2*s+1)
        a.wait(lg=a.lg - (4 if 2*s+3 < nks else 0)); a.I('s_barrier')
    a.I('s_barrier')
    a.I('s_endpgm')

def k1():
    import k0 as K0
    a = Asm()
    a.I(f's_cmp_ge_u32 s2, {192+K0.NPREP}'); a.I('s_cbranch_scc1 K1_END')
    a.I(f's_load_dwordx2 s[4:5], s[0:1], {A_WS}')
    a.I('s_cmp_ge_u32 s2, 192'); a.I('s_cbranch_scc1 K1_PREP')
    wave_setup(a)
    a.I('s_and_b32 s33, s20, 3')
    a.I('s_mul_i32 s23, s33, 4608'); a.I('v_add_u32 v3, s23, v2')
    a.I('v_mov_b32 v6, v2'); a.I(f'v_add_u32 v7, {3*STAGE}, v2')
    a.I('v_lshrrev_b32 v8, 4, v1'); a.I('v_lshlrev_b32 v8, 6, v8'); a.I(f'v_add_u32 v8, {GTOFF}, v8')
    a.I('s_lshl_b32 s26, s33, 11'); a.I(f's_add_u32 s26, s26, {XOFF1}'); a.I('v_add_u32 v9, s26, v2'); a.I('v_add_u32 v10, 1024, v9')
    a.I('s_and_b32 s26, s2, 7'); a.I('s_lshr_b32 s27, s2, 3')
    a.I('s_lshr_b32 s21, s26, 1'); a.I('s_lshl_b32 s21, s21, 2'); a.I('s_and_b32 s28, s27, 3'); a.I('s_add_u32 s21, s21, s28')
    a.I('s_and_b32 s22, s26, 1'); a.I('s_mul_i32 s22, s22, 6'); a.I('s_lshr_b32 s28, s27, 2'); a.I('s_add_u32 s22, s22, s28')
    a.I('s_lshl_b32 s26, s21, 3'); a.I('s_lshl_b32 s27, s33, 1'); a.I('s_add_u32 s29, s26, s27')
    a.I('s_lshl_b32 s34, s21, 2'); a.I('s_add_u32 s34, s34, s33')
    a.I('s_cmp_lt_u32 s20, 4'); a.I('s_cbranch_scc1 K1_CONS')
    a.I('s_waitcnt lgkmcnt(0)')
    a.I('s_cmp_lt_u32 s20, 8'); a.I('s_cbranch_scc1 K1_PROD')
    a.I(f's_mul_i32 s26, s22, {18*9*1024}')
    a.I('s_add_u32 s8, s4, s26'); a.I('s_addc_u32 s9, s5, 0')
    a.I(f's_add_u32 s8, s8, {WS.WQKVF}'); a.I('s_addc_u32 s9, s9, 0')
    a.I(f's_mov_b32 s10, {18*9*1024}'); a.I('s_mov_b32 s11, 0x00020000')
    k1_loader(a)
    a.label('K1_PROD')
    srd(a, 12, 4, 5, WS.NF_SZ, WS.NF)
    a.I(f's_mul_i32 s27, s29, {KS*1024}'); a.I('v_add_u32 v4, s27, v2'); a.I(f'v_add_u32 v5, {KS*1024}, v4')
    a.I('s_mov_b32 s31, 1.0'); a.I('s_cmp_lt_u32 s22, 4'); a.I(f's_cselect_b32 s31, {hexf(QSCALE)}, s31')
    a.I('v_subrev_u32 v10, 256, v0')
    k1_producer(a)
    a.label('K1_CONS')
    a.I('s_waitcnt lgkmcnt(0)')
    a.I('s_barrier')
    a.I('s_cmp_ge_u32 s22, 8'); a.I('s_cbranch_scc1 K1_V')
    k1_consumer(a, False)
    a.I('v_and_b32 v10, 15, v1'); a.I('v_lshrrev_b32 v13, 4, v1')
    a.I('s_mov_b32 s26, s34')
    a.I('s_and_b32 s30, s22, 3'); a.I('s_lshl_b32 s30, s30, 3')
    ST = 88
    def qk_store(img_off, img_sz, tilebytes, hi_off):
        srd(a, 16, 4, 5, img_sz, img_off)
        a.I('v_lshrrev_b32 v14, 1, v13'); a.I('v_add_u32 v14, s30, v14'); a.I('v_lshlrev_b32 v14, 6, v14'); a.I('v_add_u32 v14, s26, v14')
        a.I(f's_movk_i32 s31, {tilebytes}'); a.I('v_mul_lo_u32 v14, v14, s31')
        a.I('v_and_b32 v15, 1, v13'); a.I('v_lshl_add_u32 v14, v15, 9, v14'); a.I('v_lshl_add_u32 v14, v10, 4, v14')
        for tb in range(2):
            for p in range(4):
                d = ST + (tb*4+p)*4
                b0, b1 = acc(2*p, tb), acc(2*p+1, tb)
                a.I(f'v_cvt_pk_bf16_f32 v{d}, v{b0}, v{b0+1}'); a.I(f'v_cvt_pk_bf16_f32 v{d+1}, v{b0+2}, v{b0+3}')
                a.I(f'v_cvt_pk_bf16_f32 v{d+2}, v{b1}, v{b1+1}'); a.I(f'v_cvt_pk_bf16_f32 v{d+3}, v{b1+2}, v{b1+3}')
                a.I(f's_mov_b32 s31, {p*2*64*tilebytes}')
                a.vmem(f'buffer_store_dwordx4 {r4(d)}, v14, s[16:19], s31 offen offset:{tb*256}')
        a.I('v_lshlrev_b32 v14, 1, v13'); a.I('v_add_u32 v14, s30, v14'); a.I('v_lshlrev_b32 v14, 6, v14'); a.I('v_add_u32 v14, s26, v14')
        a.I(f's_movk_i32 s31, {tilebytes}'); a.I('v_mul_lo_u32 v14, v14, s31'); a.I('v_lshl_add_u32 v14, v10, 2, v14')
        a.I(f's_mov_b32 s31, {64*tilebytes}')
        for tb in range(2):
            b = acc(8, tb); d = ST + 32 + tb*2
            a.I(f'v_cvt_pk_bf16_f32 v{d}, v{b}, v{b+1}'); a.I(f'v_cvt_pk_bf16_f32 v{d+1}, v{b+2}, v{b+3}')
            a.vmem(f'buffer_store_dword v{d}, v14, s[16:19], 0 offen offset:{hi_off+tb*64}')
            a.vmem(f'buffer_store_dword v{d+1}, v14, s[16:19], s31 offen offset:{hi_off+tb*64}')
    a.I('s_cmp_ge_u32 s22, 4'); a.I('s_cbranch_scc1 K1_K')
    qk_store(WS.QIMG, WS.QIMG_SZ, QT_BYTES, 1024)
    a.I('s_endpgm')
    a.label('K1_K')
    qk_store(WS.KVIMG, WS.KVIMG_SZ, KV_TILE, 1024)
    N0 = 88
    for p in range(4):
        for tb in range(2):
            b0, b1 = acc(2*p, tb), acc(2*p+1, tb)
            d = N0 + p*2 + tb
            a.I(f'v_mul_f32 v{d}, v{b0}, v{b0}')
            for v in [b0+1, b0+2, b0+3, b1, b1+1, b1+2, b1+3]: a.I(f'v_fmac_f32 v{d}, v{v}, v{v}')
    for p in range(4):
        for tb in range(2):
            d = N0 + p*2 + tb
            a.I(f'v_mov_b32 v9, v{d}'); a.I(f'v_permlane16_swap_b32 v{d}, v9'); a.I(f'v_add_f32 v{d}, v{d}, v9')
        a.I(f'v_max_f32 v{N0+16+p}, v{N0+p*2}, v{N0+p*2+1}')
    for e in range(2):
        for tb in range(2):
            b = acc(8, tb); d = N0 + 24 + e*2 + tb
            a.I(f'v_mul_f32 v{d}, v{b+2*e}, v{b+2*e}'); a.I(f'v_fmac_f32 v{d}, v{b+2*e+1}, v{b+2*e+1}')
        a.I(f'v_max_f32 v{N0+20+e}, v{N0+24+e*2}, v{N0+25+e*2}')
    for q in range(6):
        d = N0 + 16 + q
        for dpp in ('quad_perm:[1,0,3,2]', 'quad_perm:[2,3,0,1]', 'row_half_mirror', 'row_mirror'):
            a.I(f'v_max_f32_dpp v{d}, v{d}, v{d} {dpp} row_mask:0xf bank_mask:0xf')
    a.I('s_lshl_b32 s28, s20, 6')
    a.I('v_lshrrev_b32 v9, 5, v1'); a.I('v_lshlrev_b32 v9, 3, v9'); a.I('v_add_u32 v9, s28, v9')
    a.I('v_lshlrev_b32 v11, 4, v13'); a.I('v_add_u32 v11, s28, v11')
    for p in range(4): a.I(f'ds_write_b32 v9, v{N0+16+p} offset:{p*16}')
    for e in range(2): a.I(f'ds_write_b32 v11, v{N0+20+e} offset:{e*8+4}')
    a.I('v_and_b32 v12, 7, v1'); a.I('v_lshlrev_b32 v12, 3, v12'); a.I('v_add_u32 v12, s28, v12')
    a.I(f'ds_read_b64 {r2(N0+30)}, v12'); a.I('s_waitcnt lgkmcnt(0)')
    a.I(f'v_add_f32 v9, v{N0+30}, v{N0+31}')
    srd(a, 16, 4, 5, WS.KMAX_SZ, WS.KMAX)
    a.I('v_and_b32 v14, 7, v1'); a.I('v_add_u32 v14, s30, v14'); a.I('v_lshlrev_b32 v14, 6, v14'); a.I('v_add_u32 v14, s26, v14'); a.I('v_lshlrev_b32 v14, 2, v14')
    a.I('s_mov_b64 exec, 0xff')
    a.I('buffer_store_dword v9, v14, s[16:19], 0 offen')
    a.I('s_endpgm')
    a.label('K1_V')
    a.I('v_bfe_u32 v11, v1, 3, 1'); a.I('v_lshlrev_b32 v11, 10, v11')
    a.I('v_and_b32 v12, 0x30, v1'); a.I('v_and_b32 v13, 7, v1'); a.I('v_add_u32 v12, v12, v13'); a.I('v_lshl_add_u32 v11, v12, 4, v11')
    a.I('s_lshl_b32 s26, s33, 11'); a.I(f's_add_u32 s26, s26, {XOFF1}'); a.I('v_add_u32 v9, s26, v11'); a.I('v_add_u32 v10, 128, v9')
    k1_consumer(a, True)
    a.I('v_and_b32 v10, 15, v1'); a.I('v_lshrrev_b32 v13, 4, v1')
    a.I('s_mov_b32 s26, s34')
    srd(a, 16, 4, 5, WS.KVIMG_SZ, WS.KVIMG)
    a.I('s_and_b32 s30, s22, 3'); a.I('s_lshl_b32 s30, s30, 3')
    a.I('s_lshl_b32 s31, s30, 6'); a.I('s_add_u32 s31, s31, s26'); a.I(f's_mul_i32 s31, s31, {KV_TILE}')
    a.I(f'v_mul_u32_u24 v14, {DV}, v13'); a.I('v_add_u32 v15, v14, v10'); a.I('v_lshlrev_b32 v15, 4, v15')
    for nb in range(9):
        d = 88 + (nb % 6)*4
        b0, b1 = acc(nb, 0), acc(nb, 1)
        a.I(f'v_cvt_pk_bf16_f32 v{d}, v{b0}, v{b0+1}'); a.I(f'v_cvt_pk_bf16_f32 v{d+1}, v{b0+2}, v{b0+3}')
        a.I(f'v_cvt_pk_bf16_f32 v{d+2}, v{b1}, v{b1+1}'); a.I(f'v_cvt_pk_bf16_f32 v{d+3}, v{b1+2}, v{b1+3}')
        if nb < 8:
            a.I(f's_add_u32 s32, s31, {nb*64*KV_TILE}')
            a.vmem(f'buffer_store_dwordx4 {r4(d)}, v15, s[16:19], s32 offen offset:{VT_OFF}')
        else:
            a.I('v_lshrrev_b32 v9, 1, v10'); a.I(f's_mov_b32 s32, {64*KV_TILE}'); a.I('v_mul_lo_u32 v9, v9, s32')
            a.I('v_and_b32 v11, 1, v10'); a.I('v_add_u32 v11, v11, v14'); a.I('v_add_u32 v11, 16, v11'); a.I('v_lshl_add_u32 v9, v11, 4, v9')
            a.vmem(f'buffer_store_dwordx4 {r4(d)}, v9, s[16:19], s31 offen offset:{VT_OFF}')
    a.I('s_endpgm')
    a.label('K1_PREP')
    a.I(f's_load_dwordx2 s[6:7], s[0:1], {A_WO}')
    a.I(f's_load_dwordx2 s[8:9], s[0:1], {A_W1}')
    a.I(f's_load_dwordx2 s[10:11], s[0:1], {A_W2}')
    a.I('s_sub_u32 s3, s2, 192')
    K0.prep_body(a, 's3', 'K1P')
    a.label('K1_END')
    a.I('s_endpgm')
    return kernel_text('k1_kernel', a, 160), (192+K0.NPREP, 768, K1_LDS)

def k3():
    a = Asm()
    A3 = 16
    def ac(nb, tb): return A3 + (nb*2+tb)*4
    a.I(f's_cmp_ge_u32 s2, {256+72}'); a.I('s_cbranch_scc1 K3_END')
    a.I(f's_load_dwordx2 s[4:5], s[0:1], {A_WS}')
    wave_setup(a)
    a.I('s_cmp_ge_u32 s2, 256'); a.I('s_cbranch_scc1 K3_UT')
    a.I('s_and_b32 s21, s2, 7'); a.I('s_lshl_b32 s21, s21, 3'); a.I('s_bfe_u32 s26, s2, 0x30003'); a.I('s_add_u32 s21, s21, s26')
    a.I('s_lshr_b32 s22, s2, 6')
    a.I('s_waitcnt lgkmcnt(0)')
    a.I(f's_mul_i32 s26, s22, {18*9*1024}')
    a.I('s_add_u32 s8, s4, s26'); a.I('s_addc_u32 s9, s5, 0')
    a.I(f's_add_u32 s8, s8, {WS.WOF}'); a.I('s_addc_u32 s9, s9, 0')
    a.I(f's_mov_b32 s10, {18*9*1024}'); a.I('s_mov_b32 s11, 0x00020000')
    srd(a, 12, 4, 5, WS.OF_SZ, WS.OF)
    a.I(f's_mul_i32 s27, s21, {2*KS*1024}')
    a.I('s_lshl_b32 s28, s20, 10'); a.I('s_add_u32 s27, s27, s28')
    a.I('s_mul_i32 s29, s20, 9216')
    toks = {}
    WFR = 88
    GA, G2R, XRS = 160, 180, 200
    def kload(i):
        a.I(f's_add_u32 s30, s27, {i*4096}')
        a.vmem(f'buffer_load_dwordx4 {r4(8*i,"a")}, v2, s[12:15], s30 offen')
        a.I(f's_add_u32 s30, s30, {KS*1024}')
        a.vmem(f'buffer_load_dwordx4 {r4(8*i+4,"a")}, v2, s[12:15], s30 offen')
        for nb in range(9):
            if nb % 4 == 0: a.I(f's_add_u32 s30, s29, {i*36864 + nb*1024}')
            a.vmem(f'buffer_load_dwordx4 {r4(WFR+36*(i % 3)+4*nb)}, v2, s[8:11], s30 offen offset:{(nb % 4)*1024}')
            toks[(i, nb)] = a.vm
    for i in range(3): kload(i)
    stamp(a, 0)
    for i in range(5):
        for nb in range(9):
            if nb % 3 == 0: a.wait(vm=toks[(i, nb+2)])
            for tb in range(2):
                c = '0' if i == 0 else r4(ac(nb, tb))
                a.I(f'v_mfma_f32_16x16x32_bf16 {r4(ac(nb,tb))}, {r4(WFR+36*(i % 3)+4*nb)}, {r4(8*i+4*tb,"a")}, {c}')
        if i == 0: kload(3)
        if i == 1: kload(4)
        if i == 2:
            srd(a, 16, 4, 5, WS.MOD_SZ, WS.MOD); srd(a, 24, 4, 5, WS.XF_SZ, WS.XF); srd(a, 48, 4, 5, WS.G2_SZ, WS.G2)
            a.I('s_lshr_b32 s31, s20, 1'); a.I('s_mul_i32 s31, s31, 5')
            a.I('s_mul_i32 s32, s22, 9'); a.I('s_add_u32 s32, s32, s31')
            a.I('v_lshrrev_b32 v9, 4, v1'); a.I('v_lshlrev_b32 v9, 4, v9')
            a.I('s_lshl_b32 s52, s32, 6'); a.I(f's_add_u32 s33, s52, {2*576*4}')
            for q in range(5): a.vmem(f'buffer_load_dwordx4 {r4(GA+4*q)}, v9, s[16:19], s33 offen offset:{q*64}')
            for q in range(5): a.vmem(f'buffer_load_dwordx4 {r4(G2R+4*q)}, v9, s[48:51], s52 offen offset:{q*64}')
            a.I('s_and_b32 s34, s20, 1'); a.I('s_lshl_b32 s35, s21, 1'); a.I('s_add_u32 s34, s34, s35')
            a.I(f's_mul_i32 s35, s34, {KS*1024}'); a.I('v_add_u32 v10, s35, v2')
            for q in range(5):
                a.I(f's_add_u32 s36, s32, {q}'); a.I('s_and_b32 s37, s36, 1'); a.I('s_lshr_b32 s36, s36, 1'); a.I('s_lshl_b32 s36, s36, 10')
                a.I('s_lshl_b32 s37, s37, 3'); a.I(f's_add_u32 s{40+q}, s36, s37')
                a.vmem(f'buffer_load_dwordx2 {r2(XRS+2*q)}, v10, s[24:27], s{40+q} offen')
    stamp(a, 2)
    a.I('s_mul_i32 s38, s20, 18432'); a.I('v_add_u32 v11, s38, v2')
    for nb in range(9):
        for tb in range(2): a.I(f'ds_write_b128 v11, {r4(ac(nb,tb))} offset:{(nb*2+tb)*1024}')
    a.I('s_waitcnt lgkmcnt(0)'); a.I('s_barrier')
    stamp(a, 3)
    a.I('s_lshl_b32 s38, s31, 1'); a.I('s_and_b32 s39, s20, 1'); a.I('s_add_u32 s38, s38, s39'); a.I('s_lshl_b32 s38, s38, 10')
    a.I('v_add_u32 v11, s38, v2'); a.I(f'v_add_u32 v12, {2*18432}, v11')
    for q in range(5):
        for wv in range(4):
            a.I(f'ds_read_b128 {r4(A3+q*16+wv*4)}, v{11 + wv//2} offset:{(wv % 2)*18432 + q*2048}')
    srd(a, 8, 4, 5, WS.X1F_SZ, WS.X1F); srd(a, 12, 4, 5, WS.X1G_SZ, WS.X1G)
    a.I('v_mov_b32 v13, 0'); a.I('v_mov_b32 v14, 0')
    a.I('s_waitcnt vmcnt(0) lgkmcnt(0)')
    for q in range(5):
        if q == 4:
            a.I('s_cmp_ge_u32 s20, 2'); a.I('s_cbranch_scc1 K3_SKIP5')
        b = A3 + q*16
        for r in range(4):
            a.I(f'v_add_f32 v{b+r}, v{b+r}, v{b+4+r}'); a.I(f'v_add_f32 v{b+8+r}, v{b+8+r}, v{b+12+r}')
        for r in range(4):
            a.I(f'v_add_f32 v{b+r}, v{b+r}, v{b+8+r}')
            x = XRS + 2*q + r//2
            if r % 2 == 0: a.I(f'v_lshlrev_b32 v{b+4+r}, 16, v{x}')
            else: a.I(f'v_and_b32 v{b+4+r}, 0xffff0000, v{x}')
        for r in range(4): a.I(f'v_fma_f32 v{b+r}, v{b+r}, v{GA+4*q+r}, v{b+4+r}')
        d = 100 + 2*q
        a.I(f'v_cvt_pk_bf16_f32 v{d}, v{b}, v{b+1}'); a.I(f'v_cvt_pk_bf16_f32 v{d+1}, v{b+2}, v{b+3}')
        a.vmem(f'buffer_store_dwordx2 {r2(d)}, v10, s[8:11], s{40+q} offen')
        for z in range(2):
            a.I(f'v_lshlrev_b32 v{b+4+2*z}, 16, v{d+z}'); a.I(f'v_and_b32 v{b+5+2*z}, 0xffff0000, v{d+z}')
        for r in range(4):
            a.I(f'v_add_f32 v13, v13, v{b+4+r}'); a.I(f'v_fmac_f32 v14, v{b+4+r}, v{b+4+r}')
            a.I(f'v_mul_f32 v{b+8+r}, v{b+4+r}, v{G2R+4*q+r}')
        a.I(f'v_cvt_pk_bf16_f32 v{b+12}, v{b+8}, v{b+9}'); a.I(f'v_cvt_pk_bf16_f32 v{b+13}, v{b+10}, v{b+11}')
        a.vmem(f'buffer_store_dwordx2 {r2(b+12)}, v10, s[12:15], s{40+q} offen')
    a.label('K3_SKIP5')
    for r in ('v13', 'v14'):
        a.I(f'v_mov_b32 v15, {r}'); a.I(f'v_permlane16_swap_b32 {r}, v15'); a.I(f'v_add_f32 {r}, {r}, v15')
        a.I(f'v_mov_b32 v15, {r}'); a.I(f'v_permlane32_swap_b32 {r}, v15'); a.I(f'v_add_f32 {r}, {r}, v15')
    a.I('v_mov_b32 v112, v13'); a.I('v_mov_b32 v113, v14')
    srd(a, 8, 4, 5, WS.STAT2_SZ, WS.STAT2)
    a.I('s_lshl_b32 s36, s34, 10'); a.I('s_lshl_b32 s37, s22, 4'); a.I('s_add_u32 s36, s36, s37')
    a.I('s_lshr_b32 s37, s20, 1'); a.I('s_lshl_b32 s37, s37, 3'); a.I('s_add_u32 s36, s36, s37')
    a.I('v_and_b32 v15, 15, v1'); a.I('v_lshlrev_b32 v15, 6, v15')
    a.I('v_cmp_gt_u32 vcc, 16, v1'); a.I('s_and_saveexec_b64 s[46:47], vcc')
    a.vmem('buffer_store_dwordx2 v[112:113], v15, s[8:11], s36 offen')
    a.I('s_endpgm')
    a.label('K3_UT')
    a.I('s_sub_u32 s21, s2, 256'); a.I('s_lshl_b32 s21, s21, 2'); a.I('s_add_u32 s21, s21, s20')
    sdiv(a, 's22', 's21', 3, 287); a.I('s_mul_i32 s23, s22, 3'); a.I('s_sub_u32 s23, s21, s23')
    a.I('s_mul_i32 s24, s22, 54'); a.I('s_add_u32 s24, s24, s23'); a.I('s_lshl_b32 s24, s24, 10')
    a.I('v_and_b32 v3, 15, v1'); a.I('v_lshrrev_b32 v4, 4, v1'); a.I('v_lshlrev_b32 v5, 6, v4'); a.I('v_lshl_add_u32 v5, v3, 5, v5')
    a.I('v_cmp_gt_u32 vcc, 2, v3'); a.I('v_mov_b32 v6, 0x7fffffff'); a.I('v_cndmask_b32 v5, v6, v5, vcc')
    a.I('s_waitcnt lgkmcnt(0)')
    srd(a, 8, 4, 5, WS.W1S_SZ, WS.W1S); srd(a, 12, 4, 5, WS.TAB2_SZ, WS.TAB2); srd(a, 16, 4, 5, WS.UT1_SZ, WS.UT1)
    areg = lambda ks: r4(4*ks, 'a') if ks < 10 else r4(160+4*(ks-10))
    for ks in range(18):
        if ks == 16: a.I('s_movk_i32 s25, 4096')
        so = '0' if ks < 16 else 's25'
        a.vmem(f'buffer_load_dwordx4 {r4(16+8*ks)}, v5, s[12:15], {so} offen offset:{(ks*256) % 4096}')
        a.vmem(f'buffer_load_dwordx4 {r4(20+8*ks)}, v5, s[12:15], {so} offen offset:{(ks*256) % 4096 + 16}')
    ttok = a.vm
    for ks in range(18):
        a.I(f's_add_u32 s25, s24, {ks*3072}')
        a.vmem(f'buffer_load_dwordx4 {areg(ks)}, v2, s[8:11], s25 offen')
    a.wait(vm=ttok)
    for ks in range(18):
        b = 16 + 8*ks
        for q in range(4): a.I(f'v_cvt_pk_bf16_f32 v{b+q}, v{b+2*q}, v{b+2*q+1}')
    a.I('s_waitcnt vmcnt(0)')
    for ks in range(18):
        a.I(f'v_mfma_f32_16x16x32_bf16 v[8:11], {areg(ks)}, {r4(16+8*ks)}, {"0" if ks == 0 else "v[8:11]"}')
    a.I(f's_mov_b32 s25, {F*4}'); a.I('v_mul_lo_u32 v7, v3, s25'); a.I('v_lshl_add_u32 v7, v4, 4, v7'); a.I('s_lshl_b32 s25, s21, 6')
    a.I('v_cmp_gt_u32 vcc, 2, v3'); a.I('s_and_saveexec_b64 s[46:47], vcc')
    a.vmem('buffer_store_dwordx4 v[8:11], v7, s[16:19], s25 offen')
    a.label('K3_END')
    a.I('s_endpgm')
    return kernel_text('k3_kernel', a, 212+40, accum=212), (256+72, 256, 4*18432)

AC4 = 16
RING = 64
NR = 18
BF4 = 136
XOFF, HOFF, UTL, STL, CNT = 0, 73728, 147456, 152064, 152576
def k4():
    a = Asm()
    a.I('s_cmp_ge_u32 s2, 256'); a.I('s_cbranch_scc1 K4_END')
    a.I(f's_load_dwordx2 s[4:5], s[0:1], {A_WS}')
    wave_setup(a)
    a.I('s_and_b32 s26, s2, 7'); a.I('s_lshr_b32 s27, s2, 3')
    a.I('s_and_b32 s22, s26, 3'); a.I('s_lshl_b32 s22, s22, 1'); a.I('s_and_b32 s28, s27, 1'); a.I('s_add_u32 s22, s22, s28')
    a.I('s_lshr_b32 s21, s26, 2'); a.I('s_lshl_b32 s21, s21, 4'); a.I('s_lshr_b32 s28, s27, 1'); a.I('s_add_u32 s21, s21, s28')
    a.I('s_and_b32 s28, s20, 3'); a.I('s_lshl_b32 s29, s21, 2'); a.I('s_add_u32 s29, s29, s28'); a.I('s_mul_i32 s29, s29, 18')
    a.I('s_lshr_b32 s38, s20, 2'); a.I('s_add_u32 s29, s29, s38'); a.I('s_lshl_b32 s29, s29, 10')
    a.I('s_lshl_b32 s30, s20, 10')
    a.I('s_mul_i32 s31, s22, 12'); a.I('s_add_u32 s31, s31, s20'); a.I(f's_mul_i32 s31, s31, {54*1024}')
    a.I('v_and_b32 v8, 15, v1'); a.I('v_lshlrev_b32 v9, 6, v8')
    a.I(f'v_mov_b32 v10, {CNT}'); a.I('v_mov_b32 v11, 0'); a.I('ds_write_b32 v10, v11'); a.I('ds_write_b32 v10, v11 offset:4'); a.I('ds_write_b32 v10, v11 offset:8'); a.I('ds_write_b32 v10, v11 offset:12'); a.I('ds_write_b32 v10, v11 offset:16'); a.I('ds_write_b32 v10, v11 offset:20')
    a.I('s_waitcnt lgkmcnt(0)')
    srd(a, 40, 4, 5, WS.STAT2_SZ, WS.STAT2)
    a.I('s_cmp_ge_u32 s20, 4'); a.I('s_cbranch_scc1 K4_NS0')
    a.I('s_lshl_b32 s35, s21, 2'); a.I('s_add_u32 s35, s35, s20'); a.I('s_lshl_b32 s35, s35, 10')
    for q in range(4): a.I(f'buffer_load_dwordx4 {r4(AC4+4*q)}, v9, s[40:43], s35 offen offset:{q*16}')
    a.vm -= 4
    a.label('K4_NS0')
    srd(a, 16, 4, 5, WS.X1G_SZ, WS.X1G); srd(a, 8, 4, 5, WS.W1S_SZ, WS.W1S)
    xt = []
    def xdma(i):
        a.I(f's_add_u32 m0, s30, {i*12*1024}'); a.I(f's_add_u32 s34, s29, {i*3*1024}')
        xt.append(a.vmem('buffer_load_dwordx4 v2, s[16:19], s34 offen lds'))
    wt = {}; wstate = {}
    def wissue(q):
        if q >= 108 or q in wt: return
        sl = q % NR
        off = (q % 54)*1024; srdn = 8 if q < 54 else 12
        key = (srdn, off & ~4095)
        if wstate.get('k') != key:
            a.I(f's_add_u32 s33, s31, {off & ~4095}'); wstate['k'] = key
        wt[q] = a.vmem(f'buffer_load_dwordx4 {r4(RING+4*sl)}, v2, s[{srdn}:{srdn+3}], s33 offen offset:{off & 4095}')
    xdma(0); xdma(1)
    for q in range(6): wissue(q)
    srd(a, 12, 4, 5, WS.W2S_SZ, WS.W2S); srd(a, 24, 4, 5, WS.UT1_SZ, WS.UT1)
    a.I('s_cmp_lt_u32 s20, 4'); a.I('s_cbranch_scc1 K4_PA'); a.I('s_cmp_lt_u32 s20, 8'); a.I('s_cbranch_scc1 K4_PB')
    a.I('s_setprio 1'); a.I('s_branch K4_PD')
    a.label('K4_PB'); a.I('s_setprio 2'); a.I('s_branch K4_PD')
    a.label('K4_PA'); a.I('s_setprio 3')
    a.label('K4_PD')
    tok = {}
    def late_loads():
        for i in range(2, 6): xdma(i)
        a.I('s_mul_i32 s34, s20, 384'); a.I(f's_add_u32 m0, s34, {UTL}')
        a.I('s_cmp_ge_u32 s20, 6'); a.I(f's_cselect_b32 s35, {F*4 - 2304}, 0'); a.I('s_add_u32 s35, s35, s34')
        a.I('s_mul_i32 s36, s22, 2304'); a.I('s_add_u32 s35, s35, s36')
        a.I('s_mov_b64 exec, 0xffffff'); a.vmem('buffer_load_dwordx4 v2, s[24:27], s35 offen lds'); a.I('s_mov_b64 exec, -1')
        tok['ut'] = a.vm
    stamp(a, 0)
    a.I('v_mov_b32 v3, v2'); a.I('v_add_u32 v4, 36864, v2'); a.I(f'v_add_u32 v5, {HOFF}, v2'); a.I(f'v_add_u32 v6, {HOFF+36864}, v2')
    btok = {}
    def bread(kind, ks, st):
        base = (3 if kind == 'x' else 5) + (ks // 9)
        for tb in range(4):
            btok[(kind, ks, tb)] = a.lds(f'ds_read_b128 {r4(BF4+st*16+tb*4)}, v{base} offset:{((ks % 9)*4+tb)*1024}')
    nxt_w = [6]
    st8 = {'q': 0}
    def pump():
        nis = 0
        while nxt_w[0] < min(st8['q'] + NR, 108) and nis < 2:
            wissue(nxt_w[0]); nxt_w[0] += 1; nis += 1
    def gemm(kind, hooks={}):
        for ks in range(18):
            cur = ks % 2
            if ks in hooks:
                lg0 = a.lg
                hooks[ks]()
                a.lg = lg0
            if ks + 1 < 18: bread(kind, ks+1, 1-cur)
            q = st8['q']
            a.wait(vm=wt[q+2], lg=btok[(kind, ks, 3)])
            for fb in range(3):
                for tb in range(4):
                    d = r4(AC4+(fb*4+tb)*4)
                    a.I(f'v_mfma_f32_16x16x32_bf16 {d}, {r4(RING+4*(st8["q"] % NR))}, {r4(BF4+cur*16+tb*4)}, {"0" if ks == 0 else d}')
                st8['q'] += 1
                pump()
    a.wait(vm=xt[1])
    a.I('s_cmp_ge_u32 s20, 4'); a.I('s_cbranch_scc1 K4_NS1')
    b = AC4
    for z in range(1, 8):
        a.I(f'v_add_f32 v{b}, v{b}, v{b+2*z}'); a.I(f'v_add_f32 v{b+1}, v{b+1}, v{b+2*z+1}')
    a.I(f'v_mul_f32 v{b}, {hexf(1.0/576)}, v{b}'); a.I(f'v_mul_f32 v{b+1}, {hexf(1.0/576)}, v{b+1}')
    a.I(f'v_fma_f32 v{b+1}, -v{b}, v{b}, v{b+1}'); a.I(f'v_max_f32 v{b+1}, 0, v{b+1}'); a.I(f'v_add_f32 v{b+1}, {hexf(1e-5)}, v{b+1}')
    a.I(f'v_rsq_f32 v{b+1}, v{b+1}')
    a.I(f'v_mul_f32 v{b+2}, {hexf(LOG2E)}, v{b+1}'); a.I(f'v_mul_f32 v{b+3}, v{b+2}, v{b}')
    a.I('v_lshlrev_b32 v8, 3, v8'); a.I('s_lshl_b32 s35, s20, 7'); a.I(f's_add_u32 s35, s35, {STL}'); a.I('v_add_u32 v8, s35, v8')
    a.I(f'ds_write_b64 v8, {r2(b+2)}')
    a.label('K4_NS1')
    a.I('s_waitcnt lgkmcnt(0)'); a.I('s_barrier')
    stamp(a, 1)
    bread('x', 0, 0)
    def hx():
        for i in range(2, 6): pass
    def gate():
        L = a.newlabel('K4_GATE')
        a.I('s_cmp_eq_u32 s38, 0'); a.I(f's_cbranch_scc1 {L}_D')
        a.I('s_lshl_b32 s36, s38, 2'); a.I(f's_add_u32 s36, s36, {CNT+8}'); a.I('v_mov_b32 v10, s36')
        a.label(L)
        a.I('ds_read_b32 v11, v10'); a.I('s_waitcnt lgkmcnt(0)'); a.I('v_readfirstlane_b32 s36, v11')
        a.I('s_cmp_ge_u32 s36, 4'); a.I(f's_cbranch_scc1 {L}_D'); a.I('s_sleep 4'); a.I(f's_branch {L}')
        a.label(f'{L}_D')
    def sig_g1():
        L = a.newlabel('K4_SIG')
        a.I('s_cmp_ge_u32 s38, 2'); a.I(f's_cbranch_scc1 {L}')
        a.I('s_lshl_b32 s36, s38, 2'); a.I(f's_add_u32 s36, s36, {CNT+12}'); a.I('v_mov_b32 v10, s36'); a.I('v_mov_b32 v11, 1')
        a.I('s_mov_b64 exec, 1'); a.I('ds_add_u32 v10, v11'); a.I('s_mov_b64 exec, -1')
        a.label(L)
    def sig_x():
        a.wait(vm=tok['ut'])
        a.I(f'v_mov_b32 v10, {CNT+20}'); a.I('v_mov_b32 v11, 1')
        a.I('s_mov_b64 exec, 1'); a.I('ds_add_u32 v10, v11'); a.I('s_mov_b64 exec, -1')
    def h1():
        L = a.newlabel('K4_H1')
        a.I('s_cmp_eq_u32 s38, 0'); a.I(f's_cbranch_scc1 {L}')
        lg0 = a.lg
        sig_x(); gate()
        a.label(L)
    def h4():
        L = a.newlabel('K4_H4')
        a.I('s_cmp_lg_u32 s38, 0'); a.I(f's_cbranch_scc1 {L}')
        sig_x()
        a.label(L)
    def h5():
        L = a.newlabel('K4_H5')
        a.I(f'v_mov_b32 v10, {CNT+20}')
        a.label(L)
        a.I('ds_read_b32 v11, v10'); a.I('s_waitcnt lgkmcnt(0)'); a.I('v_readfirstlane_b32 s36, v11')
        a.I('s_cmp_ge_u32 s36, 12'); a.I(f's_cbranch_scc1 {L}_D'); a.I('s_sleep 2'); a.I(f's_branch {L}')
        a.label(f'{L}_D')
    gemm('x', hooks={0: late_loads, 1: h1, 4: h4, 5: h5, 13: sig_g1})
    stamp(a, 2)
    a.I('s_mul_i32 s35, s20, 3')
    a.I('v_lshrrev_b32 v14, 4, v1'); a.I('v_lshlrev_b32 v14, 4, v14'); a.I('s_mul_i32 s36, s20, 192'); a.I(f's_add_u32 s36, s36, {UTL}'); a.I('v_add_u32 v7, s36, v14')
    a.I('v_and_b32 v14, 15, v1'); a.I('v_lshlrev_b32 v14, 3, v14'); a.I(f'v_add_u32 v14, {STL}, v14')
    T0 = BF4
    for tb in range(4): a.I(f'ds_read_b64 {r2(T0+2*tb)}, v14 offset:{tb*128}')
    for fb in range(3):
        a.I(f'ds_read_b128 {r4(T0+8+fb*8)}, v7 offset:{fb*64}'); a.I(f'ds_read_b128 {r4(T0+12+fb*8)}, v7 offset:{fb*64+2304}')
    for fb in range(3):
        a.I(f's_add_u32 s36, s35, {fb}'); a.I('s_and_b32 s37, s36, 1'); a.I('s_lshr_b32 s36, s36, 1')
        a.I('s_lshl_b32 s36, s36, 12'); a.I('s_lshl_b32 s37, s37, 3'); a.I('s_add_u32 s36, s36, s37'); a.I(f'v_add_u32 v{7+fb}, s36, v5')
    a.I('s_waitcnt lgkmcnt(0)')
    for fb in range(3):
        U_, T_ = T0+8+fb*8, T0+12+fb*8
        for r in range(4): a.I(f'v_mul_f32 v{T_+r}, {hexf(LOG2E)}, v{T_+r}')
        for tb in range(4):
            b = AC4 + (fb*4+tb)*4
            for r in range(4): a.I(f'v_fma_f32 v{10+r}, -v{T0+2*tb+1}, v{U_+r}, v{T_+r}')
            for r in range(4): a.I(f'v_fma_f32 v{b+r}, v{b+r}, v{T0+2*tb}, v{10+r}')
            for r in range(4): a.I(f'v_exp_f32 v{10+r}, -v{b+r}')
            for r in range(4): a.I(f'v_add_f32 v{10+r}, 1.0, v{10+r}')
            for r in range(4): a.I(f'v_rcp_f32 v{10+r}, v{10+r}')
            for r in range(4): a.I(f'v_mul_f32 v{b+r}, v{b+r}, v{10+r}')
            a.I(f'v_cvt_pk_bf16_f32 v14, v{b}, v{b+1}'); a.I(f'v_cvt_pk_bf16_f32 v15, v{b+2}, v{b+3}')
            a.lds(f'ds_write_b64 v{7+fb}, v[14:15] offset:{tb*1024}')
    a.I('s_waitcnt lgkmcnt(0)')
    a.I('s_lshl_b32 s36, s38, 2'); a.I(f's_add_u32 s36, s36, {CNT}'); a.I('v_mov_b32 v10, s36'); a.I('v_mov_b32 v11, 1')
    a.I('s_mov_b64 exec, 1'); a.I('ds_add_u32 v10, v11'); a.I('s_mov_b64 exec, -1')
    a.I('s_setprio 0')
    stamp(a, 3)
    def poll(g):
        def f():
            L = a.newlabel('K4_POLL')
            a.I(f'v_mov_b32 v10, {CNT+4*g}')
            a.label(L)
            a.I('ds_read_b32 v11, v10'); a.I('s_waitcnt lgkmcnt(0)'); a.I('v_readfirstlane_b32 s36, v11')
            a.I('s_cmp_ge_u32 s36, 4'); a.I(f's_cbranch_scc1 {L}_D'); a.I('s_sleep 2'); a.I(f's_branch {L}')
            a.label(f'{L}_D')
        return f
    poll(0)()
    bread('h', 0, 0)
    gemm('h', hooks={5: poll(1), 11: poll(2)})
    stamp(a, 4)
    srd(a, 16, 4, 5, WS.PART_SZ, WS.PART)
    a.I('s_lshl_b32 s28, s22, 6'); a.I('s_lshl_b32 s29, s21, 1'); a.I('s_add_u32 s28, s28, s29'); a.I('s_mul_i32 s28, s28, 36')
    a.I('s_mul_i32 s29, s20, 3'); a.I('s_add_u32 s28, s28, s29'); a.I('s_lshl_b32 s28, s28, 10')
    for nb in range(3):
        for pr in range(2):
            b0, b1 = AC4+(nb*4+2*pr)*4, AC4+(nb*4+2*pr+1)*4
            d = RING + (nb*2+pr)*4
            a.I(f'v_cvt_pk_bf16_f32 v{d}, v{b0}, v{b0+1}'); a.I(f'v_cvt_pk_bf16_f32 v{d+1}, v{b0+2}, v{b0+3}')
            a.I(f'v_cvt_pk_bf16_f32 v{d+2}, v{b1}, v{b1+1}'); a.I(f'v_cvt_pk_bf16_f32 v{d+3}, v{b1+2}, v{b1+3}')
            a.I(f's_add_u32 s29, s28, {(pr*36+nb)*1024}')
            a.vmem(f'buffer_store_dwordx4 {r4(d)}, v2, s[16:19], s29 offen')
    a.label('K4_END')
    a.I('s_endpgm')
    return kernel_text('k4_kernel', a, 168), (256, 768, CNT + 64)

def k5():
    a = Asm()
    NWG = 64*36//4
    a.I(f's_cmp_ge_u32 s2, {NWG}'); a.I('s_cbranch_scc1 K5_END')
    a.I(f's_load_dwordx2 s[4:5], s[0:1], {A_WS}'); a.I(f's_load_dwordx2 s[6:7], s[0:1], {A_OUT}')
    wave_setup(a)
    a.I('s_lshl_b32 s21, s2, 2'); a.I('s_add_u32 s21, s21, s20')
    sdiv(a, 's22', 's21', 36, 2303)
    a.I('s_mul_i32 s23, s22, 36'); a.I('s_sub_u32 s23, s21, s23')
    a.I('s_waitcnt lgkmcnt(0)')
    srd(a, 8, 4, 5, WS.PART_SZ, WS.PART); srd(a, 12, 4, 5, WS.X1F_SZ, WS.X1F); srd(a, 16, 4, 5, WS.MOD_SZ, WS.MOD); srd(a, 24, 6, 7, S*D*2)
    a.I('s_lshl_b32 s28, s21, 10')
    for j in range(8):
        a.vmem(f'buffer_load_dwordx4 {r4(16+4*j)}, v2, s[8:11], s28 offen')
        if j < 7: a.I(f's_add_u32 s28, s28, {64*36*1024}')
    a.I('s_mul_i32 s28, s22, 36'); a.I('s_lshr_b32 s29, s23, 1'); a.I('s_add_u32 s28, s28, s29'); a.I('s_lshl_b32 s28, s28, 10')
    a.I('s_and_b32 s29, s23, 1'); a.I('s_lshl_b32 s29, s29, 3'); a.I('s_add_u32 s28, s28, s29')
    a.vmem('buffer_load_dwordx2 v[48:49], v2, s[12:15], s28 offen')
    a.I(f's_add_u32 s28, s28, {18*1024}')
    a.vmem('buffer_load_dwordx2 v[50:51], v2, s[12:15], s28 offen')
    a.I('v_lshrrev_b32 v3, 4, v1'); a.I('v_lshlrev_b32 v4, 4, v3')
    a.I('s_lshl_b32 s28, s23, 6'); a.I(f's_add_u32 s28, s28, {5*576*4}')
    a.vmem('buffer_load_dwordx4 v[52:55], v4, s[16:19], s28 offen')
    a.I('v_and_b32 v5, 15, v1'); a.I('v_mul_u32_u24 v5, 1152, v5'); a.I('v_lshl_add_u32 v5, v3, 3, v5')
    a.I(f's_mul_i32 s28, s22, {32*1152}'); a.I('s_lshl_b32 s29, s23, 5'); a.I('s_add_u32 s28, s28, s29')
    for r in range(8): a.I(f'v_mov_b32 v{56+r}, 0')
    a.I('s_waitcnt vmcnt(0)')
    for j in range(8):
        for z in range(4):
            a.I(f'v_lshlrev_b32 v6, 16, v{16+4*j+z}'); a.I(f'v_and_b32 v7, 0xffff0000, v{16+4*j+z}')
            a.I(f'v_add_f32 v{56+2*z}, v{56+2*z}, v6'); a.I(f'v_add_f32 v{57+2*z}, v{57+2*z}, v7')
    LN2 = math.log(2.0)
    for r in range(4): a.I(f'v_mul_f32 v{52+r}, {hexf(LN2)}, v{52+r}')
    for h in range(2):
        for r in range(4):
            x = 48 + 2*h + r//2
            if r % 2 == 0: a.I(f'v_lshlrev_b32 v6, 16, v{x}')
            else: a.I(f'v_and_b32 v6, 0xffff0000, v{x}')
            a.I(f'v_fma_f32 v{56+4*h+r}, v{56+4*h+r}, v{52+r}, v6')
        a.I(f'v_cvt_pk_bf16_f32 v{64+2*h}, v{56+4*h}, v{57+4*h}'); a.I(f'v_cvt_pk_bf16_f32 v{65+2*h}, v{58+4*h}, v{59+4*h}')
        a.vmem(f'buffer_store_dwordx2 {r2(64+2*h)}, v5, s[24:27], s28 offen')
        if h == 0: a.I(f's_add_u32 s28, s28, {16*1152}')
    a.label('K5_END')
    a.I('s_endpgm')
    return kernel_text('k5_kernel', a, 72), (NWG, 256, 0)
```

```python
from common import *

NG, NL, NW = 216, 128, 144
PERM_ROWS = lambda g4, i: 16*(i >> 2) + 4*g4 + (i & 3)

def qkv_dest(a):
    vdiv(a, 'v3', 'v1', 576, 1727)
    a.I('v_mul_u32_u24 v4, 576, v3'); a.I('v_sub_u32 v4, v1, v4')
    vdiv(a, 'v5', 'v4', 18, 575)
    a.I('v_mul_u32_u24 v6, 18, v5'); a.I('v_sub_u32 v6, v4, v6')
    a.I('v_lshrrev_b32 v7, 3, v5'); a.I('v_lshl_add_u32 v7, v3, 2, v7'); a.I('v_and_b32 v8, 7, v5')
    a.I('v_and_b32 v9, 6, v8'); a.I('v_bfe_u32 v10, v6, 2, 1'); a.I('v_add_u32 v9, v9, v10')
    a.I('v_and_b32 v10, 1, v8'); a.I('v_lshlrev_b32 v10, 3, v10')
    a.I('v_bfe_u32 v11, v6, 3, 1'); a.I('v_lshl_add_u32 v10, v11, 2, v10')
    a.I('v_and_b32 v11, 3, v6'); a.I('v_add_u32 v10, v10, v11')
    a.I('v_cmp_eq_u32 vcc, 2, v3')
    a.I('v_cndmask_b32 v9, v9, v8, vcc'); a.I('v_cndmask_b32 v10, v10, v6, vcc')
    a.I('v_lshlrev_b32 v11, 1, v8'); a.I('v_add_u32 v11, v11, v6'); a.I('v_subrev_u32 v11, 16, v11')
    a.I('v_cmp_le_u32 vcc, 16, v6')
    a.I('v_mov_b32 v12, 8'); a.I('v_cndmask_b32 v9, v9, v12, vcc')
    a.I('v_cndmask_b32 v10, v10, v11, vcc')
    a.I('v_mul_u32_u24 v7, 162, v7'); a.I('v_add_u32 v7, v7, v9'); a.I('v_lshlrev_b32 v2, 10, v7')
    a.I('v_lshl_add_u32 v2, v10, 4, v2')

def k0():
    a = Asm()
    a.I(f's_cmp_ge_u32 s2, {NG+NL+NW}')
    a.I('s_cbranch_scc1 K0_END')
    a.I(f's_load_dwordx2 s[4:5], s[0:1], {A_WS}')
    a.I('s_mov_b32 s32, s2')
    a.I('s_cmp_lt_u32 s2, 72'); a.I('s_cbranch_scc1 K0_G')
    a.I(f's_cmp_lt_u32 s2, {72+NL}'); a.I('s_cbranch_scc1 K0_LN')
    a.I(f's_cmp_lt_u32 s2, {72+NL+NW}'); a.I('s_cbranch_scc1 K0_W')
    a.I(f's_sub_u32 s32, s2, {NL+NW}')
    a.label('K0_G')
    a.I(f's_load_dwordx2 s[8:9], s[0:1], {A_C}')
    a.I(f's_load_dwordx2 s[10:11], s[0:1], {A_WMOD}')
    a.I('s_lshr_b32 s33, s32, 1'); a.I('s_and_b32 s34, s32, 1')
    a.I('v_and_b32 v1, 3, v0'); a.I('v_lshrrev_b32 v2, 2, v0')
    a.I('s_movk_i32 s24, 6912'); a.I('v_mul_lo_u32 v3, v2, s24'); a.I('v_lshl_add_u32 v3, v1, 4, v3')
    a.I('v_lshlrev_b32 v4, 1, v2')
    a.I('s_lshl_b32 s35, s33, 6'); a.I(f's_mul_i32 s36, s34, {288*6912}'); a.I('s_add_u32 s35, s35, s36')
    a.I('s_mul_i32 s37, s34, 576')
    a.I('v_cmp_gt_u32 vcc, 32, v2'); a.I('v_mov_b32 v5, 0x7f000000'); a.I('v_cndmask_b32 v8, v5, v3, vcc'); a.I('v_cndmask_b32 v9, v5, v4, vcc')
    a.I('s_waitcnt lgkmcnt(0)')
    srd(a, 12, 10, 11, 576*6912); srd(a, 16, 8, 9, 576*2)
    for p in range(5): a.vmem(f'buffer_load_ushort v{10+p}, {"v4" if p < 4 else "v9"}, s[16:19], s37 offen offset:{p*128}')
    for p in range(5):
        a.vmem(f'buffer_load_dwordx4 {r4(20+4*p)}, {"v3" if p < 4 else "v8"}, s[12:15], s35 offen')
        if p < 4: a.I(f's_add_u32 s35, s35, {64*6912}')
    a.I('s_waitcnt vmcnt(5)')
    for p in range(5):
        c = f'v{10+p}'
        a.I(f'v_lshlrev_b32 {c}, 16, {c}'); a.I(f'v_mul_f32 v5, {hexf(-LOG2E)}, {c}')
        a.I('v_exp_f32 v5, v5'); a.I('v_add_f32 v5, 1.0, v5'); a.I('v_rcp_f32 v5, v5'); a.I(f'v_mul_f32 {c}, {c}, v5')
        bf16_round_f32(a, c, c)
    for j in range(8): a.I(f'v_mov_b32 v{40+j}, 0')
    for p in range(5):
        a.I(f's_waitcnt vmcnt({4-p})')
        for j in range(4):
            w = f'v{20+4*p+j}'
            a.I(f'v_lshlrev_b32 v5, 16, {w}'); a.I(f'v_and_b32 v6, 0xffff0000, {w}')
            a.I(f'v_fmac_f32 v{40+2*j}, v{10+p}, v5'); a.I(f'v_fmac_f32 v{41+2*j}, v{10+p}, v6')
    for j in range(8):
        r = f'v{40+j}'
        a.I(f'v_add_f32_dpp {r}, {r}, {r} row_ror:4 row_mask:0xf bank_mask:0xf')
    for j in range(8):
        r = f'v{40+j}'
        a.I(f'v_add_f32_dpp {r}, {r}, {r} row_ror:8 row_mask:0xf bank_mask:0xf')
    for j in range(8):
        r = f'v{40+j}'
        a.I(f'v_mov_b32 v{50+j}, {r}')
    for j in range(8): a.I(f'v_permlane16_swap_b32 v{40+j}, v{50+j}')
    for j in range(8): a.I(f'v_add_f32 v{40+j}, v{40+j}, v{50+j}')
    for j in range(8): a.I(f'v_mov_b32 v{50+j}, v{40+j}')
    for j in range(8): a.I(f'v_permlane32_swap_b32 v{40+j}, v{50+j}')
    for j in range(8): a.I(f'v_add_f32 v{40+j}, v{40+j}, v{50+j}')
    a.I('v_lshrrev_b32 v7, 6, v0'); a.I('v_lshlrev_b32 v7, 7, v7'); a.I('v_lshl_add_u32 v7, v1, 5, v7')
    a.I('v_and_b32 v8, 63, v0'); a.I('v_cmp_gt_u32 vcc, 4, v8'); a.I('s_and_saveexec_b64 s[28:29], vcc')
    a.I('ds_write_b128 v7, v[40:43]'); a.I('ds_write_b128 v7, v[44:47] offset:16')
    a.I('s_mov_b64 exec, s[28:29]')
    a.I('s_waitcnt lgkmcnt(0)'); a.I('s_barrier')
    a.I('v_cmp_gt_u32 vcc, 32, v0'); a.I('s_and_saveexec_b64 s[28:29], vcc'); a.I('s_cbranch_execz K0_END')
    a.I('v_lshlrev_b32 v8, 2, v0')
    for i in range(4): a.I(f'ds_read_b32 v{20+i}, v8 offset:{i*128}')
    a.I('s_waitcnt lgkmcnt(0)')
    a.I('v_add_f32 v20, v20, v21'); a.I('v_add_f32 v22, v22, v23'); a.I('v_add_f32 v20, v20, v22')
    srd(a, 12, 4, 5, WS.MODP_SZ, WS.MODP)
    a.I('s_lshl_b32 s25, s33, 7'); a.I(f's_mul_i32 s26, s34, {3456*4}'); a.I('s_add_u32 s25, s25, s26')
    a.I('buffer_store_dword v20, v8, s[12:15], s25 offen')
    a.I('s_endpgm')
    a.label('K0_LN')
    a.I(f's_load_dwordx2 s[6:7], s[0:1], {A_X}')
    a.I('s_sub_u32 s24, s2, 72'); a.I('s_lshl_b32 s24, s24, 4')
    a.I('v_lshrrev_b32 v1, 4, v0'); a.I('v_add_u32 v1, s24, v1')
    a.I('v_and_b32 v2, 15, v0')
    a.I('s_movk_i32 s25, 1152'); a.I('v_mul_lo_u32 v3, v1, s25'); a.I('v_lshl_add_u32 v3, v2, 4, v3')
    a.I('v_cmp_gt_u32 vcc, 8, v2'); a.I('v_mov_b32 v5, 0x7f000000'); a.I('v_cndmask_b32 v10, v5, v3, vcc')
    a.I('s_waitcnt lgkmcnt(0)')
    srd(a, 12, 6, 7, S*1152)
    toks = [a.vmem(f'buffer_load_dwordx4 {r4(20+4*i)}, {"v3" if i < 4 else "v10"}, s[12:15], 0 offen offset:{i*256}') for i in range(5)]
    srd(a, 16, 4, 5, WS.NF_SZ, WS.NF); srd(a, 20, 4, 5, WS.XF_SZ, WS.XF)
    a.I('v_lshrrev_b32 v4, 4, v1'); a.I('v_mul_u32_u24 v4, 18, v4')
    a.I('v_lshrrev_b32 v5, 2, v2'); a.I('v_add_u32 v4, v4, v5'); a.I('v_lshlrev_b32 v4, 6, v4')
    a.I('v_and_b32 v5, 1, v2'); a.I('v_lshl_add_u32 v4, v5, 5, v4')
    a.I('v_and_b32 v5, 15, v1'); a.I('v_add_u32 v4, v4, v5'); a.I('v_lshlrev_b32 v4, 4, v4')
    a.I('v_bfe_u32 v5, v2, 1, 1'); a.I('v_lshl_add_u32 v4, v5, 3, v4')
    a.I('v_cmp_gt_u32 vcc, 8, v2'); a.I('v_mov_b32 v5, 0x7f000000'); a.I('v_cndmask_b32 v11, v5, v4, vcc')
    a.I('v_mov_b32 v6, 0'); a.I('v_mov_b32 v7, 0'); a.I('s_mov_b32 s26, 0')
    U = 44
    for i in range(5):
        a.wait(vm=toks[i])
        ad = 'v4' if i < 4 else 'v11'
        a.vmem(f'buffer_store_dwordx2 {r2(20+4*i)}, {ad}, s[20:23], s26 offen')
        a.vmem(f'buffer_store_dwordx2 {r2(22+4*i)}, {ad}, s[20:23], s26 offen offset:256')
        if i < 4: a.I('s_add_u32 s26, s26, 4096')
        for j in range(4):
            w = f'v{20+4*i+j}'; lo, hi = U+8*i+2*j, U+8*i+2*j+1
            a.I(f'v_lshlrev_b32 v{lo}, 16, {w}'); a.I(f'v_and_b32 v{hi}, 0xffff0000, {w}')
            a.I(f'v_add_f32 v6, v6, v{lo}'); a.I(f'v_fmac_f32 v7, v{lo}, v{lo}'); a.I(f'v_add_f32 v6, v6, v{hi}'); a.I(f'v_fmac_f32 v7, v{hi}, v{hi}')
    for dpp in ('quad_perm:[1,0,3,2]', 'quad_perm:[2,3,0,1]', 'row_half_mirror', 'row_mirror'):
        a.I(f'v_add_f32_dpp v6, v6, v6 {dpp} row_mask:0xf bank_mask:0xf')
        a.I(f'v_add_f32_dpp v7, v7, v7 {dpp} row_mask:0xf bank_mask:0xf')
    a.I(f'v_mul_f32 v6, {hexf(1.0/576)}, v6'); a.I(f'v_mul_f32 v7, {hexf(1.0/576)}, v7')
    a.I('v_fma_f32 v7, -v6, v6, v7'); a.I('v_max_f32 v7, 0, v7'); a.I(f'v_add_f32 v7, {hexf(1e-5)}, v7'); a.I('v_rsq_f32 v7, v7')
    a.I('v_mul_f32 v6, v6, v7'); a.I('v_sub_f32 v6, 0, v6')
    for i in range(5):
        for j in range(8): a.I(f'v_fma_f32 v{U+8*i+j}, v{U+8*i+j}, v7, v6')
    a.I('s_mov_b32 s26, 0')
    for i in range(5):
        d = 84 + (i % 2)*4
        for j in range(4): a.I(f'v_cvt_pk_bf16_f32 v{d+j}, v{U+8*i+2*j}, v{U+8*i+2*j+1}')
        ad = 'v4' if i < 4 else 'v11'
        a.vmem(f'buffer_store_dwordx2 {r2(d)}, {ad}, s[16:19], s26 offen')
        a.vmem(f'buffer_store_dwordx2 {r2(d+2)}, {ad}, s[16:19], s26 offen offset:256')
        if i < 4: a.I('s_add_u32 s26, s26, 4096')
    a.I('s_endpgm')
    a.label('K0_W')
    a.I(f's_load_dwordx2 s[30:31], s[0:1], {A_WQKV}')
    a.I(f's_sub_u32 s33, s2, {72+NL}'); a.I('s_and_b32 s37, s33, 1'); a.I('s_bfe_u32 s35, s33, 0x20001'); a.I('s_lshr_b32 s36, s33, 3')
    a.I('s_mul_i32 s25, s35, 216'); a.I('v_add_u32 v1, s25, v0'); a.I('v_lshlrev_b32 v1, 1, v1'); a.I('v_min_u32 v1, 1726, v1')
    a.I('v_lshlrev_b32 v13, 1, v1')
    a.I(f's_mul_i32 s27, s36, {32*3456}'); a.I(f's_mul_i32 s28, s37, {8*3456}'); a.I('s_add_u32 s27, s27, s28')
    a.I('s_waitcnt lgkmcnt(0)')
    srd(a, 12, 30, 31, 576*3456)
    a.I('s_movk_i32 s61, 216'); a.I('v_cmp_gt_u32 vcc, s61, v0'); a.I('s_and_saveexec_b64 s[62:63], vcc'); a.I('s_cbranch_execz K0_END')
    toks = []
    for g in range(2):
        for i in range(8):
            a.I(f's_add_u32 s38, s27, {PERM_ROWS(g, i)*3456}')
            a.vmem(f'buffer_load_dword v{20+g*8+i}, v13, s[12:15], s38 offen')
        toks.append(a.vm)
    qkv_dest(a)
    srd(a, 16, 4, 5, WS.WQKVF_SZ, WS.WQKVF)
    a.I(f's_mul_i32 s28, s36, {9*1024}'); a.I('s_lshl_b32 s29, s37, 9'); a.I('s_add_u32 s28, s28, s29')
    a.I('s_mov_b32 s65, 0x05040100'); a.I('s_mov_b32 s66, 0x07060302')
    for g in range(2):
        a.wait(vm=toks[g])
        b = 20 + g*8; d = 40 + g*8
        for q in range(4):
            a.I(f'v_perm_b32 v{d+q}, v{b+2*q+1}, v{b+2*q}, s65'); a.I(f'v_perm_b32 v{d+4+q}, v{b+2*q+1}, v{b+2*q}, s66')
        a.vmem(f'buffer_store_dwordx4 {r4(d)}, v2, s[16:19], s28 offen offset:{g*256}')
        a.vmem(f'buffer_store_dwordx4 {r4(d+4)}, v2, s[16:19], s28 offen offset:{g*256+16}')
    a.label('K0_END')
    a.I('s_endpgm')
    return kernel_text('k0_kernel', a, 96), (NG+NL+NW, 256, 6144)

NP_W1, NP_W2, NP_WO = 90, 144, 18
NPREP = 1

def relayout4(a, src_srd, dst_srd, rowstride, rows_fn, vsrc, vdst, s_src, s_dst, nvalid, lab):
    a.I(f's_movk_i32 s61, {nvalid}'); a.I('v_cmp_gt_u32 vcc, s61, v0'); a.I('s_and_saveexec_b64 s[62:63], vcc'); a.I(f's_cbranch_execz {lab}')
    toks = []
    for g4 in range(4):
        for i in range(8):
            a.I(f's_add_u32 s64, {s_src}, {rows_fn(g4, i)*rowstride}')
            a.vmem(f'buffer_load_dwordx2 {r2(20+g4*16+2*i)}, {vsrc}, s[{src_srd}:{src_srd+3}], s64 offen')
        toks.append(a.vm)
    a.I('s_mov_b32 s65, 0x05040100'); a.I('s_mov_b32 s66, 0x07060302')
    for g4 in range(4):
        a.wait(vm=toks[g4])
        b = 20 + g4*16; d = 90 + (g4 % 2)*16
        for cpair in range(2):
            for q in range(4):
                a.I(f'v_perm_b32 v{d+cpair*8+q}, v{b+2*(2*q+1)+cpair}, v{b+2*(2*q)+cpair}, s65')
                a.I(f'v_perm_b32 v{d+cpair*8+4+q}, v{b+2*(2*q+1)+cpair}, v{b+2*(2*q)+cpair}, s66')
        for z in range(4):
            a.vmem(f'buffer_store_dwordx4 {r4(d+4*z)}, {vdst}, s[{dst_srd}:{dst_srd+3}], {s_dst} offen offset:{g4*256+16*z}')
    a.label(lab)

def prep_body(a, su, L):
    a.I(f's_branch {L}_FIN')
    a.label(f'{L}_FIN')
    a.I('v_readfirstlane_b32 s70, v0'); a.I('s_cmp_ge_u32 s70, 256'); a.I(f's_cbranch_scc1 {L}_X')
    a.I('s_waitcnt lgkmcnt(0)')
    srd(a, 12, 4, 5, WS.MODP_SZ, WS.MODP); srd(a, 16, 4, 5, WS.MOD_SZ, WS.MOD)
    srd(a, 20, 4, 5, WS.TAB2_SZ, WS.TAB2); srd(a, 24, 4, 5, WS.G2_SZ, WS.G2)
    a.I('v_lshlrev_b32 v1, 2, v0')
    for i in range(14):
        a.I(f's_mov_b32 s70, {i*1024}'); a.vmem(f'buffer_load_dword v{20+i}, v1, s[12:15], s70 offen')
        a.I(f's_mov_b32 s71, {i*1024 + 3456*4}'); a.vmem(f'buffer_load_dword v{40+i}, v1, s[12:15], s71 offen')
    a.I('s_waitcnt vmcnt(0)')
    for i in range(14):
        a.I(f'v_add_f32 v{20+i}, v{20+i}, v{40+i}'); bf16_round_f32(a, f'v{20+i}', f'v{20+i}')
        a.I(f's_mov_b32 s70, {i*1024}'); a.vmem(f'buffer_store_dword v{20+i}, v1, s[16:19], s70 offen')
    for i in range(3):
        a.I(f's_mov_b32 s70, {(1728+256*i)*4}'); a.vmem(f'buffer_load_dword v60, v1, s[12:15], s70 offen')
        a.I(f's_mov_b32 s70, {(1728+256*i+3456)*4}'); a.vmem(f'buffer_load_dword v61, v1, s[12:15], s70 offen')
        a.I(f's_mov_b32 s70, {(2304+256*i)*4}'); a.vmem(f'buffer_load_dword v62, v1, s[12:15], s70 offen')
        a.I(f's_mov_b32 s70, {(2304+256*i+3456)*4}'); a.vmem(f'buffer_load_dword v63, v1, s[12:15], s70 offen')
        a.I('s_waitcnt vmcnt(0)')
        a.I('v_add_f32 v60, v60, v61'); bf16_round_f32(a, 'v60', 'v60')
        a.I('v_add_f32 v62, v62, v63'); bf16_round_f32(a, 'v62', 'v62'); a.I('v_add_f32 v62, 1.0, v62'); bf16_round_f32(a, 'v62', 'v62')
        a.I(f'v_add_u32 v3, {256*i}, v0')
        a.I('v_lshrrev_b32 v4, 5, v3'); a.I('v_lshlrev_b32 v4, 2, v4'); a.I('v_bfe_u32 v5, v3, 2, 2'); a.I('v_add_u32 v4, v4, v5'); a.I('v_lshlrev_b32 v4, 4, v4')
        a.I('v_bfe_u32 v5, v3, 4, 1'); a.I('v_lshl_add_u32 v4, v5, 2, v4'); a.I('v_and_b32 v5, 3, v3'); a.I('v_add_u32 v4, v4, v5'); a.I('v_lshlrev_b32 v4, 2, v4')
        a.I('s_movk_i32 s70, 576'); a.I('v_cmp_gt_u32 vcc, s70, v3'); a.I('s_and_saveexec_b64 s[62:63], vcc')
        a.vmem('buffer_store_dword v62, v4, s[20:23], 0 offen'); a.vmem('buffer_store_dword v60, v4, s[20:23], 0 offen offset:32')
        a.I('v_lshlrev_b32 v5, 2, v3'); a.vmem('buffer_store_dword v62, v5, s[24:27], 0 offen')
        a.I('s_mov_b64 exec, s[62:63]')
    a.I('s_endpgm')

    a.label(f'{L}_X')
```

```python
from common import *
import os

S0, S1, O, CI, P, QLO, QHI = 16, 32, 48, 64, 80, 88, 92
KLO = (96, 100); KHI = (104, 108); VF = (112, 120)
IMG = 64*KV_TILE
SPARE = IMG
def r(b, n): return f'v[{b}:{b+n-1}]'
def mf(d, a_, b_, c): return f'v_mfma_f32_32x32x16_bf16 {r(d,16)}, {r(a_,4)}, {r(b_,4)}, {c}'

NFR1, NFR2, NFRO = 288*18, 36*144, 36*18
NFR = NFR1 + NFR2 + NFRO
def prep_issue(a, L):
    a.I('s_mov_b32 s60, -1')
    a.I(f's_cmp_ge_u32 s52, {NFR}'); a.I(f's_cbranch_scc1 {L}_E')
    a.I('v_lshrrev_b32 v9, 1, v1')
    a.I('v_and_b32 v10, 1, v1'); a.I('v_lshlrev_b32 v10, 4, v10')
    a.I(f's_cmp_ge_u32 s52, {NFR1+NFR2}'); a.I(f's_cbranch_scc1 {L}_O')
    a.I(f's_cmp_ge_u32 s52, {NFR1}'); a.I(f's_cbranch_scc1 {L}_2')
    sdiv(a, 's53', 's52', 288, NFR1-1); a.I('s_mul_i32 s54, s53, 288'); a.I('s_sub_u32 s54, s52, s54')
    sdiv(a, 's55', 's54', 3, 287); a.I('s_mul_i32 s61, s55, 3'); a.I('s_sub_u32 s61, s54, s61')
    a.I('s_mul_i32 s60, s55, 54'); a.I('s_mul_i32 s62, s53, 3'); a.I('s_add_u32 s60, s60, s62'); a.I('s_add_u32 s60, s60, s61'); a.I('s_lshl_b32 s60, s60, 10')
    srd(a, 56, 4, 5, WS.W1S_SZ, WS.W1S); srd(a, 64, 46, 47, 576*9216)
    a.I('v_mul_u32_u24 v9, 9216, v9'); a.I(f's_mul_i32 s61, s53, {32*9216}'); a.I('s_lshl_b32 s62, s54, 5'); a.I('s_add_u32 s61, s61, s62')
    a.I(f's_branch {L}_G')
    a.label(f'{L}_2')
    a.I(f's_sub_u32 s52, s52, {NFR1}')
    sdiv(a, 's53', 's52', 36, NFR2-1); a.I('s_mul_i32 s54, s53, 36'); a.I('s_sub_u32 s54, s52, s54')
    sdiv(a, 's55', 's54', 3, 35); a.I('s_mul_i32 s61, s55, 3'); a.I('s_sub_u32 s61, s54, s61')
    sdiv(a, 's62', 's53', 18, 143); a.I('s_mul_i32 s63, s62, 18'); a.I('s_sub_u32 s63, s53, s63')
    a.I('s_mul_i32 s60, s62, 12'); a.I('s_add_u32 s60, s60, s55'); a.I('s_mul_i32 s60, s60, 18'); a.I('s_add_u32 s60, s60, s63'); a.I('s_mul_i32 s60, s60, 3')
    a.I('s_add_u32 s60, s60, s61'); a.I('s_lshl_b32 s60, s60, 10')
    srd(a, 56, 4, 5, WS.W2S_SZ, WS.W2S); srd(a, 64, 48, 49, F*1152)
    a.I('v_mul_u32_u24 v9, 1152, v9'); a.I(f's_mul_i32 s61, s53, {32*1152}'); a.I('s_lshl_b32 s62, s54, 5'); a.I('s_add_u32 s61, s61, s62')
    a.I(f's_branch {L}_G')
    a.label(f'{L}_O')
    a.I(f's_sub_u32 s52, s52, {NFR1+NFR2}')
    sdiv(a, 's53', 's52', 36, NFRO-1); a.I('s_mul_i32 s54, s53, 36'); a.I('s_sub_u32 s54, s52, s54')
    sdiv(a, 's55', 's54', 9, 35); a.I('s_mul_i32 s61, s55, 9'); a.I('s_sub_u32 s61, s54, s61')
    a.I('s_mul_i32 s60, s55, 18'); a.I('s_add_u32 s60, s60, s53'); a.I('s_mul_i32 s60, s60, 9'); a.I('s_add_u32 s60, s60, s61'); a.I('s_lshl_b32 s60, s60, 10')
    srd(a, 56, 4, 5, WS.WOF_SZ, WS.WOF); srd(a, 64, 50, 51, 576*1152)
    a.I('v_bfe_u32 v11, v9, 2, 2')
    a.I('s_cmp_ge_u32 s53, 16'); a.I(f's_cbranch_scc1 {L}_O2')
    a.I('v_lshrrev_b32 v12, 1, v11'); a.I('v_mul_u32_u24 v12, 18, v12'); a.I('v_and_b32 v11, 1, v11'); a.I('v_lshl_add_u32 v12, v11, 2, v12')
    a.I('v_lshrrev_b32 v11, 4, v9'); a.I('v_lshl_add_u32 v12, v11, 3, v12'); a.I('v_and_b32 v11, 3, v9'); a.I('v_add_u32 v9, v12, v11')
    a.I('s_mul_i32 s61, s53, 36'); a.I(f's_branch {L}_O3')
    a.label(f'{L}_O2')
    a.I('v_mul_u32_u24 v12, 72, v11'); a.I('v_lshrrev_b32 v11, 4, v9'); a.I('v_lshlrev_b32 v11, 1, v11'); a.I('v_bfe_u32 v13, v9, 1, 1'); a.I('v_add_u32 v11, v11, v13')
    a.I('v_mul_u32_u24 v11, 18, v11'); a.I('v_add_u32 v12, v12, v11'); a.I('v_and_b32 v11, 1, v9'); a.I('v_add_u32 v12, v12, v11'); a.I('v_add_u32 v9, 16, v12')
    a.I('s_sub_u32 s61, s53, 16'); a.I('s_mul_i32 s61, s61, 288')
    a.label(f'{L}_O3')
    a.I('v_mul_u32_u24 v9, 1152, v9'); a.I('s_mul_i32 s61, s61, 1152'); a.I('s_lshl_b32 s62, s54, 5'); a.I('s_add_u32 s61, s61, s62')
    a.label(f'{L}_G')
    a.I('v_add_u32 v9, v9, v10')
    a.I('s_lshl_b32 s62, s20, 10'); a.I(f's_add_u32 m0, s62, {SPARE}')
    a.I('buffer_load_dwordx4 v9, s[64:67], s61 offen lds')
    a.label(f'{L}_E')

def prep_consume(a, L):
    a.I('s_cmp_eq_u32 s60, -1'); a.I(f's_cbranch_scc1 {L}_E')
    a.I('s_waitcnt vmcnt(0)')
    a.I('v_lshrrev_b32 v9, 2, v1'); a.I('v_lshlrev_b32 v9, 5, v9'); a.I('v_and_b32 v10, 3, v1'); a.I('v_lshl_add_u32 v9, v10, 3, v9')
    a.I('s_lshl_b32 s62, s20, 10'); a.I(f's_add_u32 s62, s62, {SPARE}'); a.I('v_add_u32 v9, s62, v9')
    a.I('ds_read_b64_tr_b16 v[12:13], v9'); a.I('ds_read_b64_tr_b16 v[14:15], v9 offset:512')
    a.I('s_waitcnt lgkmcnt(0)')
    a.I('buffer_store_dwordx4 v[12:15], v5, s[56:59], s60 offen ' + os.environ.get('PREPFLAG', ''))
    a.label(f'{L}_E')

def k2():
    a = Asm()
    a.I('s_cmp_ge_u32 s2, 256'); a.I('s_cbranch_scc1 K2_END')
    a.I(f's_load_dwordx2 s[4:5], s[0:1], {A_WS}')
    a.I(f's_load_dwordx2 s[46:47], s[0:1], {A_W1}')
    a.I(f's_load_dwordx2 s[48:49], s[0:1], {A_W2}')
    a.I(f's_load_dwordx2 s[50:51], s[0:1], {A_WO}')
    a.I('v_lshrrev_b32 v1, 6, v0'); a.I('v_readfirstlane_b32 s20, v1')
    a.I('v_and_b32 v1, 63, v0')
    a.I('s_and_b32 s21, s2, 7'); a.I('s_lshl_b32 s21, s21, 2'); a.I('s_bfe_u32 s22, s2, 0x20003'); a.I('s_add_u32 s21, s21, s22')
    a.I('s_lshr_b32 s22, s2, 5')
    a.I('s_and_b32 s23, s20, 7')
    a.I('s_lshr_b32 s24, s20, 3')
    a.I('s_lshl_b32 s25, s22, 3'); a.I('s_add_u32 s25, s25, s23')
    a.I('s_mov_b32 s40, 0')
    a.I('v_lshlrev_b32 v5, 4, v1')
    a.I('v_and_b32 v6, 31, v1'); a.I('v_lshlrev_b32 v7, 2, v6'); a.I('v_lshlrev_b32 v8, 2, v1')
    a.I('s_mul_i32 s44, s24, 72'); a.I('s_add_u32 s44, s44, s23'); a.I('s_lshl_b32 s44, s44, 10')
    a.I('s_waitcnt lgkmcnt(0)')
    a.I(f's_mul_i32 s26, s21, {IMG}')
    a.I('s_add_u32 s8, s4, s26'); a.I('s_addc_u32 s9, s5, 0')
    a.I(f's_add_u32 s8, s8, {WS.KVIMG}'); a.I('s_addc_u32 s9, s9, 0')
    a.I(f's_mov_b32 s10, {IMG}'); a.I('s_mov_b32 s11, 0x00020000')
    def dma(j):
        a.I(f's_add_u32 s26, s44, {j*8192}')
        a.I('s_mov_b32 m0, s26')
        a.vmem('buffer_load_dwordx4 v5, s[8:11], s26 offen lds')
    a.label('K2_RESTART')
    dma(0); dma(1)
    a.I('s_cmp_lg_u32 s40, 0'); a.I('s_cbranch_scc1 K2_SKIPQ0')
    srd(a, 12, 4, 5, WS.QIMG_SZ, WS.QIMG)
    srd(a, 16, 4, 5, WS.KMAX_SZ, WS.KMAX)
    a.I('s_lshl_b32 s26, s21, 6'); a.I('s_add_u32 s26, s26, s25'); a.I(f's_mul_i32 s26, s26, {QT_BYTES}')
    a.vmem(f'buffer_load_dwordx4 {r(QLO,4)}, v5, s[12:15], s26 offen')
    a.vmem(f'buffer_load_dword v{QHI}, v7, s[12:15], s26 offen offset:1024')
    a.I('s_lshl_b32 s26, s21, 8')
    a.vmem('buffer_load_dword v9, v8, s[16:19], s26 offen')
    a.label('K2_SKIPQ0')
    stamp(a, 0)
    a.I(f's_mul_i32 s27, s24, {32*KV_TILE}')
    a.I('v_add_u32 v2, s27, v5'); a.I('v_add_u32 v3, s27, v7')
    a.I('v_min_u32 v4, 17, v6'); a.I('v_lshrrev_b32 v10, 5, v1'); a.I('v_mul_u32_u24 v11, 18, v10')
    a.I('v_add_u32 v4, v4, v11'); a.I('v_lshlrev_b32 v4, 4, v4'); a.I('v_add_u32 v4, s27, v4')
    for j in range(16): a.I(f'v_mov_b32 v{O+j}, 0')
    a.I('v_cmp_eq_u32 vcc, 18, v6'); a.I('v_mov_b32 v12, 0x3f803f80'); a.I('v_cndmask_b32 v12, 0, v12, vcc')
    for j in range(16): a.I(f'v_mov_b32 v{VF[0]+j}, v12')
    a.I('s_mov_b32 s42, 0x3ffff'); a.I('s_mov_b32 s43, 0x3ffff')
    a.I('s_cmp_lg_u32 s40, 0'); a.I('s_cbranch_scc1 K2_SKIPQ')
    for j in range(1, 4): a.I(f'v_mov_b32 v{QHI+j}, 0')
    for b in KHI:
        for j in range(1, 4): a.I(f'v_mov_b32 v{b+j}, 0')
    a.I('s_waitcnt vmcnt(0)')
    a.I('v_cmp_eq_u32 vcc, 0, v10')
    a.I(f'v_cndmask_b32 v{QHI}, 0, v{QHI}, vcc')
    a.I('v_mov_b32 v12, 0')
    for q in [QLO, QLO+1, QLO+2, QLO+3, QHI]:
        a.I(f'v_lshlrev_b32 v13, 16, v{q}'); a.I('v_fmac_f32 v12, v13, v13')
        a.I(f'v_and_b32 v13, 0xffff0000, v{q}'); a.I('v_fmac_f32 v12, v13, v13')
    a.I('v_mov_b32 v13, v12'); a.I('v_permlane32_swap_b32 v12, v13'); a.I('v_add_f32 v12, v12, v13')
    for dpp in ('quad_perm:[1,0,3,2]', 'quad_perm:[2,3,0,1]', 'row_half_mirror', 'row_mirror'):
        a.I(f'v_max_f32_dpp v9, v9, v9 {dpp} row_mask:0xf bank_mask:0xf')
    a.I('v_mov_b32 v13, v9'); a.I('v_permlane16_swap_b32 v9, v13'); a.I('v_max_f32 v9, v9, v13')
    a.I('v_mov_b32 v13, v9'); a.I('v_permlane32_swap_b32 v9, v13'); a.I('v_max_f32 v9, v9, v13')
    a.I('v_mul_f32 v12, v12, v9'); a.I('v_sqrt_f32 v12, v12')
    a.I(f'v_mul_f32 v12, {hexf(-1.015625)}, v12')
    for j in range(16): a.I(f'v_mov_b32 v{CI+j}, v12')
    a.label('K2_SKIPQ')
    stamp(a, 1)
    a.I('s_cmp_eq_u32 s40, 0'); a.I('s_cbranch_scc1 K2_MAIN')
    for j in range(2, 9): dma(j)
    a.I('s_waitcnt vmcnt(0) lgkmcnt(0)'); a.I('s_barrier')
    a.I('v_mov_b32 v12, 0xff800000')
    a.I('v_mov_b32 v14, v2'); a.I('v_mov_b32 v15, v3')
    a.I('s_mov_b32 s28, 32')
    a.label('K2_MAXLOOP')
    a.I(f'ds_read_b128 {r(KLO[0],4)}, v14'); a.I(f'ds_read_b32 v{KHI[0]}, v15 offset:1024')
    a.I('s_waitcnt lgkmcnt(0)')
    a.I(mf(S0, KLO[0], QLO, '0')); a.I(mf(S0, KHI[0], QHI, r(S0,16)))
    for j in range(0, 16, 2): a.I(f'v_max3_f32 v12, v12, v{S0+j}, v{S0+j+1}')
    a.I(f'v_add_u32 v14, {KV_TILE}, v14'); a.I(f'v_add_u32 v15, {KV_TILE}, v15')
    a.I('s_sub_u32 s28, s28, 1'); a.I('s_cmp_lg_u32 s28, 0'); a.I('s_cbranch_scc1 K2_MAXLOOP')
    a.I('v_mov_b32 v13, v12'); a.I('v_permlane32_swap_b32 v12, v13'); a.I('v_max_f32 v12, v12, v13')
    a.I('s_lshl_b32 s28, s20, 8'); a.I(f's_add_u32 s28, s28, {SPARE}'); a.I('v_add_u32 v14, s28, v8')
    a.I('ds_write_b32 v14, v12')
    a.I('s_waitcnt lgkmcnt(0)'); a.I('s_barrier')
    a.I('s_xor_b32 s28, s20, 8'); a.I('s_lshl_b32 s28, s28, 8'); a.I(f's_add_u32 s28, s28, {SPARE}'); a.I('v_add_u32 v14, s28, v8')
    a.I('ds_read_b32 v13, v14'); a.I('s_waitcnt lgkmcnt(0)')
    a.I('v_max_f32 v12, v12, v13'); a.I('v_sub_f32 v12, 0, v12')
    for j in range(16): a.I(f'v_mov_b32 v{CI+j}, v12')
    a.label('K2_MAIN')
    a.I('s_waitcnt vmcnt(0) lgkmcnt(0)'); a.I('s_barrier')
    stamp(a, 2)
    def rdK(t, buf):
        a.I(f'ds_read_b128 {r(KLO[buf],4)}, v2 offset:{t*KV_TILE}')
        a.I(f'ds_read_b32 v{KHI[buf]}, v3 offset:{t*KV_TILE+1024}')
    def rdV(t, buf):
        a.I('s_mov_b64 exec, s[42:43]')
        a.I(f'ds_read_b128 {r(VF[buf],4)}, v4 offset:{t*KV_TILE+VT_OFF}')
        a.I(f'ds_read_b128 {r(VF[buf]+4,4)}, v4 offset:{t*KV_TILE+VT_OFF+576}')
        a.I('s_mov_b64 exec, -1')
    rdK(0, 0); rdK(1, 1); rdV(0, 0)
    for j in range(4): a.I(f'v_mov_b32 v{P+4+j}, 0')
    a.I('s_waitcnt lgkmcnt(0)')
    a.I(mf(S0, KLO[0], QLO, r(CI,16))); a.I(mf(S0, KHI[0], QHI, r(S0,16)))
    U = 8
    def tile(t, extra=None):
        cur = (S0, S1)[t & 1]; nxt = (S0, S1)[(t+1) & 1]
        kb = (t+1) & 1
        a.I('s_waitcnt lgkmcnt(0)')
        a.I(mf(nxt, KLO[kb], QLO, r(CI,16)))
        a.I(mf(O, VF[(t+1) & 1]+4, P+4, r(O,16)))
        for j in range(8): a.I(f'v_exp_f32 v{cur+j}, v{cur+j}')
        a.I(mf(nxt, KHI[kb], QHI, r(nxt,16)))
        rdK(t+2, t & 1); rdV(t+1, (t+1) & 1)
        if extra: extra()
        for j in range(4): a.I(f'v_cvt_pk_bf16_f32 v{P+j}, v{cur+2*j}, v{cur+2*j+1}')
        for j in range(8): a.I(f'v_exp_f32 v{cur+8+j}, v{cur+8+j}')
        a.I(mf(O, VF[t & 1], P, r(O,16)))
        for j in range(4): a.I(f'v_cvt_pk_bf16_f32 v{P+4+j}, v{cur+8+2*j}, v{cur+8+2*j+1}')
    PF = 81
    a.I('s_setprio 3')
    dl = [[2, 3], [4, 5], [6, 7], [8]]
    for t in range(U):
        if t == 5:
            a.I('s_waitcnt vmcnt(0)'); a.I('s_barrier')
        if t == 5 and os.environ.get('NOCPF', '0') != '1':
            a.I('s_cmp_ge_u32 s2, 8'); a.I('s_cbranch_scc1 K2_NCP')
            code_prefetch(a, 'k3_kernel', 16384, 's20', 'K2', vtmp=(12, 13, 14))
            a.label('K2_NCP')
        if t == 6:
            a.I('s_mul_i32 s52, s2, 48'); a.I('s_add_u32 s52, s52, s20'); a.I('s_mov_b32 s68, s52')
            prep_issue(a, 'K2_PI0')
        tile(t, (lambda t=t: [dma(j) for j in dl[t]]) if t < 4 else None)
    for v in (2, 3, 4): a.I(f'v_add_u32 v{v}, {U*KV_TILE}, v{v}')
    a.I('s_mov_b32 s28, 3')
    a.label('K2_LOOP')
    a.I('s_cmp_eq_u32 s28, 3'); a.I('s_cbranch_scc1 K2_P2')
    a.I('s_cmp_eq_u32 s28, 2'); a.I('s_cbranch_scc1 K2_P1')
    a.I('s_setprio 0'); a.I('s_branch K2_PD')
    a.label('K2_P1'); a.I('s_setprio 1'); a.I('s_branch K2_PD')
    a.label('K2_P2'); a.I('s_setprio 2')
    a.label('K2_PD')
    prep_consume(a, 'K2_PC')
    a.I('s_add_u32 s68, s68, 16'); a.I('s_mov_b32 s52, s68'); a.I('s_mov_b32 s60, -1')
    a.I('s_cmp_eq_u32 s28, 1'); a.I('s_cbranch_scc1 K2_PI1_E')
    prep_issue(a, 'K2_PI1')
    for t in range(U): tile(t)
    for v in (2, 3, 4): a.I(f'v_add_u32 v{v}, {U*KV_TILE}, v{v}')
    a.I('s_sub_u32 s28, s28, 1'); a.I('s_cmp_lg_u32 s28, 0'); a.I('s_cbranch_scc1 K2_LOOP')
    a.I(mf(O, VF[1]+4, P+4, r(O,16)))
    stamp(a, 3)
    a.I('v_mov_b32 v12, 0'); a.I(f'v_mov_b32 v13, {SPARE}')
    a.I('s_cmp_lg_u32 s20, 0'); a.I('s_cbranch_scc1 K2_NZ'); a.I('ds_write_b32 v13, v12'); a.label('K2_NZ')
    a.I('s_waitcnt lgkmcnt(0)')
    a.I('s_barrier')
    a.I('s_mul_i32 s28, s23, 3072'); a.I('v_add_u32 v14, s28, v5')
    a.I('s_cmp_eq_u32 s24, 0'); a.I('s_cbranch_scc1 K2_M0')
    for j in range(3): a.I(f'ds_write_b128 v14, {r(O+4*j,4)} offset:{j*1024}')
    a.I('s_waitcnt lgkmcnt(0)')
    a.I('s_barrier')
    a.I('s_branch K2_M1')
    a.label('K2_M0')
    a.I('s_barrier')
    for j in range(3): a.I(f'ds_read_b128 {r(S0+4*j,4)}, v14 offset:{j*1024}')
    a.I('s_waitcnt lgkmcnt(0)')
    for j in range(12): a.I(f'v_add_f32 v{O+j}, v{O+j}, v{S0+j}')
    a.I(f'v_mov_b32 v12, v{O+10}'); a.I(f'v_permlane32_swap_b32 v{O+10}, v12')
    a.I(f's_mov_b32 s29, {hexf(2.0**-90)}')
    a.I(f'v_cmp_nle_f32 vcc, s29, v{O+10}')
    a.I('s_cmp_eq_u64 vcc, 0'); a.I('s_cbranch_scc1 K2_M1')
    a.I('v_mov_b32 v12, 1'); a.I(f'v_mov_b32 v13, {SPARE}'); a.I('ds_write_b32 v13, v12')
    a.I('s_waitcnt lgkmcnt(0)')
    a.label('K2_M1')
    a.I('s_barrier')
    a.I(f'v_mov_b32 v13, {SPARE}'); a.I('ds_read_b32 v12, v13'); a.I('s_waitcnt lgkmcnt(0)')
    a.I('v_readfirstlane_b32 s29, v12')
    a.I('s_cmp_eq_u32 s29, 0'); a.I('s_cbranch_scc1 K2_FIN')
    a.I('s_cmp_lg_u32 s40, 0'); a.I('s_cbranch_scc1 K2_FIN')
    a.I('s_mov_b32 s40, 1')
    a.I('s_barrier')
    a.I('s_branch K2_RESTART')
    a.label('K2_FIN')
    stamp(a, 4)
    a.I('s_cmp_lg_u32 s24, 0'); a.I('s_cbranch_scc1 K2_END')
    a.I(f'v_rcp_f32 v12, v{O+10}')
    for j in range(10): a.I(f'v_mul_f32 v{O+j}, v{O+j}, v12')
    for j in range(5): a.I(f'v_cvt_pk_bf16_f32 v{S0+j}, v{O+2*j}, v{O+2*j+1}')
    srd(a, 12, 4, 5, WS.OF_SZ, WS.OF)
    a.I('v_bfe_u32 v12, v1, 4, 1'); a.I('s_lshl_b32 s28, s25, 1'); a.I('v_add_u32 v12, s28, v12')
    a.I('v_mul_u32_u24 v12, 18, v12'); a.I('v_lshlrev_b32 v12, 10, v12')
    a.I('v_and_b32 v13, 15, v1'); a.I('v_lshl_add_u32 v12, v13, 4, v12')
    a.I('v_lshrrev_b32 v14, 5, v1'); a.I('v_lshl_add_u32 v14, v14, 8, v12')
    a.I('s_lshr_b32 s28, s21, 1'); a.I('s_lshl_b32 s28, s28, 10'); a.I('s_and_b32 s29, s21, 1'); a.I('s_lshl_b32 s29, s29, 9'); a.I('s_add_u32 s28, s28, s29')
    a.vmem(f'buffer_store_dwordx4 {r(S0,4)}, v14, s[12:15], s28 offen')
    a.I('s_lshr_b32 s28, s21, 4'); a.I('s_add_u32 s28, s28, 16'); a.I('s_lshl_b32 s28, s28, 10')
    a.I('s_bfe_u32 s29, s21, 0x20002'); a.I('s_lshl_b32 s29, s29, 8'); a.I('s_add_u32 s28, s28, s29')
    a.I('s_and_b32 s29, s21, 3'); a.I('s_lshl_b32 s29, s29, 2'); a.I('s_add_u32 s28, s28, s29')
    a.I('s_mov_b32 exec_hi, 0')
    a.vmem(f'buffer_store_dword v{S0+4}, v12, s[12:15], s28 offen')
    a.label('K2_END')
    a.I('s_endpgm')
    return kernel_text('k2_kernel', a, 128), (256, 1024, 163840)
```

```python
from asmlib import Asm, Inst
import math

S, D, H, DH, F = 2048, 576, 32, 18, 4608
KS = 18
LOG2E = 1.4426950408889634
QSCALE = LOG2E / math.sqrt(18.0)

A_X, A_WQKV, A_WO, A_BX, A_W1, A_W2, A_C, A_WMOD, A_OUT, A_DBG, A_WS = [8*i for i in range(11)]

def align(x, a): return (x + a - 1) // a * a
class WS: pass
_off = 0
def region(name, size):
    global _off
    _off = align(_off, 4096)
    setattr(WS, name, _off); setattr(WS, name + '_SZ', size)
    _off += size
region('MODP', 2*3456*4)
region('MOD', 3456*4)
region('G2', 576*4)
region('TAB2', 4608)
region('NF', 128*KS*1024)
region('XF', 128*KS*1024)
region('WQKVF', 12*KS*9*1024)
region('WOF', 6*KS*6*1024)
region('W1S', 8*3*4*KS*3*1024)
region('W2S', 8*4*KS*9*1024)
region('UT1', 2*F*4)
QT_BYTES = 1152
KV_TILE = 2304
VT_OFF = 1152
DV = 18
region('QIMG', H*64*QT_BYTES)
region('KVIMG', H*64*KV_TILE)
region('KMAX', H*64*4)
region('OF', 128*KS*1024)
region('X1F', 128*KS*1024)
region('X1G', 128*KS*1024)
region('STAT2', S*6*8 + 4096)
region('PART', 8*64*36*1024)
WS_TOTAL = _off

def f32bits(x):
    import struct
    return struct.unpack('<I', struct.pack('<f', x))[0]

def srd(a, sreg, base_lo, base_hi, size, off=0):
    if off:
        a.I(f's_add_u32 s{sreg}, s{base_lo}, {off}')
        a.I(f's_addc_u32 s{sreg+1}, s{base_hi}, 0')
    else:
        a.I(f's_mov_b32 s{sreg}, s{base_lo}')
        a.I(f's_mov_b32 s{sreg+1}, s{base_hi}')
    a.I(f's_mov_b32 s{sreg+2}, {size}')
    a.I(f's_mov_b32 s{sreg+3}, 0x00020000')

import os
STAMP = os.environ.get('STAMP', '0') == '1'
STAMP_OFF = 240 << 20
KIDX = {}
def stamp(a, i):
    if STAMP:
        a.I(f's_memtime s[{80+2*i}:{81+2*i}]')

def add_stamps(a, name):
    from asmlib import Inst
    kidx = KIDX.setdefault(name, len(KIDX))
    items = a.items
    pre = f"""s_memrealtime s[96:97]
s_memtime s[78:79]
s_load_dwordx2 s[98:99], s[0:1], {A_WS}
v_readfirstlane_b32 s93, v0
s_lshr_b32 s93, s93, 6
s_lshl_b32 s92, s2, 4
s_add_u32 s93, s93, s92
s_lshl_b32 s93, s93, 5
s_add_u32 s93, s93, {STAMP_OFF + (kidx << 20)}
"""
    pre += "".join(f"s_mov_b32 s{80+2*i}, 0\n" for i in range(6))
    pre += "s_waitcnt lgkmcnt(0)\n" + "".join(f"s_mov_b32 s{80+2*i}, s78\n" for i in range(6))
    new = [('i', Inst(l)) for l in pre.strip().split('\n')]
    for it in items:
        if it[0] == 'i' and it[1].base == 's_endpgm':
            seq = """s_mov_b64 exec, 1
s_waitcnt vmcnt(0) lgkmcnt(0)
s_memrealtime s[94:95]
s_memtime s[90:91]
s_waitcnt lgkmcnt(0)
v_mov_b32 v0, s93
v_mov_b32 v2, s96
v_mov_b32 v3, s94
""" + "".join(f"s_sub_u32 s{80+2*i}, s{80+2*i}, s78\nv_mov_b32 v{4+i}, s{80+2*i}\n" for i in range(6)) + """global_store_dwordx4 v0, v[2:5], s[98:99]
global_store_dwordx4 v0, v[6:9], s[98:99] offset:16
"""
            for l in seq.strip().split('\n'): new.append(('i', Inst(l)))
        new.append(it)
    a.items = new

def kernel_text(name, a, vgprs, sgprs=100, accum=None, extra_desc=''):
    if STAMP: add_stamps(a, name)
    body, nn = a.finalize()
    if accum is None: accum = (vgprs + 3)//4*4
    txt = f""".text
.globl {name}
.p2align 8
.type {name},@function
{name}:
{body}"""
    desc = f""".amdhsa_kernel {name}
  .amdhsa_next_free_vgpr {vgprs}
  .amdhsa_next_free_sgpr {sgprs}
  .amdhsa_accum_offset {accum}
  .amdhsa_group_segment_fixed_size 0
  .amdhsa_kernarg_size 88
  .amdhsa_user_sgpr_count 2
  .amdhsa_user_sgpr_kernarg_segment_ptr 1
  .amdhsa_system_sgpr_workgroup_id_x 1
  .amdhsa_float_denorm_mode_32 3
  .amdhsa_float_denorm_mode_16_64 3
{extra_desc}.end_amdhsa_kernel
"""
    return txt, desc

def magic(d, xmax):
    for sh in range(8, 32):
        M = -(-(1 << sh) // d)
        if M >= (1 << 24) or xmax * M >= (1 << 32): continue
        if all((x * M) >> sh == x // d for x in range(xmax + 1)): return M, sh
    raise ValueError((d, xmax))

def vdiv(a, dst, src, d, xmax, stmp='s60'):
    M, sh = magic(d, xmax)
    a.I(f's_mov_b32 {stmp}, {M}')
    a.I(f'v_mul_u32_u24 {dst}, {stmp}, {src}')
    a.I(f'v_lshrrev_b32 {dst}, {sh}, {dst}')
def sdiv(a, dst, src, d, xmax):
    M, sh = magic(d, xmax)
    a.I(f's_mul_i32 {dst}, {src}, {M}')
    a.I(f's_lshr_b32 {dst}, {dst}, {sh}')
def r4(b, p='v'): return f'{p}[{b}:{b+3}]'
def r2(b, p='v'): return f'{p}[{b}:{b+1}]'
def hexf(x): return hex(f32bits(x))
def bf16_round_f32(a, dst, src):
    a.I(f'v_cvt_pk_bf16_f32 {dst}, {src}, {src}')
    a.I(f'v_lshlrev_b32 {dst}, 16, {dst}')

def code_prefetch(a, first_label, nbytes, wave_sgpr, tag, vtmp=(60, 61, 62)):
    nw = -(-nbytes // 8192)
    L = f'CPF_{tag}'
    a.I(f's_cmp_ge_u32 {wave_sgpr}, {nw}'); a.I(f's_cbranch_scc1 {L}_E')
    a.I('s_getpc_b64 s[72:73]')
    a.label(f'{L}_PC')
    a.I(f's_add_u32 s72, s72, {first_label}-{L}_PC'); a.I('s_addc_u32 s73, s73, 0')
    a.I(f's_lshl_b32 s74, {wave_sgpr}, 13'); a.I('s_add_u32 s72, s72, s74'); a.I('s_addc_u32 s73, s73, 0')
    a.I(f'v_and_b32 v{vtmp[0]}, 63, v0'); a.I(f'v_lshlrev_b32 v{vtmp[0]}, 7, v{vtmp[0]}')
    a.I(f'v_mov_b32 v{vtmp[1]}, s73'); a.I(f'v_add_co_u32 v{vtmp[0]}, vcc, s72, v{vtmp[0]}'); a.I(f'v_addc_co_u32 v{vtmp[1]}, vcc, 0, v{vtmp[1]}, vcc')
    a.I(f'global_load_dword v{vtmp[2]}, v[{vtmp[0]}:{vtmp[1]}], off')
    a.vm -= 1
    a.label(f'{L}_E')
```

```python
from common import *
import os

def wave_setup(a):
    a.I('v_lshrrev_b32 v1, 6, v0')
    a.I('v_readfirstlane_b32 s20, v1')
    a.I('v_and_b32 v1, 63, v0')
    a.I('v_lshlrev_b32 v2, 4, v1')

def apply_gs(a, raw, dst, T, G, Sx, emit=None):
    L = []
    for q in range(4):
        L.append(f'v_lshlrev_b32 v{T+2*q}, 16, {raw(q)}')
        L.append(f'v_and_b32 v{T+2*q+1}, 0xffff0000, {raw(q)}')
    for q in range(8):
        L.append(f'v_fma_f32 v{T+q}, v{T+q}, v{G+q}, v{Sx+q}')
    for q in range(4):
        L.append(f'v_cvt_pk_bf16_f32 {dst(q)}, v{T+2*q}, v{T+2*q+1}')
    return L

ACC = 16
WF, NWF = 88, 12
XB = 136
XR, XRING, XD = 16, 8, 7
GV, TT, XO, MT = 80, 112, 120, 136
NSLOT, STAGE = 5, 18432
XOFF1 = NSLOT*STAGE
GTOFF = XOFF1 + 6*8192
K1_LDS = GTOFF + 4608
def acc(nb, tb): return ACC + (nb*2 + tb)*4

def k1_consumer(a, swap):
    nks = 18
    ltok, xtok = {}, {}
    def wreg(z): return WF + (z % NWF)*4
    def wread(z):
        ks, nb = divmod(z, 9)
        st = ks // 2; slot = st % NSLOT
        base = 6 + slot // 3
        off = (slot % 3)*STAGE + ((ks & 1)*9 + nb)*1024
        ltok[z] = a.lds(f'ds_read_b128 {r4(wreg(z))}, v{base} offset:{off}')
    def xread(ks):
        for tb in range(2):
            xtok[ks] = a.lds(f'ds_read_b128 {r4(XB+(ks & 1)*8+tb*4)}, v{9+tb} offset:{(ks % 6)*8192}')
    a.I('s_barrier')
    stamp(a, 1)
    xread(0)
    for z in range(9): wread(z)
    nz = 9
    for ks in range(nks):
        if ks == 6: stamp(a, 4)
        if ks & 1 and ks + 1 < nks: a.I('s_barrier')
        if ks + 1 < nks: xread(ks + 1)
        xb = XB + (ks & 1)*8
        for nb in range(9):
            z = ks*9 + nb
            if nb == 0: a.wait(lg=max(ltok[z+2], xtok[ks]))
            elif nb % 3 == 0: a.wait(lg=ltok[z+2])
            wf = wreg(z)
            for tb in range(2):
                c = '0' if ks == 0 else r4(acc(nb, tb))
                if swap: a.I(f'v_mfma_f32_16x16x32_bf16 {r4(acc(nb,tb))}, {r4(xb+tb*4)}, {r4(wf)}, {c}')
                else:    a.I(f'v_mfma_f32_16x16x32_bf16 {r4(acc(nb,tb))}, {r4(wf)}, {r4(xb+tb*4)}, {c}')
            if nz < nks*9: wread(nz); nz += 1
    stamp(a, 2)
    a.I('s_barrier')
    stamp(a, 3)

def k1_loader(a):
    nst = 9
    wtok = {}
    def W(st):
        slot = st % NSLOT
        a.I(f's_add_u32 m0, s23, {slot*STAGE}'); a.I(f's_mov_b32 s24, {st*STAGE}')
        a.I('s_mov_b32 exec_hi, 0'); a.vmem('buffer_load_dwordx4 v3, s[8:11], s24 offen lds'); a.I('s_mov_b32 exec_hi, -1')
        for o in (512, 1536, 2560, 3584): a.vmem(f'buffer_load_dwordx4 v3, s[8:11], s24 offen offset:{o} lds')
        wtok[st] = a.vm
    W(0); W(1); W(2)
    a.I('s_barrier')
    a.wait(vm=wtok[0]); a.I('s_barrier')
    for s in range(1, nst):
        if s + 2 < nst: W(s+2)
        a.wait(vm=wtok[s]); a.I('s_barrier')
    a.I('s_barrier')
    a.I('s_endpgm')

def k1_producer(a):
    nks, nst = 18, 9
    xtok, gtok = {}, {}
    def xload_items(ks):
        sl = ks % XRING
        def f0():
            a.I(f's_mov_b32 s25, {ks*1024}'); a.vmem(f'buffer_load_dwordx4 {r4(XR+sl*8)}, v4, s[12:15], s25 offen')
        def f1():
            a.vmem(f'buffer_load_dwordx4 {r4(XR+sl*8+4)}, v5, s[12:15], s25 offen'); xtok[ks] = a.vm
        return [f0, f1]
    def gread(ks):
        for q in range(4): a.lds(f'ds_read_b128 {r4(GV+(ks & 1)*16+4*q)}, v8 offset:{ks*256+q*16}')
        gtok[ks] = a.lg
    def produce(ks):
        vm_items = xload_items(ks + XD) if ks + XD < nks else []
        sl = ks % XRING; G = GV + (ks & 1)*16
        a.wait(vm=xtok[ks], lg=gtok[ks])
        for tb in range(2):
            raw = XR+sl*8+tb*4; dst = XO+(ks & 1)*8+tb*4
            for q in range(4):
                a.I(f'v_lshlrev_b32 v{TT+2*q}, 16, v{raw+q}'); a.I(f'v_and_b32 v{TT+2*q+1}, 0xffff0000, v{raw+q}')
            for q in range(8): a.I(f'v_fma_f32 v{TT+q}, v{TT+q}, v{G+q}, v{G+8+q}')
            for q in range(4): a.I(f'v_cvt_pk_bf16_f32 v{dst+q}, v{TT+2*q}, v{TT+2*q+1}')
            a.lds(f'ds_write_b128 v9, {r4(dst)} offset:{(ks % 6)*8192 + tb*1024}')
            if vm_items: vm_items.pop(0)()
        if ks + 2 < nks: gread(ks + 2)
    srd(a, 16, 4, 5, WS.MODP_SZ, WS.MODP)
    a.I('v_lshlrev_b32 v11, 2, v10')
    for i in range(3):
        for z, idx in enumerate((0, 3456, 576, 3456+576)):
            a.I(f's_mov_b32 s26, {(idx+256*i)*4}'); a.vmem(f'buffer_load_dword v{MT+4*i+z}, v11, s[16:19], s26 offen')
    mtok = a.vm
    for ks in range(XD):
        for f in xload_items(ks): f()
    a.wait(vm=mtok)
    for i in range(3):
        b = MT + 4*i
        a.I(f'v_add_f32 v{b}, v{b}, v{b+1}'); bf16_round_f32(a, f'v{b}', f'v{b}')
        a.I(f'v_add_f32 v{b+2}, v{b+2}, v{b+3}'); bf16_round_f32(a, f'v{b+2}', f'v{b+2}')
        a.I(f'v_add_f32 v{b+2}, 1.0, v{b+2}'); bf16_round_f32(a, f'v{b+2}', f'v{b+2}')
        a.I(f'v_mul_f32 v{b}, s31, v{b}'); a.I(f'v_mul_f32 v{b+2}, s31, v{b+2}')
        a.I(f'v_add_u32 v12, {256*i}, v10')
        a.I('v_lshrrev_b32 v13, 5, v12'); a.I('v_lshlrev_b32 v13, 2, v13'); a.I('v_bfe_u32 v14, v12, 2, 2'); a.I('v_add_u32 v13, v13, v14')
        a.I('v_bfe_u32 v14, v12, 4, 1'); a.I('v_lshlrev_b32 v14, 2, v14'); a.I('v_and_b32 v15, 3, v12'); a.I('v_add_u32 v14, v14, v15')
        a.I('v_lshlrev_b32 v15, 6, v13'); a.I('v_lshl_add_u32 v15, v14, 2, v15'); a.I(f'v_add_u32 v15, {GTOFF}, v15')
        if i == 2:
            a.I('v_cmp_gt_u32 vcc, 64, v10'); a.I('s_and_saveexec_b64 s[36:37], vcc')
        a.lds(f'ds_write_b32 v15, v{b+2}'); a.lds(f'ds_write_b32 v15, v{b} offset:32')
        if i == 2: a.I('s_mov_b64 exec, s[36:37]')
    a.I('s_waitcnt lgkmcnt(0)'); a.I('s_barrier')
    gread(0); gread(1)
    for s in range(nst):
        produce(2*s); produce(2*s+1)
        a.wait(lg=a.lg - (4 if 2*s+3 < nks else 0)); a.I('s_barrier')
    a.I('s_barrier')
    a.I('s_endpgm')

def k1():
    import k0 as K0
    a = Asm()
    a.I(f's_cmp_ge_u32 s2, {192+K0.NPREP}'); a.I('s_cbranch_scc1 K1_END')
    a.I(f's_load_dwordx2 s[4:5], s[0:1], {A_WS}')
    a.I('s_cmp_ge_u32 s2, 192'); a.I('s_cbranch_scc1 K1_PREP')
    wave_setup(a)
    a.I('s_and_b32 s33, s20, 3')
    a.I('s_mul_i32 s23, s33, 4608'); a.I('v_add_u32 v3, s23, v2')
    a.I('v_mov_b32 v6, v2'); a.I(f'v_add_u32 v7, {3*STAGE}, v2')
    a.I('v_lshrrev_b32 v8, 4, v1'); a.I('v_lshlrev_b32 v8, 6, v8'); a.I(f'v_add_u32 v8, {GTOFF}, v8')
    a.I('s_lshl_b32 s26, s33, 11'); a.I(f's_add_u32 s26, s26, {XOFF1}'); a.I('v_add_u32 v9, s26, v2'); a.I('v_add_u32 v10, 1024, v9')
    a.I('s_and_b32 s26, s2, 7'); a.I('s_lshr_b32 s27, s2, 3')
    a.I('s_lshr_b32 s21, s26, 1'); a.I('s_lshl_b32 s21, s21, 2'); a.I('s_and_b32 s28, s27, 3'); a.I('s_add_u32 s21, s21, s28')
    a.I('s_and_b32 s22, s26, 1'); a.I('s_mul_i32 s22, s22, 6'); a.I('s_lshr_b32 s28, s27, 2'); a.I('s_add_u32 s22, s22, s28')
    a.I('s_lshl_b32 s26, s21, 3'); a.I('s_lshl_b32 s27, s33, 1'); a.I('s_add_u32 s29, s26, s27')
    a.I('s_lshl_b32 s34, s21, 2'); a.I('s_add_u32 s34, s34, s33')
    a.I('s_cmp_lt_u32 s20, 4'); a.I('s_cbranch_scc1 K1_CONS')
    a.I('s_waitcnt lgkmcnt(0)')
    a.I('s_cmp_lt_u32 s20, 8'); a.I('s_cbranch_scc1 K1_PROD')
    a.I(f's_mul_i32 s26, s22, {18*9*1024}')
    a.I('s_add_u32 s8, s4, s26'); a.I('s_addc_u32 s9, s5, 0')
    a.I(f's_add_u32 s8, s8, {WS.WQKVF}'); a.I('s_addc_u32 s9, s9, 0')
    a.I(f's_mov_b32 s10, {18*9*1024}'); a.I('s_mov_b32 s11, 0x00020000')
    k1_loader(a)
    a.label('K1_PROD')
    srd(a, 12, 4, 5, WS.NF_SZ, WS.NF)
    a.I(f's_mul_i32 s27, s29, {KS*1024}'); a.I('v_add_u32 v4, s27, v2'); a.I(f'v_add_u32 v5, {KS*1024}, v4')
    a.I('s_mov_b32 s31, 1.0'); a.I('s_cmp_lt_u32 s22, 4'); a.I(f's_cselect_b32 s31, {hexf(QSCALE)}, s31')
    a.I('v_subrev_u32 v10, 256, v0')
    k1_producer(a)
    a.label('K1_CONS')
    a.I('s_waitcnt lgkmcnt(0)')
    a.I('s_barrier')
    a.I('s_cmp_ge_u32 s22, 8'); a.I('s_cbranch_scc1 K1_V')
    k1_consumer(a, False)
    a.I('v_and_b32 v10, 15, v1'); a.I('v_lshrrev_b32 v13, 4, v1')
    a.I('s_mov_b32 s26, s34')
    a.I('s_and_b32 s30, s22, 3'); a.I('s_lshl_b32 s30, s30, 3')
    ST = 88
    def qk_store(img_off, img_sz, tilebytes, hi_off):
        srd(a, 16, 4, 5, img_sz, img_off)
        a.I('v_lshrrev_b32 v14, 1, v13'); a.I('v_add_u32 v14, s30, v14'); a.I('v_lshlrev_b32 v14, 6, v14'); a.I('v_add_u32 v14, s26, v14')
        a.I(f's_movk_i32 s31, {tilebytes}'); a.I('v_mul_lo_u32 v14, v14, s31')
        a.I('v_and_b32 v15, 1, v13'); a.I('v_lshl_add_u32 v14, v15, 9, v14'); a.I('v_lshl_add_u32 v14, v10, 4, v14')
        for tb in range(2):
            for p in range(4):
                d = ST + (tb*4+p)*4
                b0, b1 = acc(2*p, tb), acc(2*p+1, tb)
                a.I(f'v_cvt_pk_bf16_f32 v{d}, v{b0}, v{b0+1}'); a.I(f'v_cvt_pk_bf16_f32 v{d+1}, v{b0+2}, v{b0+3}')
                a.I(f'v_cvt_pk_bf16_f32 v{d+2}, v{b1}, v{b1+1}'); a.I(f'v_cvt_pk_bf16_f32 v{d+3}, v{b1+2}, v{b1+3}')
                a.I(f's_mov_b32 s31, {p*2*64*tilebytes}')
                a.vmem(f'buffer_store_dwordx4 {r4(d)}, v14, s[16:19], s31 offen offset:{tb*256} ' + os.environ.get('K1FLAG', 'sc1'))
        a.I('v_lshlrev_b32 v14, 1, v13'); a.I('v_add_u32 v14, s30, v14'); a.I('v_lshlrev_b32 v14, 6, v14'); a.I('v_add_u32 v14, s26, v14')
        a.I(f's_movk_i32 s31, {tilebytes}'); a.I('v_mul_lo_u32 v14, v14, s31'); a.I('v_lshl_add_u32 v14, v10, 2, v14')
        a.I(f's_mov_b32 s31, {64*tilebytes}')
        for tb in range(2):
            b = acc(8, tb); d = ST + 32 + tb*2
            a.I(f'v_cvt_pk_bf16_f32 v{d}, v{b}, v{b+1}'); a.I(f'v_cvt_pk_bf16_f32 v{d+1}, v{b+2}, v{b+3}')
            a.vmem(f'buffer_store_dword v{d}, v14, s[16:19], 0 offen offset:{hi_off+tb*64}')
            a.vmem(f'buffer_store_dword v{d+1}, v14, s[16:19], s31 offen offset:{hi_off+tb*64}')
    a.I('s_cmp_ge_u32 s22, 4'); a.I('s_cbranch_scc1 K1_K')
    qk_store(WS.QIMG, WS.QIMG_SZ, QT_BYTES, 1024)
    a.I('s_endpgm')
    a.label('K1_K')
    qk_store(WS.KVIMG, WS.KVIMG_SZ, KV_TILE, 1024)
    N0 = 88
    for p in range(4):
        for tb in range(2):
            b0, b1 = acc(2*p, tb), acc(2*p+1, tb)
            d = N0 + p*2 + tb
            a.I(f'v_mul_f32 v{d}, v{b0}, v{b0}')
            for v in [b0+1, b0+2, b0+3, b1, b1+1, b1+2, b1+3]: a.I(f'v_fmac_f32 v{d}, v{v}, v{v}')
    for p in range(4):
        for tb in range(2):
            d = N0 + p*2 + tb
            a.I(f'v_mov_b32 v9, v{d}'); a.I(f'v_permlane16_swap_b32 v{d}, v9'); a.I(f'v_add_f32 v{d}, v{d}, v9')
        a.I(f'v_max_f32 v{N0+16+p}, v{N0+p*2}, v{N0+p*2+1}')
    for e in range(2):
        for tb in range(2):
            b = acc(8, tb); d = N0 + 24 + e*2 + tb
            a.I(f'v_mul_f32 v{d}, v{b+2*e}, v{b+2*e}'); a.I(f'v_fmac_f32 v{d}, v{b+2*e+1}, v{b+2*e+1}')
        a.I(f'v_max_f32 v{N0+20+e}, v{N0+24+e*2}, v{N0+25+e*2}')
    for q in range(6):
        d = N0 + 16 + q
        for dpp in ('quad_perm:[1,0,3,2]', 'quad_perm:[2,3,0,1]', 'row_half_mirror', 'row_mirror'):
            a.I(f'v_max_f32_dpp v{d}, v{d}, v{d} {dpp} row_mask:0xf bank_mask:0xf')
    a.I('s_lshl_b32 s28, s20, 6')
    a.I('v_lshrrev_b32 v9, 5, v1'); a.I('v_lshlrev_b32 v9, 3, v9'); a.I('v_add_u32 v9, s28, v9')
    a.I('v_lshlrev_b32 v11, 4, v13'); a.I('v_add_u32 v11, s28, v11')
    for p in range(4): a.I(f'ds_write_b32 v9, v{N0+16+p} offset:{p*16}')
    for e in range(2): a.I(f'ds_write_b32 v11, v{N0+20+e} offset:{e*8+4}')
    a.I('v_and_b32 v12, 7, v1'); a.I('v_lshlrev_b32 v12, 3, v12'); a.I('v_add_u32 v12, s28, v12')
    a.I(f'ds_read_b64 {r2(N0+30)}, v12'); a.I('s_waitcnt lgkmcnt(0)')
    a.I(f'v_add_f32 v9, v{N0+30}, v{N0+31}')
    srd(a, 16, 4, 5, WS.KMAX_SZ, WS.KMAX)
    a.I('v_and_b32 v14, 7, v1'); a.I('v_add_u32 v14, s30, v14'); a.I('v_lshlrev_b32 v14, 6, v14'); a.I('v_add_u32 v14, s26, v14'); a.I('v_lshlrev_b32 v14, 2, v14')
    a.I('s_mov_b64 exec, 0xff')
    a.I('buffer_store_dword v9, v14, s[16:19], 0 offen')
    a.I('s_endpgm')
    a.label('K1_V')
    a.I('v_bfe_u32 v11, v1, 3, 1'); a.I('v_lshlrev_b32 v11, 10, v11')
    a.I('v_and_b32 v12, 0x30, v1'); a.I('v_and_b32 v13, 7, v1'); a.I('v_add_u32 v12, v12, v13'); a.I('v_lshl_add_u32 v11, v12, 4, v11')
    a.I('s_lshl_b32 s26, s33, 11'); a.I(f's_add_u32 s26, s26, {XOFF1}'); a.I('v_add_u32 v9, s26, v11'); a.I('v_add_u32 v10, 128, v9')
    k1_consumer(a, True)
    a.I('v_and_b32 v10, 15, v1'); a.I('v_lshrrev_b32 v13, 4, v1')
    a.I('s_mov_b32 s26, s34')
    srd(a, 16, 4, 5, WS.KVIMG_SZ, WS.KVIMG)
    a.I('s_and_b32 s30, s22, 3'); a.I('s_lshl_b32 s30, s30, 3')
    a.I('s_lshl_b32 s31, s30, 6'); a.I('s_add_u32 s31, s31, s26'); a.I(f's_mul_i32 s31, s31, {KV_TILE}')
    a.I(f'v_mul_u32_u24 v14, {DV}, v13'); a.I('v_add_u32 v15, v14, v10'); a.I('v_lshlrev_b32 v15, 4, v15')
    for nb in range(9):
        d = 88 + (nb % 6)*4
        b0, b1 = acc(nb, 0), acc(nb, 1)
        a.I(f'v_cvt_pk_bf16_f32 v{d}, v{b0}, v{b0+1}'); a.I(f'v_cvt_pk_bf16_f32 v{d+1}, v{b0+2}, v{b0+3}')
        a.I(f'v_cvt_pk_bf16_f32 v{d+2}, v{b1}, v{b1+1}'); a.I(f'v_cvt_pk_bf16_f32 v{d+3}, v{b1+2}, v{b1+3}')
        if nb < 8:
            a.I(f's_add_u32 s32, s31, {nb*64*KV_TILE}')
            a.vmem(f'buffer_store_dwordx4 {r4(d)}, v15, s[16:19], s32 offen offset:{VT_OFF} ' + os.environ.get('K1FLAG', 'sc1'))
        else:
            a.I('v_lshrrev_b32 v9, 1, v10'); a.I(f's_mov_b32 s32, {64*KV_TILE}'); a.I('v_mul_lo_u32 v9, v9, s32')
            a.I('v_and_b32 v11, 1, v10'); a.I('v_add_u32 v11, v11, v14'); a.I('v_add_u32 v11, 16, v11'); a.I('v_lshl_add_u32 v9, v11, 4, v9')
            a.vmem(f'buffer_store_dwordx4 {r4(d)}, v9, s[16:19], s31 offen offset:{VT_OFF}')
    a.I('s_endpgm')
    a.label('K1_PREP')
    a.I(f's_load_dwordx2 s[8:9], s[0:1], {A_W1}')
    a.I('s_sub_u32 s3, s2, 192')
    K0.prep_body(a, 's3', 'K1P')
    a.label('K1_END')
    a.I('s_endpgm')
    return kernel_text('k1_kernel', a, 160), (192+K0.NPREP, 768, K1_LDS)

def k3():
    a = Asm()
    A3 = 16
    def ac(nb, tb): return A3 + (nb*2+tb)*4
    a.I('s_cmp_ge_u32 s2, 256'); a.I('s_cbranch_scc1 K3_END')
    a.I(f's_load_dwordx2 s[4:5], s[0:1], {A_WS}')
    wave_setup(a)
    a.I('s_and_b32 s21, s2, 7'); a.I('s_lshl_b32 s21, s21, 3'); a.I('s_bfe_u32 s26, s2, 0x30003'); a.I('s_add_u32 s21, s21, s26')
    a.I('s_lshr_b32 s22, s2, 6')
    a.I('s_waitcnt lgkmcnt(0)')
    a.I(f's_mul_i32 s26, s22, {18*9*1024}')
    a.I('s_add_u32 s8, s4, s26'); a.I('s_addc_u32 s9, s5, 0')
    a.I(f's_add_u32 s8, s8, {WS.WOF}'); a.I('s_addc_u32 s9, s9, 0')
    a.I(f's_mov_b32 s10, {18*9*1024}'); a.I('s_mov_b32 s11, 0x00020000')
    srd(a, 12, 4, 5, WS.OF_SZ, WS.OF)
    a.I(f's_mul_i32 s27, s21, {2*KS*1024}')
    a.I('s_lshl_b32 s28, s20, 10'); a.I('s_add_u32 s27, s27, s28')
    a.I('s_mul_i32 s29, s20, 9216')
    toks = {}
    WFR = 88
    GA, G2R, XRS = 160, 180, 200
    def kload(i):
        a.I(f's_add_u32 s30, s27, {i*4096}')
        a.vmem(f'buffer_load_dwordx4 {r4(8*i,"a")}, v2, s[12:15], s30 offen')
        a.I(f's_add_u32 s30, s30, {KS*1024}')
        a.vmem(f'buffer_load_dwordx4 {r4(8*i+4,"a")}, v2, s[12:15], s30 offen')
        for nb in range(9):
            if nb % 4 == 0: a.I(f's_add_u32 s30, s29, {i*36864 + nb*1024}')
            a.vmem(f'buffer_load_dwordx4 {r4(WFR+36*(i % 3)+4*nb)}, v2, s[8:11], s30 offen offset:{(nb % 4)*1024}')
            toks[(i, nb)] = a.vm
    for i in range(3): kload(i)
    stamp(a, 0)
    for i in range(5):
        for nb in range(9):
            if nb % 3 == 0: a.wait(vm=toks[(i, nb+2)])
            for tb in range(2):
                c = '0' if i == 0 else r4(ac(nb, tb))
                a.I(f'v_mfma_f32_16x16x32_bf16 {r4(ac(nb,tb))}, {r4(WFR+36*(i % 3)+4*nb)}, {r4(8*i+4*tb,"a")}, {c}')
        if i == 0: kload(3)
        if i == 1: kload(4)
        if i == 2:
            srd(a, 16, 4, 5, WS.MOD_SZ, WS.MOD); srd(a, 24, 4, 5, WS.XF_SZ, WS.XF); srd(a, 48, 4, 5, WS.G2_SZ, WS.G2)
            a.I('s_lshr_b32 s31, s20, 1'); a.I('s_mul_i32 s31, s31, 5')
            a.I('s_mul_i32 s32, s22, 9'); a.I('s_add_u32 s32, s32, s31')
            a.I('v_lshrrev_b32 v9, 4, v1'); a.I('v_lshlrev_b32 v9, 4, v9')
            a.I('s_lshl_b32 s52, s32, 6'); a.I(f's_add_u32 s33, s52, {2*576*4}')
            for q in range(5): a.vmem(f'buffer_load_dwordx4 {r4(GA+4*q)}, v9, s[16:19], s33 offen offset:{q*64}')
            for q in range(5): a.vmem(f'buffer_load_dwordx4 {r4(G2R+4*q)}, v9, s[48:51], s52 offen offset:{q*64}')
            a.I('s_and_b32 s34, s20, 1'); a.I('s_lshl_b32 s35, s21, 1'); a.I('s_add_u32 s34, s34, s35')
            a.I(f's_mul_i32 s35, s34, {KS*1024}'); a.I('v_add_u32 v10, s35, v2')
            for q in range(5):
                a.I(f's_add_u32 s36, s32, {q}'); a.I('s_and_b32 s37, s36, 1'); a.I('s_lshr_b32 s36, s36, 1'); a.I('s_lshl_b32 s36, s36, 10')
                a.I('s_lshl_b32 s37, s37, 3'); a.I(f's_add_u32 s{40+q}, s36, s37')
                a.vmem(f'buffer_load_dwordx2 {r2(XRS+2*q)}, v10, s[24:27], s{40+q} offen')
    stamp(a, 2)
    a.I('s_mul_i32 s38, s20, 18432'); a.I('v_add_u32 v11, s38, v2')
    for nb in range(9):
        for tb in range(2): a.I(f'ds_write_b128 v11, {r4(ac(nb,tb))} offset:{(nb*2+tb)*1024}')
    a.I('s_waitcnt lgkmcnt(0)'); a.I('s_barrier')
    stamp(a, 3)
    a.I('s_lshl_b32 s38, s31, 1'); a.I('s_and_b32 s39, s20, 1'); a.I('s_add_u32 s38, s38, s39'); a.I('s_lshl_b32 s38, s38, 10')
    a.I('v_add_u32 v11, s38, v2'); a.I(f'v_add_u32 v12, {2*18432}, v11')
    for q in range(5):
        for wv in range(4):
            a.I(f'ds_read_b128 {r4(A3+q*16+wv*4)}, v{11 + wv//2} offset:{(wv % 2)*18432 + q*2048}')
    srd(a, 8, 4, 5, WS.X1F_SZ, WS.X1F); srd(a, 12, 4, 5, WS.X1G_SZ, WS.X1G)
    a.I('v_mov_b32 v13, 0'); a.I('v_mov_b32 v14, 0')
    a.I('s_waitcnt vmcnt(0) lgkmcnt(0)')
    for q in range(5):
        if q == 4:
            a.I('s_cmp_ge_u32 s20, 2'); a.I('s_cbranch_scc1 K3_SKIP5')
        b = A3 + q*16
        for r in range(4):
            a.I(f'v_add_f32 v{b+r}, v{b+r}, v{b+4+r}'); a.I(f'v_add_f32 v{b+8+r}, v{b+8+r}, v{b+12+r}')
        for r in range(4):
            a.I(f'v_add_f32 v{b+r}, v{b+r}, v{b+8+r}')
            x = XRS + 2*q + r//2
            if r % 2 == 0: a.I(f'v_lshlrev_b32 v{b+4+r}, 16, v{x}')
            else: a.I(f'v_and_b32 v{b+4+r}, 0xffff0000, v{x}')
        for r in range(4): a.I(f'v_fma_f32 v{b+r}, v{b+r}, v{GA+4*q+r}, v{b+4+r}')
        d = 100 + 2*q
        a.I(f'v_cvt_pk_bf16_f32 v{d}, v{b}, v{b+1}'); a.I(f'v_cvt_pk_bf16_f32 v{d+1}, v{b+2}, v{b+3}')
        a.vmem(f'buffer_store_dwordx2 {r2(d)}, v10, s[8:11], s{40+q} offen')
        for z in range(2):
            a.I(f'v_lshlrev_b32 v{b+4+2*z}, 16, v{d+z}'); a.I(f'v_and_b32 v{b+5+2*z}, 0xffff0000, v{d+z}')
        for r in range(4):
            a.I(f'v_add_f32 v13, v13, v{b+4+r}'); a.I(f'v_fmac_f32 v14, v{b+4+r}, v{b+4+r}')
            a.I(f'v_mul_f32 v{b+8+r}, v{b+4+r}, v{G2R+4*q+r}')
        a.I(f'v_cvt_pk_bf16_f32 v{b+12}, v{b+8}, v{b+9}'); a.I(f'v_cvt_pk_bf16_f32 v{b+13}, v{b+10}, v{b+11}')
        a.vmem(f'buffer_store_dwordx2 {r2(b+12)}, v10, s[12:15], s{40+q} offen')
    a.label('K3_SKIP5')
    for r in ('v13', 'v14'):
        a.I(f'v_mov_b32 v15, {r}'); a.I(f'v_permlane16_swap_b32 {r}, v15'); a.I(f'v_add_f32 {r}, {r}, v15')
        a.I(f'v_mov_b32 v15, {r}'); a.I(f'v_permlane32_swap_b32 {r}, v15'); a.I(f'v_add_f32 {r}, {r}, v15')
    a.I('v_mov_b32 v112, v13'); a.I('v_mov_b32 v113, v14')
    srd(a, 8, 4, 5, WS.STAT2_SZ, WS.STAT2)
    a.I('s_lshl_b32 s36, s34, 10'); a.I('s_lshl_b32 s37, s22, 4'); a.I('s_add_u32 s36, s36, s37')
    a.I('s_lshr_b32 s37, s20, 1'); a.I('s_lshl_b32 s37, s37, 3'); a.I('s_add_u32 s36, s36, s37')
    a.I('v_and_b32 v15, 15, v1'); a.I('v_lshlrev_b32 v15, 6, v15')
    a.I('v_cmp_gt_u32 vcc, 16, v1'); a.I('s_and_saveexec_b64 s[46:47], vcc')
    a.vmem('buffer_store_dwordx2 v[112:113], v15, s[8:11], s36 offen')
    a.I('s_endpgm')
    a.label('K3_END')
    a.I('s_endpgm')
    return kernel_text('k3_kernel', a, 212+40, accum=212), (256, 256, 4*18432)

AC4 = 16
RING = 64
NR = 18
BF4 = 136
XOFF, HOFF, UTL, STL, CNT = 0, 73728, 147456, 152064, 152576
def k4():
    a = Asm()
    a.I('s_cmp_ge_u32 s2, 256'); a.I('s_cbranch_scc1 K4_END')
    a.I(f's_load_dwordx2 s[4:5], s[0:1], {A_WS}')
    wave_setup(a)
    a.I('s_and_b32 s26, s2, 7'); a.I('s_lshr_b32 s27, s2, 3')
    a.I('s_and_b32 s22, s26, 3'); a.I('s_lshl_b32 s22, s22, 1'); a.I('s_and_b32 s28, s27, 1'); a.I('s_add_u32 s22, s22, s28')
    a.I('s_lshr_b32 s21, s26, 2'); a.I('s_lshl_b32 s21, s21, 4'); a.I('s_lshr_b32 s28, s27, 1'); a.I('s_add_u32 s21, s21, s28')
    a.I('s_and_b32 s28, s20, 3'); a.I('s_lshl_b32 s29, s21, 2'); a.I('s_add_u32 s29, s29, s28'); a.I('s_mul_i32 s29, s29, 18')
    a.I('s_lshr_b32 s38, s20, 2'); a.I('s_add_u32 s29, s29, s38'); a.I('s_lshl_b32 s29, s29, 10')
    a.I('s_lshl_b32 s30, s20, 10')
    a.I('s_mul_i32 s31, s22, 12'); a.I('s_add_u32 s31, s31, s20'); a.I(f's_mul_i32 s31, s31, {54*1024}')
    a.I('v_and_b32 v8, 15, v1'); a.I('v_lshlrev_b32 v9, 6, v8')
    a.I(f'v_mov_b32 v10, {CNT}'); a.I('v_mov_b32 v11, 0'); a.I('ds_write_b32 v10, v11'); a.I('ds_write_b32 v10, v11 offset:4'); a.I('ds_write_b32 v10, v11 offset:8'); a.I('ds_write_b32 v10, v11 offset:12'); a.I('ds_write_b32 v10, v11 offset:16'); a.I('ds_write_b32 v10, v11 offset:20')
    a.I('s_waitcnt lgkmcnt(0)')
    srd(a, 40, 4, 5, WS.STAT2_SZ, WS.STAT2)
    a.I('s_cmp_ge_u32 s20, 4'); a.I('s_cbranch_scc1 K4_NS0')
    a.I('s_lshl_b32 s35, s21, 2'); a.I('s_add_u32 s35, s35, s20'); a.I('s_lshl_b32 s35, s35, 10')
    for q in range(4): a.I(f'buffer_load_dwordx4 {r4(AC4+4*q)}, v9, s[40:43], s35 offen offset:{q*16}')
    a.vm -= 4
    a.label('K4_NS0')
    srd(a, 16, 4, 5, WS.X1G_SZ, WS.X1G); srd(a, 8, 4, 5, WS.W1S_SZ, WS.W1S)
    xt = []
    def xdma(i):
        a.I(f's_add_u32 m0, s30, {i*12*1024}'); a.I(f's_add_u32 s34, s29, {i*3*1024}')
        xt.append(a.vmem('buffer_load_dwordx4 v2, s[16:19], s34 offen lds'))
    wt = {}; wstate = {}
    def wissue(q):
        if q >= 108 or q in wt: return
        sl = q % NR
        off = (q % 54)*1024; srdn = 8 if q < 54 else 12
        key = (srdn, off & ~4095)
        if wstate.get('k') != key:
            a.I(f's_add_u32 s33, s31, {off & ~4095}'); wstate['k'] = key
        wt[q] = a.vmem(f'buffer_load_dwordx4 {r4(RING+4*sl)}, v2, s[{srdn}:{srdn+3}], s33 offen offset:{off & 4095}')
    xdma(0); xdma(1)
    for q in range(6): wissue(q)
    srd(a, 12, 4, 5, WS.W2S_SZ, WS.W2S); srd(a, 24, 4, 5, WS.UT1_SZ, WS.UT1)
    a.I('s_cmp_lt_u32 s20, 4'); a.I('s_cbranch_scc1 K4_PA'); a.I('s_cmp_lt_u32 s20, 8'); a.I('s_cbranch_scc1 K4_PB')
    a.I('s_setprio 1'); a.I('s_branch K4_PD')
    a.label('K4_PB'); a.I('s_setprio 2'); a.I('s_branch K4_PD')
    a.label('K4_PA'); a.I('s_setprio 3')
    a.label('K4_PD')
    tok = {}
    def late_loads():
        for i in range(2, 6): xdma(i)
        a.I('s_mul_i32 s34, s20, 384'); a.I(f's_add_u32 m0, s34, {UTL}')
        a.I('s_cmp_ge_u32 s20, 6'); a.I(f's_cselect_b32 s35, {F*4 - 2304}, 0'); a.I('s_add_u32 s35, s35, s34')
        a.I('s_mul_i32 s36, s22, 2304'); a.I('s_add_u32 s35, s35, s36')
        a.I('s_mov_b64 exec, 0xffffff'); a.vmem('buffer_load_dwordx4 v2, s[24:27], s35 offen lds'); a.I('s_mov_b64 exec, -1')
        tok['ut'] = a.vm
    stamp(a, 0)
    a.I('v_mov_b32 v3, v2'); a.I('v_add_u32 v4, 36864, v2'); a.I(f'v_add_u32 v5, {HOFF}, v2'); a.I(f'v_add_u32 v6, {HOFF+36864}, v2')
    btok = {}
    def bread(kind, ks, st):
        base = (3 if kind == 'x' else 5) + (ks // 9)
        for tb in range(4):
            btok[(kind, ks, tb)] = a.lds(f'ds_read_b128 {r4(BF4+st*16+tb*4)}, v{base} offset:{((ks % 9)*4+tb)*1024}')
    nxt_w = [6]
    st8 = {'q': 0}
    def pump():
        nis = 0
        while nxt_w[0] < min(st8['q'] + NR, 108) and nis < 2:
            wissue(nxt_w[0]); nxt_w[0] += 1; nis += 1
    def gemm(kind, hooks={}):
        for ks in range(18):
            cur = ks % 2
            if ks in hooks:
                lg0 = a.lg
                hooks[ks]()
                a.lg = lg0
            if ks + 1 < 18: bread(kind, ks+1, 1-cur)
            q = st8['q']
            a.wait(vm=wt[q+2], lg=btok[(kind, ks, 3)])
            for fb in range(3):
                for tb in range(4):
                    d = r4(AC4+(fb*4+tb)*4)
                    a.I(f'v_mfma_f32_16x16x32_bf16 {d}, {r4(RING+4*(st8["q"] % NR))}, {r4(BF4+cur*16+tb*4)}, {"0" if ks == 0 else d}')
                st8['q'] += 1
                pump()
    a.wait(vm=xt[1])
    a.I('s_cmp_ge_u32 s20, 4'); a.I('s_cbranch_scc1 K4_NS1')
    b = AC4
    for z in range(1, 8):
        a.I(f'v_add_f32 v{b}, v{b}, v{b+2*z}'); a.I(f'v_add_f32 v{b+1}, v{b+1}, v{b+2*z+1}')
    a.I(f'v_mul_f32 v{b}, {hexf(1.0/576)}, v{b}'); a.I(f'v_mul_f32 v{b+1}, {hexf(1.0/576)}, v{b+1}')
    a.I(f'v_fma_f32 v{b+1}, -v{b}, v{b}, v{b+1}'); a.I(f'v_max_f32 v{b+1}, 0, v{b+1}'); a.I(f'v_add_f32 v{b+1}, {hexf(1e-5)}, v{b+1}')
    a.I(f'v_rsq_f32 v{b+1}, v{b+1}')
    a.I(f'v_mul_f32 v{b+2}, {hexf(LOG2E)}, v{b+1}'); a.I(f'v_mul_f32 v{b+3}, v{b+2}, v{b}')
    a.I('v_lshlrev_b32 v8, 3, v8'); a.I('s_lshl_b32 s35, s20, 7'); a.I(f's_add_u32 s35, s35, {STL}'); a.I('v_add_u32 v8, s35, v8')
    a.I(f'ds_write_b64 v8, {r2(b+2)}')
    a.label('K4_NS1')
    a.I('s_waitcnt lgkmcnt(0)'); a.I('s_barrier')
    stamp(a, 1)
    bread('x', 0, 0)
    def hx():
        for i in range(2, 6): pass
    def gate():
        L = a.newlabel('K4_GATE')
        a.I('s_cmp_eq_u32 s38, 0'); a.I(f's_cbranch_scc1 {L}_D')
        a.I('s_lshl_b32 s36, s38, 2'); a.I(f's_add_u32 s36, s36, {CNT+8}'); a.I('v_mov_b32 v10, s36')
        a.label(L)
        a.I('ds_read_b32 v11, v10'); a.I('s_waitcnt lgkmcnt(0)'); a.I('v_readfirstlane_b32 s36, v11')
        a.I('s_cmp_ge_u32 s36, 4'); a.I(f's_cbranch_scc1 {L}_D'); a.I('s_sleep 4'); a.I(f's_branch {L}')
        a.label(f'{L}_D')
    def sig_g1():
        L = a.newlabel('K4_SIG')
        a.I('s_cmp_ge_u32 s38, 2'); a.I(f's_cbranch_scc1 {L}')
        a.I('s_lshl_b32 s36, s38, 2'); a.I(f's_add_u32 s36, s36, {CNT+12}'); a.I('v_mov_b32 v10, s36'); a.I('v_mov_b32 v11, 1')
        a.I('s_mov_b64 exec, 1'); a.I('ds_add_u32 v10, v11'); a.I('s_mov_b64 exec, -1')
        a.label(L)
    def sig_x():
        a.wait(vm=tok['ut'])
        a.I(f'v_mov_b32 v10, {CNT+20}'); a.I('v_mov_b32 v11, 1')
        a.I('s_mov_b64 exec, 1'); a.I('ds_add_u32 v10, v11'); a.I('s_mov_b64 exec, -1')
    def h1():
        L = a.newlabel('K4_H1')
        a.I('s_cmp_eq_u32 s38, 0'); a.I(f's_cbranch_scc1 {L}')
        lg0 = a.lg
        sig_x(); gate()
        a.label(L)
    def h4():
        L = a.newlabel('K4_H4')
        a.I('s_cmp_lg_u32 s38, 0'); a.I(f's_cbranch_scc1 {L}')
        sig_x()
        a.label(L)
    def h5():
        L = a.newlabel('K4_H5')
        a.I(f'v_mov_b32 v10, {CNT+20}')
        a.label(L)
        a.I('ds_read_b32 v11, v10'); a.I('s_waitcnt lgkmcnt(0)'); a.I('v_readfirstlane_b32 s36, v11')
        a.I('s_cmp_ge_u32 s36, 12'); a.I(f's_cbranch_scc1 {L}_D'); a.I('s_sleep 2'); a.I(f's_branch {L}')
        a.label(f'{L}_D')
    gemm('x', hooks={0: late_loads, 1: h1, 4: h4, 5: h5, 13: sig_g1})
    stamp(a, 2)
    a.I('s_mul_i32 s35, s20, 3')
    a.I('v_lshrrev_b32 v14, 4, v1'); a.I('v_lshlrev_b32 v14, 4, v14'); a.I('s_mul_i32 s36, s20, 192'); a.I(f's_add_u32 s36, s36, {UTL}'); a.I('v_add_u32 v7, s36, v14')
    a.I('v_and_b32 v14, 15, v1'); a.I('v_lshlrev_b32 v14, 3, v14'); a.I(f'v_add_u32 v14, {STL}, v14')
    T0 = BF4
    for tb in range(4): a.I(f'ds_read_b64 {r2(T0+2*tb)}, v14 offset:{tb*128}')
    for fb in range(3):
        a.I(f'ds_read_b128 {r4(T0+8+fb*8)}, v7 offset:{fb*64}'); a.I(f'ds_read_b128 {r4(T0+12+fb*8)}, v7 offset:{fb*64+2304}')
    for fb in range(3):
        a.I(f's_add_u32 s36, s35, {fb}'); a.I('s_and_b32 s37, s36, 1'); a.I('s_lshr_b32 s36, s36, 1')
        a.I('s_lshl_b32 s36, s36, 12'); a.I('s_lshl_b32 s37, s37, 3'); a.I('s_add_u32 s36, s36, s37'); a.I(f'v_add_u32 v{7+fb}, s36, v5')
    a.I('s_waitcnt lgkmcnt(0)')
    for fb in range(3):
        U_, T_ = T0+8+fb*8, T0+12+fb*8
        for r in range(4): a.I(f'v_mul_f32 v{T_+r}, {hexf(LOG2E)}, v{T_+r}')
        for tb in range(4):
            b = AC4 + (fb*4+tb)*4
            for r in range(4): a.I(f'v_fma_f32 v{10+r}, -v{T0+2*tb+1}, v{U_+r}, v{T_+r}')
            for r in range(4): a.I(f'v_fma_f32 v{b+r}, v{b+r}, v{T0+2*tb}, v{10+r}')
            for r in range(4): a.I(f'v_exp_f32 v{10+r}, -v{b+r}')
            for r in range(4): a.I(f'v_add_f32 v{10+r}, 1.0, v{10+r}')
            for r in range(4): a.I(f'v_rcp_f32 v{10+r}, v{10+r}')
            for r in range(4): a.I(f'v_mul_f32 v{b+r}, v{b+r}, v{10+r}')
            a.I(f'v_cvt_pk_bf16_f32 v14, v{b}, v{b+1}'); a.I(f'v_cvt_pk_bf16_f32 v15, v{b+2}, v{b+3}')
            a.lds(f'ds_write_b64 v{7+fb}, v[14:15] offset:{tb*1024}')
    a.I('s_waitcnt lgkmcnt(0)')
    a.I('s_lshl_b32 s36, s38, 2'); a.I(f's_add_u32 s36, s36, {CNT}'); a.I('v_mov_b32 v10, s36'); a.I('v_mov_b32 v11, 1')
    a.I('s_mov_b64 exec, 1'); a.I('ds_add_u32 v10, v11'); a.I('s_mov_b64 exec, -1')
    a.I('s_setprio 0')
    stamp(a, 3)
    def poll(g):
        def f():
            L = a.newlabel('K4_POLL')
            a.I(f'v_mov_b32 v10, {CNT+4*g}')
            a.label(L)
            a.I('ds_read_b32 v11, v10'); a.I('s_waitcnt lgkmcnt(0)'); a.I('v_readfirstlane_b32 s36, v11')
            a.I('s_cmp_ge_u32 s36, 4'); a.I(f's_cbranch_scc1 {L}_D'); a.I('s_sleep 2'); a.I(f's_branch {L}')
            a.label(f'{L}_D')
        return f
    poll(0)()
    bread('h', 0, 0)
    gemm('h', hooks={5: poll(1), 11: poll(2)})
    stamp(a, 4)
    srd(a, 16, 4, 5, WS.PART_SZ, WS.PART)
    a.I('s_lshl_b32 s28, s22, 6'); a.I('s_lshl_b32 s29, s21, 1'); a.I('s_add_u32 s28, s28, s29'); a.I('s_mul_i32 s28, s28, 36')
    a.I('s_mul_i32 s29, s20, 3'); a.I('s_add_u32 s28, s28, s29'); a.I('s_lshl_b32 s28, s28, 10')
    for nb in range(3):
        for pr in range(2):
            b0, b1 = AC4+(nb*4+2*pr)*4, AC4+(nb*4+2*pr+1)*4
            d = RING + (nb*2+pr)*4
            a.I(f'v_cvt_pk_bf16_f32 v{d}, v{b0}, v{b0+1}'); a.I(f'v_cvt_pk_bf16_f32 v{d+1}, v{b0+2}, v{b0+3}')
            a.I(f'v_cvt_pk_bf16_f32 v{d+2}, v{b1}, v{b1+1}'); a.I(f'v_cvt_pk_bf16_f32 v{d+3}, v{b1+2}, v{b1+3}')
            a.I(f's_add_u32 s29, s28, {(pr*36+nb)*1024}')
            a.vmem(f'buffer_store_dwordx4 {r4(d)}, v2, s[16:19], s29 offen ' + os.environ.get('PARTFLAG', 'sc1'))
    a.label('K4_END')
    a.I('s_endpgm')
    return kernel_text('k4_kernel', a, 168), (256, 768, CNT + 64)

def k5():
    a = Asm()
    NWG = 64*36//4
    a.I(f's_cmp_ge_u32 s2, {NWG}'); a.I('s_cbranch_scc1 K5_END')
    a.I(f's_load_dwordx2 s[4:5], s[0:1], {A_WS}'); a.I(f's_load_dwordx2 s[6:7], s[0:1], {A_OUT}')
    wave_setup(a)
    a.I('s_lshl_b32 s21, s2, 2'); a.I('s_add_u32 s21, s21, s20')
    sdiv(a, 's22', 's21', 36, 2303)
    a.I('s_mul_i32 s23, s22, 36'); a.I('s_sub_u32 s23, s21, s23')
    a.I('s_waitcnt lgkmcnt(0)')
    srd(a, 8, 4, 5, WS.PART_SZ, WS.PART); srd(a, 12, 4, 5, WS.X1F_SZ, WS.X1F); srd(a, 16, 4, 5, WS.MOD_SZ, WS.MOD); srd(a, 24, 6, 7, S*D*2)
    a.I('s_lshl_b32 s28, s21, 10')
    for j in range(8):
        a.vmem(f'buffer_load_dwordx4 {r4(16+4*j)}, v2, s[8:11], s28 offen ' + os.environ.get('PARTLD', ''))
        if j < 7: a.I(f's_add_u32 s28, s28, {64*36*1024}')
    a.I('s_mul_i32 s28, s22, 36'); a.I('s_lshr_b32 s29, s23, 1'); a.I('s_add_u32 s28, s28, s29'); a.I('s_lshl_b32 s28, s28, 10')
    a.I('s_and_b32 s29, s23, 1'); a.I('s_lshl_b32 s29, s29, 3'); a.I('s_add_u32 s28, s28, s29')
    a.vmem('buffer_load_dwordx2 v[48:49], v2, s[12:15], s28 offen')
    a.I(f's_add_u32 s28, s28, {18*1024}')
    a.vmem('buffer_load_dwordx2 v[50:51], v2, s[12:15], s28 offen')
    a.I('v_lshrrev_b32 v3, 4, v1'); a.I('v_lshlrev_b32 v4, 4, v3')
    a.I('s_lshl_b32 s28, s23, 6'); a.I(f's_add_u32 s28, s28, {5*576*4}')
    a.vmem('buffer_load_dwordx4 v[52:55], v4, s[16:19], s28 offen')
    a.I('v_and_b32 v5, 15, v1'); a.I('v_mul_u32_u24 v5, 1152, v5'); a.I('v_lshl_add_u32 v5, v3, 3, v5')
    a.I(f's_mul_i32 s28, s22, {32*1152}'); a.I('s_lshl_b32 s29, s23, 5'); a.I('s_add_u32 s28, s28, s29')
    for r in range(8): a.I(f'v_mov_b32 v{56+r}, 0')
    a.I('s_waitcnt vmcnt(0)')
    for j in range(8):
        for z in range(4):
            a.I(f'v_lshlrev_b32 v6, 16, v{16+4*j+z}'); a.I(f'v_and_b32 v7, 0xffff0000, v{16+4*j+z}')
            a.I(f'v_add_f32 v{56+2*z}, v{56+2*z}, v6'); a.I(f'v_add_f32 v{57+2*z}, v{57+2*z}, v7')
    LN2 = math.log(2.0)
    for r in range(4): a.I(f'v_mul_f32 v{52+r}, {hexf(LN2)}, v{52+r}')
    for h in range(2):
        for r in range(4):
            x = 48 + 2*h + r//2
            if r % 2 == 0: a.I(f'v_lshlrev_b32 v6, 16, v{x}')
            else: a.I(f'v_and_b32 v6, 0xffff0000, v{x}')
            a.I(f'v_fma_f32 v{56+4*h+r}, v{56+4*h+r}, v{52+r}, v6')
        a.I(f'v_cvt_pk_bf16_f32 v{64+2*h}, v{56+4*h}, v{57+4*h}'); a.I(f'v_cvt_pk_bf16_f32 v{65+2*h}, v{58+4*h}, v{59+4*h}')
        a.vmem(f'buffer_store_dwordx2 {r2(64+2*h)}, v5, s[24:27], s28 offen')
        if h == 0: a.I(f's_add_u32 s28, s28, {16*1152}')
    a.label('K5_END')
    a.I('s_endpgm')
    return kernel_text('k5_kernel', a, 72), (NWG, 256, 0)
```

```python
from common import *
import os

NG, NL, NW = 216, 128, 144
PERM_ROWS = lambda g4, i: 16*(i >> 2) + 4*g4 + (i & 3)

def qkv_dest(a):
    vdiv(a, 'v3', 'v1', 576, 1727)
    a.I('v_mul_u32_u24 v4, 576, v3'); a.I('v_sub_u32 v4, v1, v4')
    vdiv(a, 'v5', 'v4', 18, 575)
    a.I('v_mul_u32_u24 v6, 18, v5'); a.I('v_sub_u32 v6, v4, v6')
    a.I('v_lshrrev_b32 v7, 3, v5'); a.I('v_lshl_add_u32 v7, v3, 2, v7'); a.I('v_and_b32 v8, 7, v5')
    a.I('v_and_b32 v9, 6, v8'); a.I('v_bfe_u32 v10, v6, 2, 1'); a.I('v_add_u32 v9, v9, v10')
    a.I('v_and_b32 v10, 1, v8'); a.I('v_lshlrev_b32 v10, 3, v10')
    a.I('v_bfe_u32 v11, v6, 3, 1'); a.I('v_lshl_add_u32 v10, v11, 2, v10')
    a.I('v_and_b32 v11, 3, v6'); a.I('v_add_u32 v10, v10, v11')
    a.I('v_cmp_eq_u32 vcc, 2, v3')
    a.I('v_cndmask_b32 v9, v9, v8, vcc'); a.I('v_cndmask_b32 v10, v10, v6, vcc')
    a.I('v_lshlrev_b32 v11, 1, v8'); a.I('v_add_u32 v11, v11, v6'); a.I('v_subrev_u32 v11, 16, v11')
    a.I('v_cmp_le_u32 vcc, 16, v6')
    a.I('v_mov_b32 v12, 8'); a.I('v_cndmask_b32 v9, v9, v12, vcc')
    a.I('v_cndmask_b32 v10, v10, v11, vcc')
    a.I('v_mul_u32_u24 v7, 162, v7'); a.I('v_add_u32 v7, v7, v9'); a.I('v_lshlrev_b32 v2, 10, v7')
    a.I('v_lshl_add_u32 v2, v10, 4, v2')

def k0():
    a = Asm()
    a.I(f's_cmp_ge_u32 s2, {NG+NL+NW}')
    a.I('s_cbranch_scc1 K0_END')
    a.I(f's_load_dwordx2 s[4:5], s[0:1], {A_WS}')
    a.I('s_mov_b32 s32, s2')
    a.I('s_cmp_lt_u32 s2, 72'); a.I('s_cbranch_scc1 K0_G')
    a.I(f's_cmp_lt_u32 s2, {72+NL}'); a.I('s_cbranch_scc1 K0_LN')
    a.I(f's_cmp_lt_u32 s2, {72+NL+NW}'); a.I('s_cbranch_scc1 K0_W')
    a.I(f's_sub_u32 s32, s2, {NL+NW}')
    a.label('K0_G')
    a.I(f's_load_dwordx2 s[8:9], s[0:1], {A_C}')
    a.I(f's_load_dwordx2 s[10:11], s[0:1], {A_WMOD}')
    a.I('s_lshr_b32 s33, s32, 1'); a.I('s_and_b32 s34, s32, 1')
    a.I('v_and_b32 v1, 3, v0'); a.I('v_lshrrev_b32 v2, 2, v0')
    a.I('s_movk_i32 s24, 6912'); a.I('v_mul_lo_u32 v3, v2, s24'); a.I('v_lshl_add_u32 v3, v1, 4, v3')
    a.I('v_lshlrev_b32 v4, 1, v2')
    a.I('s_lshl_b32 s35, s33, 6'); a.I(f's_mul_i32 s36, s34, {288*6912}'); a.I('s_add_u32 s35, s35, s36')
    a.I('s_mul_i32 s37, s34, 576')
    a.I('v_cmp_gt_u32 vcc, 32, v2'); a.I('v_mov_b32 v5, 0x7f000000'); a.I('v_cndmask_b32 v8, v5, v3, vcc'); a.I('v_cndmask_b32 v9, v5, v4, vcc')
    a.I('s_waitcnt lgkmcnt(0)')
    srd(a, 12, 10, 11, 576*6912); srd(a, 16, 8, 9, 576*2)
    for p in range(5): a.vmem(f'buffer_load_ushort v{10+p}, {"v4" if p < 4 else "v9"}, s[16:19], s37 offen offset:{p*128}')
    for p in range(5):
        a.vmem(f'buffer_load_dwordx4 {r4(20+4*p)}, {"v3" if p < 4 else "v8"}, s[12:15], s35 offen')
        if p < 4: a.I(f's_add_u32 s35, s35, {64*6912}')
    a.I('s_waitcnt vmcnt(5)')
    for p in range(5):
        c = f'v{10+p}'
        a.I(f'v_lshlrev_b32 {c}, 16, {c}'); a.I(f'v_mul_f32 v5, {hexf(-LOG2E)}, {c}')
        a.I('v_exp_f32 v5, v5'); a.I('v_add_f32 v5, 1.0, v5'); a.I('v_rcp_f32 v5, v5'); a.I(f'v_mul_f32 {c}, {c}, v5')
        bf16_round_f32(a, c, c)
    for j in range(8): a.I(f'v_mov_b32 v{40+j}, 0')
    for p in range(5):
        a.I(f's_waitcnt vmcnt({4-p})')
        for j in range(4):
            w = f'v{20+4*p+j}'
            a.I(f'v_lshlrev_b32 v5, 16, {w}'); a.I(f'v_and_b32 v6, 0xffff0000, {w}')
            a.I(f'v_fmac_f32 v{40+2*j}, v{10+p}, v5'); a.I(f'v_fmac_f32 v{41+2*j}, v{10+p}, v6')
    for j in range(8):
        r = f'v{40+j}'
        a.I(f'v_add_f32_dpp {r}, {r}, {r} row_ror:4 row_mask:0xf bank_mask:0xf')
    for j in range(8):
        r = f'v{40+j}'
        a.I(f'v_add_f32_dpp {r}, {r}, {r} row_ror:8 row_mask:0xf bank_mask:0xf')
    for j in range(8):
        r = f'v{40+j}'
        a.I(f'v_mov_b32 v{50+j}, {r}')
    for j in range(8): a.I(f'v_permlane16_swap_b32 v{40+j}, v{50+j}')
    for j in range(8): a.I(f'v_add_f32 v{40+j}, v{40+j}, v{50+j}')
    for j in range(8): a.I(f'v_mov_b32 v{50+j}, v{40+j}')
    for j in range(8): a.I(f'v_permlane32_swap_b32 v{40+j}, v{50+j}')
    for j in range(8): a.I(f'v_add_f32 v{40+j}, v{40+j}, v{50+j}')
    a.I('v_lshrrev_b32 v7, 6, v0'); a.I('v_lshlrev_b32 v7, 7, v7'); a.I('v_lshl_add_u32 v7, v1, 5, v7')
    a.I('v_and_b32 v8, 63, v0'); a.I('v_cmp_gt_u32 vcc, 4, v8'); a.I('s_and_saveexec_b64 s[28:29], vcc')
    a.I('ds_write_b128 v7, v[40:43]'); a.I('ds_write_b128 v7, v[44:47] offset:16')
    a.I('s_mov_b64 exec, s[28:29]')
    a.I('s_waitcnt lgkmcnt(0)'); a.I('s_barrier')
    a.I('v_cmp_gt_u32 vcc, 32, v0'); a.I('s_and_saveexec_b64 s[28:29], vcc'); a.I('s_cbranch_execz K0_END')
    a.I('v_lshlrev_b32 v8, 2, v0')
    for i in range(4): a.I(f'ds_read_b32 v{20+i}, v8 offset:{i*128}')
    a.I('s_waitcnt lgkmcnt(0)')
    a.I('v_add_f32 v20, v20, v21'); a.I('v_add_f32 v22, v22, v23'); a.I('v_add_f32 v20, v20, v22')
    srd(a, 12, 4, 5, WS.MODP_SZ, WS.MODP)
    a.I('s_lshl_b32 s25, s33, 7'); a.I(f's_mul_i32 s26, s34, {3456*4}'); a.I('s_add_u32 s25, s25, s26')
    a.I('buffer_store_dword v20, v8, s[12:15], s25 offen')
    a.I('s_endpgm')
    a.label('K0_LN')
    a.I(f's_load_dwordx2 s[6:7], s[0:1], {A_X}')
    a.I('s_sub_u32 s24, s2, 72'); a.I('s_lshl_b32 s24, s24, 4')
    a.I('v_lshrrev_b32 v1, 4, v0'); a.I('v_add_u32 v1, s24, v1')
    a.I('v_and_b32 v2, 15, v0')
    a.I('s_movk_i32 s25, 1152'); a.I('v_mul_lo_u32 v3, v1, s25'); a.I('v_lshl_add_u32 v3, v2, 4, v3')
    a.I('v_cmp_gt_u32 vcc, 8, v2'); a.I('v_mov_b32 v5, 0x7f000000'); a.I('v_cndmask_b32 v10, v5, v3, vcc')
    a.I('s_waitcnt lgkmcnt(0)')
    srd(a, 12, 6, 7, S*1152)
    toks = [a.vmem(f'buffer_load_dwordx4 {r4(20+4*i)}, {"v3" if i < 4 else "v10"}, s[12:15], 0 offen offset:{i*256}') for i in range(5)]
    srd(a, 16, 4, 5, WS.NF_SZ, WS.NF); srd(a, 20, 4, 5, WS.XF_SZ, WS.XF)
    a.I('v_lshrrev_b32 v4, 4, v1'); a.I('v_mul_u32_u24 v4, 18, v4')
    a.I('v_lshrrev_b32 v5, 2, v2'); a.I('v_add_u32 v4, v4, v5'); a.I('v_lshlrev_b32 v4, 6, v4')
    a.I('v_and_b32 v5, 1, v2'); a.I('v_lshl_add_u32 v4, v5, 5, v4')
    a.I('v_and_b32 v5, 15, v1'); a.I('v_add_u32 v4, v4, v5'); a.I('v_lshlrev_b32 v4, 4, v4')
    a.I('v_bfe_u32 v5, v2, 1, 1'); a.I('v_lshl_add_u32 v4, v5, 3, v4')
    a.I('v_cmp_gt_u32 vcc, 8, v2'); a.I('v_mov_b32 v5, 0x7f000000'); a.I('v_cndmask_b32 v11, v5, v4, vcc')
    a.I('v_mov_b32 v6, 0'); a.I('v_mov_b32 v7, 0'); a.I('s_mov_b32 s26, 0')
    U = 44
    for i in range(5):
        a.wait(vm=toks[i])
        ad = 'v4' if i < 4 else 'v11'
        a.vmem(f'buffer_store_dwordx2 {r2(20+4*i)}, {ad}, s[20:23], s26 offen')
        a.vmem(f'buffer_store_dwordx2 {r2(22+4*i)}, {ad}, s[20:23], s26 offen offset:256')
        if i < 4: a.I('s_add_u32 s26, s26, 4096')
        for j in range(4):
            w = f'v{20+4*i+j}'; lo, hi = U+8*i+2*j, U+8*i+2*j+1
            a.I(f'v_lshlrev_b32 v{lo}, 16, {w}'); a.I(f'v_and_b32 v{hi}, 0xffff0000, {w}')
            a.I(f'v_add_f32 v6, v6, v{lo}'); a.I(f'v_fmac_f32 v7, v{lo}, v{lo}'); a.I(f'v_add_f32 v6, v6, v{hi}'); a.I(f'v_fmac_f32 v7, v{hi}, v{hi}')
    for dpp in ('quad_perm:[1,0,3,2]', 'quad_perm:[2,3,0,1]', 'row_half_mirror', 'row_mirror'):
        a.I(f'v_add_f32_dpp v6, v6, v6 {dpp} row_mask:0xf bank_mask:0xf')
        a.I(f'v_add_f32_dpp v7, v7, v7 {dpp} row_mask:0xf bank_mask:0xf')
    a.I(f'v_mul_f32 v6, {hexf(1.0/576)}, v6'); a.I(f'v_mul_f32 v7, {hexf(1.0/576)}, v7')
    a.I('v_fma_f32 v7, -v6, v6, v7'); a.I('v_max_f32 v7, 0, v7'); a.I(f'v_add_f32 v7, {hexf(1e-5)}, v7'); a.I('v_rsq_f32 v7, v7')
    a.I('v_mul_f32 v6, v6, v7'); a.I('v_sub_f32 v6, 0, v6')
    for i in range(5):
        for j in range(8): a.I(f'v_fma_f32 v{U+8*i+j}, v{U+8*i+j}, v7, v6')
    a.I('s_mov_b32 s26, 0')
    for i in range(5):
        d = 84 + (i % 2)*4
        for j in range(4): a.I(f'v_cvt_pk_bf16_f32 v{d+j}, v{U+8*i+2*j}, v{U+8*i+2*j+1}')
        ad = 'v4' if i < 4 else 'v11'
        a.vmem(f'buffer_store_dwordx2 {r2(d)}, {ad}, s[16:19], s26 offen')
        a.vmem(f'buffer_store_dwordx2 {r2(d+2)}, {ad}, s[16:19], s26 offen offset:256')
        if i < 4: a.I('s_add_u32 s26, s26, 4096')
    a.I('s_endpgm')
    a.label('K0_W')
    a.I(f's_load_dwordx2 s[30:31], s[0:1], {A_WQKV}')
    if os.environ.get('NOCPF', '0') != '1':
        a.I(f's_cmp_ge_u32 s2, {72+NL+8}'); a.I('s_cbranch_scc1 K0_NCP')
        a.I('v_readfirstlane_b32 s75, v0'); a.I('s_lshr_b32 s75, s75, 6')
        code_prefetch(a, 'k1_kernel', 28672, 's75', 'K0')
        a.label('K0_NCP')
    a.I(f's_sub_u32 s33, s2, {72+NL}'); a.I('s_and_b32 s37, s33, 1'); a.I('s_bfe_u32 s35, s33, 0x20001'); a.I('s_lshr_b32 s36, s33, 3')
    a.I('s_mul_i32 s25, s35, 216'); a.I('v_add_u32 v1, s25, v0'); a.I('v_lshlrev_b32 v1, 1, v1'); a.I('v_min_u32 v1, 1726, v1')
    a.I('v_lshlrev_b32 v13, 1, v1')
    a.I(f's_mul_i32 s27, s36, {32*3456}'); a.I(f's_mul_i32 s28, s37, {8*3456}'); a.I('s_add_u32 s27, s27, s28')
    a.I('s_waitcnt lgkmcnt(0)')
    srd(a, 12, 30, 31, 576*3456)
    a.I('s_movk_i32 s61, 216'); a.I('v_cmp_gt_u32 vcc, s61, v0'); a.I('s_and_saveexec_b64 s[62:63], vcc'); a.I('s_cbranch_execz K0_END')
    toks = []
    for g in range(2):
        for i in range(8):
            a.I(f's_add_u32 s38, s27, {PERM_ROWS(g, i)*3456}')
            a.vmem(f'buffer_load_dword v{20+g*8+i}, v13, s[12:15], s38 offen')
        toks.append(a.vm)
    qkv_dest(a)
    srd(a, 16, 4, 5, WS.WQKVF_SZ, WS.WQKVF)
    a.I(f's_mul_i32 s28, s36, {9*1024}'); a.I('s_lshl_b32 s29, s37, 9'); a.I('s_add_u32 s28, s28, s29')
    a.I('s_mov_b32 s65, 0x05040100'); a.I('s_mov_b32 s66, 0x07060302')
    for g in range(2):
        a.wait(vm=toks[g])
        b = 20 + g*8; d = 40 + g*8
        for q in range(4):
            a.I(f'v_perm_b32 v{d+q}, v{b+2*q+1}, v{b+2*q}, s65'); a.I(f'v_perm_b32 v{d+4+q}, v{b+2*q+1}, v{b+2*q}, s66')
        a.vmem(f'buffer_store_dwordx4 {r4(d)}, v2, s[16:19], s28 offen offset:{g*256} ' + os.environ.get('K0FLAG', ''))
        a.vmem(f'buffer_store_dwordx4 {r4(d+4)}, v2, s[16:19], s28 offen offset:{g*256+16} ' + os.environ.get('K0FLAG', ''))
    a.label('K0_END')
    a.I('s_endpgm')
    return kernel_text('k0_kernel', a, 96), (NG+NL+NW, 256, 6144)

NP_W1, NP_W2, NP_WO = 90, 144, 18
NPREP = 64

def relayout4(a, src_srd, dst_srd, rowstride, rows_fn, vsrc, vdst, s_src, s_dst, nvalid, lab):
    a.I(f's_movk_i32 s61, {nvalid}'); a.I('v_cmp_gt_u32 vcc, s61, v0'); a.I('s_and_saveexec_b64 s[62:63], vcc'); a.I(f's_cbranch_execz {lab}')
    toks = []
    for g4 in range(4):
        for i in range(8):
            a.I(f's_add_u32 s64, {s_src}, {rows_fn(g4, i)*rowstride}')
            a.vmem(f'buffer_load_dwordx2 {r2(20+g4*16+2*i)}, {vsrc}, s[{src_srd}:{src_srd+3}], s64 offen')
        toks.append(a.vm)
    a.I('s_mov_b32 s65, 0x05040100'); a.I('s_mov_b32 s66, 0x07060302')
    for g4 in range(4):
        a.wait(vm=toks[g4])
        b = 20 + g4*16; d = 90 + (g4 % 2)*16
        for cpair in range(2):
            for q in range(4):
                a.I(f'v_perm_b32 v{d+cpair*8+q}, v{b+2*(2*q+1)+cpair}, v{b+2*(2*q)+cpair}, s65')
                a.I(f'v_perm_b32 v{d+cpair*8+4+q}, v{b+2*(2*q+1)+cpair}, v{b+2*(2*q)+cpair}, s66')
        for z in range(4):
            a.vmem(f'buffer_store_dwordx4 {r4(d+4*z)}, {vdst}, s[{dst_srd}:{dst_srd+3}], {s_dst} offen offset:{g4*256+16*z}')
    a.label(lab)

def prep_body(a, su, L):
    a.I('s_waitcnt lgkmcnt(0)')
    srd(a, 12, 4, 5, WS.MODP_SZ, WS.MODP); srd(a, 16, 8, 9, 576*9216)
    vdiv(a, 'v2', 'v0', 9, 767); a.I('v_mul_u32_u24 v1, 9, v2'); a.I('v_sub_u32 v1, v0, v1')
    a.I('s_movk_i32 s26, 9216'); a.I('v_mul_lo_u32 v3, v2, s26'); a.I('v_lshl_add_u32 v3, v1, 4, v3')
    a.I(f's_mul_i32 s27, {su}, 144')
    a.I('s_movk_i32 s26, 85'); a.I('v_cmp_gt_u32 vcc, s26, v2'); a.I('v_mov_b32 v4, 0x7f000000'); a.I('v_cndmask_b32 v3, v4, v3, vcc')
    a.I('v_lshlrev_b32 v5, 2, v0')
    for z, idx in enumerate((1728, 1728+3456, 2304, 2304+3456)):
        a.I(f's_mov_b32 s70, {idx*4}'); a.vmem(f'buffer_load_dword v{10+z}, v5, s[12:15], s70 offen')
    mtok = a.vm
    toks = []
    for p in range(7):
        toks.append(a.vmem(f'buffer_load_dwordx4 {r4(20+4*p)}, v3, s[16:19], s27 offen'))
        if p < 6: a.I(f's_add_u32 s27, s27, {85*9216}')
    a.wait(vm=mtok)
    a.I('v_add_f32 v10, v10, v11'); bf16_round_f32(a, 'v10', 'v10')
    a.I('v_add_f32 v12, v12, v13'); bf16_round_f32(a, 'v12', 'v12'); a.I('v_add_f32 v12, 1.0, v12'); bf16_round_f32(a, 'v12', 'v12')
    a.I('s_movk_i32 s26, 576'); a.I('v_cmp_gt_u32 vcc, s26, v0'); a.I('s_and_saveexec_b64 s[62:63], vcc')
    a.I('ds_write_b32 v5, v12'); a.I('ds_write_b32 v5, v10 offset:2304')
    a.I('s_mov_b64 exec, s[62:63]')
    a.I('v_mov_b32 v6, 0'); a.I('s_movk_i32 s26, 144'); a.I('v_cmp_gt_u32 vcc, s26, v0'); a.I('s_and_saveexec_b64 s[62:63], vcc')
    a.I('ds_write_b32 v5, v6 offset:4608'); a.I('s_mov_b64 exec, s[62:63]')
    a.I('s_waitcnt lgkmcnt(0)'); a.I('s_barrier')
    for j in range(16): a.I(f'v_mov_b32 v{50+j}, 0')
    a.I('v_lshlrev_b32 v7, 2, v2')
    for p in range(7):
        a.I(f'v_add_u32 v8, {85*p*4}, v7'); a.I('v_min_u32 v8, 2300, v8')
        a.I('ds_read_b32 v14, v8'); a.I('ds_read_b32 v15, v8 offset:2304')
        a.wait(vm=toks[p]); a.I('s_waitcnt lgkmcnt(0)')
        for j in range(4):
            w = f'v{20+4*p+j}'
            a.I(f'v_lshlrev_b32 v16, 16, {w}'); a.I(f'v_and_b32 v17, 0xffff0000, {w}')
            a.I(f'v_fmac_f32 v{50+2*j}, v14, v16'); a.I(f'v_fmac_f32 v{51+2*j}, v14, v17')
            a.I(f'v_fmac_f32 v{58+2*j}, v15, v16'); a.I(f'v_fmac_f32 v{59+2*j}, v15, v17')
    a.I('v_mul_u32_u24 v8, 576, v2'); a.I('v_lshl_add_u32 v8, v1, 5, v8'); a.I('v_add_u32 v8, 8192, v8')
    a.I('s_movk_i32 s26, 85'); a.I('v_cmp_gt_u32 vcc, s26, v2'); a.I('s_and_saveexec_b64 s[62:63], vcc')
    a.I('ds_write_b128 v8, v[50:53]'); a.I('ds_write_b128 v8, v[54:57] offset:16')
    a.I('ds_write_b128 v8, v[58:61] offset:288'); a.I('ds_write_b128 v8, v[62:65] offset:304')
    a.I('s_mov_b64 exec, s[62:63]')
    a.I('s_waitcnt lgkmcnt(0)'); a.I('s_barrier')
    vdiv(a, 'v9', 'v0', 144, 767); a.I('v_mul_u32_u24 v10, 144, v9'); a.I('v_sub_u32 v10, v0, v10')
    a.I('v_mul_u32_u24 v11, 9792, v9'); a.I('v_lshl_add_u32 v11, v10, 2, v11'); a.I('v_add_u32 v11, 8192, v11')
    a.I('s_movk_i32 s26, 720'); a.I('v_cmp_gt_u32 vcc, s26, v0'); a.I('s_and_saveexec_b64 s[62:63], vcc')
    for z in range(17): a.I(f'ds_read_b32 v{20+z}, v11 offset:{z*576}')
    a.I('s_waitcnt lgkmcnt(0)')
    for z in range(1, 17): a.I(f'v_add_f32 v20, v20, v{20+z}')
    a.I('v_lshlrev_b32 v10, 2, v10'); a.I('ds_add_f32 v10, v20 offset:4608')
    a.I('s_mov_b64 exec, s[62:63]')
    a.I('s_waitcnt lgkmcnt(0)'); a.I('s_barrier')
    srd(a, 20, 4, 5, WS.UT1_SZ, WS.UT1)
    a.I('s_movk_i32 s26, 144'); a.I('v_cmp_gt_u32 vcc, s26, v0'); a.I('s_and_saveexec_b64 s[62:63], vcc'); a.I(f's_cbranch_execz {L}_U2')
    a.I('ds_read_b32 v14, v5 offset:4608')
    a.I('s_movk_i32 s26, 72'); a.I('v_cmp_le_u32 vcc, s26, v0'); a.I(f'v_mov_b32 v15, {F*4 - 288}'); a.I('v_cndmask_b32 v15, 0, v15, vcc'); a.I('v_add_u32 v15, v15, v5')
    a.I(f's_mul_i32 s27, {su}, 288'); a.I('s_waitcnt lgkmcnt(0)')
    a.I('buffer_store_dword v14, v15, s[20:23], s27 offen')
    a.label(f'{L}_U2')
    a.I('s_mov_b64 exec, s[62:63]')
    a.I(f's_cmp_lg_u32 {su}, 0'); a.I(f's_cbranch_scc1 {L}_X')
    a.label(f'{L}_FIN')
    a.I('v_readfirstlane_b32 s70, v0'); a.I('s_cmp_ge_u32 s70, 256'); a.I(f's_cbranch_scc1 {L}_X')
    a.I('s_waitcnt lgkmcnt(0)')
    srd(a, 12, 4, 5, WS.MODP_SZ, WS.MODP); srd(a, 16, 4, 5, WS.MOD_SZ, WS.MOD)
    srd(a, 24, 4, 5, WS.G2_SZ, WS.G2)
    a.I('v_lshlrev_b32 v1, 2, v0')
    for i in range(14):
        a.I(f's_mov_b32 s70, {i*1024}'); a.vmem(f'buffer_load_dword v{20+i}, v1, s[12:15], s70 offen')
        a.I(f's_mov_b32 s71, {i*1024 + 3456*4}'); a.vmem(f'buffer_load_dword v{40+i}, v1, s[12:15], s71 offen')
    a.I('s_waitcnt vmcnt(0)')
    for i in range(14):
        a.I(f'v_add_f32 v{20+i}, v{20+i}, v{40+i}'); bf16_round_f32(a, f'v{20+i}', f'v{20+i}')
        a.I(f's_mov_b32 s70, {i*1024}'); a.vmem(f'buffer_store_dword v{20+i}, v1, s[16:19], s70 offen')
    for i in range(3):
        a.I(f's_mov_b32 s70, {(2304+256*i)*4}'); a.vmem(f'buffer_load_dword v62, v1, s[12:15], s70 offen')
        a.I(f's_mov_b32 s70, {(2304+256*i+3456)*4}'); a.vmem(f'buffer_load_dword v63, v1, s[12:15], s70 offen')
        a.I('s_waitcnt vmcnt(0)')
        a.I('v_add_f32 v62, v62, v63'); bf16_round_f32(a, 'v62', 'v62'); a.I('v_add_f32 v62, 1.0, v62'); bf16_round_f32(a, 'v62', 'v62')
        a.I(f's_mov_b32 s70, {256*i*4}'); a.vmem('buffer_store_dword v62, v1, s[24:27], s70 offen')
    a.I('s_endpgm')

    a.label(f'{L}_X')
```

```python
from common import *
import os

S0, S1, O, CI, P, QLO, QHI = 16, 32, 48, 64, 80, 88, 92
KLO = (96, 100); KHI = (104, 108); VF = (112, 120)
IMG = 64*KV_TILE
SPARE = IMG
def r(b, n): return f'v[{b}:{b+n-1}]'
def mf(d, a_, b_, c): return f'v_mfma_f32_32x32x16_bf16 {r(d,16)}, {r(a_,4)}, {r(b_,4)}, {c}'
def mfh(d, a_, b_, c):
    if os.environ.get('QK8', '1') == '1': return f'v_mfma_f32_32x32x8_bf16 {r(d,16)}, {r(a_,2)}, {r(b_,2)}, {c}'
    return mf(d, a_, b_, c)

NFR1, NFR2, NFRO = 288*18, 36*144, 36*18
NFR = NFR1 + NFR2 + NFRO
def prep_issue(a, L):
    a.I('s_mov_b32 s60, -1')
    a.I(f's_cmp_ge_u32 s52, {NFR}'); a.I(f's_cbranch_scc1 {L}_E')
    a.I('v_lshrrev_b32 v9, 1, v1')
    a.I('v_and_b32 v10, 1, v1'); a.I('v_lshlrev_b32 v10, 4, v10')
    a.I(f's_cmp_ge_u32 s52, {NFR1+NFR2}'); a.I(f's_cbranch_scc1 {L}_O')
    a.I(f's_cmp_ge_u32 s52, {NFR1}'); a.I(f's_cbranch_scc1 {L}_2')
    sdiv(a, 's53', 's52', 288, NFR1-1); a.I('s_mul_i32 s54, s53, 288'); a.I('s_sub_u32 s54, s52, s54')
    sdiv(a, 's55', 's54', 3, 287); a.I('s_mul_i32 s61, s55, 3'); a.I('s_sub_u32 s61, s54, s61')
    a.I('s_mul_i32 s60, s55, 54'); a.I('s_mul_i32 s62, s53, 3'); a.I('s_add_u32 s60, s60, s62'); a.I('s_add_u32 s60, s60, s61'); a.I('s_lshl_b32 s60, s60, 10')
    srd(a, 56, 4, 5, WS.W1S_SZ, WS.W1S); srd(a, 64, 46, 47, 576*9216)
    a.I('v_mul_u32_u24 v9, 9216, v9'); a.I(f's_mul_i32 s61, s53, {32*9216}'); a.I('s_lshl_b32 s62, s54, 5'); a.I('s_add_u32 s61, s61, s62')
    a.I(f's_branch {L}_G')
    a.label(f'{L}_2')
    a.I(f's_sub_u32 s52, s52, {NFR1}')
    sdiv(a, 's53', 's52', 36, NFR2-1); a.I('s_mul_i32 s54, s53, 36'); a.I('s_sub_u32 s54, s52, s54')
    sdiv(a, 's55', 's54', 3, 35); a.I('s_mul_i32 s61, s55, 3'); a.I('s_sub_u32 s61, s54, s61')
    sdiv(a, 's62', 's53', 18, 143); a.I('s_mul_i32 s63, s62, 18'); a.I('s_sub_u32 s63, s53, s63')
    a.I('s_mul_i32 s60, s62, 12'); a.I('s_add_u32 s60, s60, s55'); a.I('s_mul_i32 s60, s60, 18'); a.I('s_add_u32 s60, s60, s63'); a.I('s_mul_i32 s60, s60, 3')
    a.I('s_add_u32 s60, s60, s61'); a.I('s_lshl_b32 s60, s60, 10')
    srd(a, 56, 4, 5, WS.W2S_SZ, WS.W2S); srd(a, 64, 48, 49, F*1152)
    a.I('v_mul_u32_u24 v9, 1152, v9'); a.I(f's_mul_i32 s61, s53, {32*1152}'); a.I('s_lshl_b32 s62, s54, 5'); a.I('s_add_u32 s61, s61, s62')
    a.I(f's_branch {L}_G')
    a.label(f'{L}_O')
    a.I(f's_sub_u32 s52, s52, {NFR1+NFR2}')
    sdiv(a, 's53', 's52', 36, NFRO-1); a.I('s_mul_i32 s54, s53, 36'); a.I('s_sub_u32 s54, s52, s54')
    sdiv(a, 's55', 's54', 9, 35); a.I('s_mul_i32 s61, s55, 9'); a.I('s_sub_u32 s61, s54, s61')
    a.I('s_mul_i32 s60, s55, 18'); a.I('s_add_u32 s60, s60, s53'); a.I('s_mul_i32 s60, s60, 9'); a.I('s_add_u32 s60, s60, s61'); a.I('s_lshl_b32 s60, s60, 10')
    srd(a, 56, 4, 5, WS.WOF_SZ, WS.WOF); srd(a, 64, 50, 51, 576*1152)
    a.I('v_bfe_u32 v11, v9, 2, 2')
    a.I('s_cmp_ge_u32 s53, 16'); a.I(f's_cbranch_scc1 {L}_O2')
    a.I('v_lshrrev_b32 v12, 1, v11'); a.I('v_mul_u32_u24 v12, 18, v12'); a.I('v_and_b32 v11, 1, v11'); a.I('v_lshl_add_u32 v12, v11, 2, v12')
    a.I('v_lshrrev_b32 v11, 4, v9'); a.I('v_lshl_add_u32 v12, v11, 3, v12'); a.I('v_and_b32 v11, 3, v9'); a.I('v_add_u32 v9, v12, v11')
    a.I('s_mul_i32 s61, s53, 36'); a.I(f's_branch {L}_O3')
    a.label(f'{L}_O2')
    a.I('v_mul_u32_u24 v12, 72, v11'); a.I('v_lshrrev_b32 v11, 4, v9'); a.I('v_lshlrev_b32 v11, 1, v11'); a.I('v_bfe_u32 v13, v9, 1, 1'); a.I('v_add_u32 v11, v11, v13')
    a.I('v_mul_u32_u24 v11, 18, v11'); a.I('v_add_u32 v12, v12, v11'); a.I('v_and_b32 v11, 1, v9'); a.I('v_add_u32 v12, v12, v11'); a.I('v_add_u32 v9, 16, v12')
    a.I('s_sub_u32 s61, s53, 16'); a.I('s_mul_i32 s61, s61, 288')
    a.label(f'{L}_O3')
    a.I('v_mul_u32_u24 v9, 1152, v9'); a.I('s_mul_i32 s61, s61, 1152'); a.I('s_lshl_b32 s62, s54, 5'); a.I('s_add_u32 s61, s61, s62')
    a.label(f'{L}_G')
    a.I('v_add_u32 v9, v9, v10')
    a.I('s_lshl_b32 s62, s20, 10'); a.I(f's_add_u32 m0, s62, {SPARE}')
    a.I('buffer_load_dwordx4 v9, s[64:67], s61 offen lds')
    a.label(f'{L}_E')

def prep_consume(a, L):
    a.I('s_cmp_eq_u32 s60, -1'); a.I(f's_cbranch_scc1 {L}_E')
    a.I('s_waitcnt vmcnt(0)')
    a.I('v_lshrrev_b32 v9, 2, v1'); a.I('v_lshlrev_b32 v9, 5, v9'); a.I('v_and_b32 v10, 3, v1'); a.I('v_lshl_add_u32 v9, v10, 3, v9')
    a.I('s_lshl_b32 s62, s20, 10'); a.I(f's_add_u32 s62, s62, {SPARE}'); a.I('v_add_u32 v9, s62, v9')
    a.I('ds_read_b64_tr_b16 v[12:13], v9'); a.I('ds_read_b64_tr_b16 v[14:15], v9 offset:512')
    a.I('s_waitcnt lgkmcnt(0)')
    a.I('buffer_store_dwordx4 v[12:15], v5, s[56:59], s60 offen ' + os.environ.get('PREPFLAG', 'sc1'))
    a.label(f'{L}_E')

def k2():
    a = Asm()
    a.I('s_cmp_ge_u32 s2, 256'); a.I('s_cbranch_scc1 K2_END')
    a.I(f's_load_dwordx2 s[4:5], s[0:1], {A_WS}')
    a.I(f's_load_dwordx2 s[46:47], s[0:1], {A_W1}')
    a.I(f's_load_dwordx2 s[48:49], s[0:1], {A_W2}')
    a.I(f's_load_dwordx2 s[50:51], s[0:1], {A_WO}')
    a.I('v_lshrrev_b32 v1, 6, v0'); a.I('v_readfirstlane_b32 s20, v1')
    a.I('v_and_b32 v1, 63, v0')
    a.I('s_and_b32 s21, s2, 7'); a.I('s_lshl_b32 s21, s21, 2'); a.I('s_bfe_u32 s22, s2, 0x20003'); a.I('s_add_u32 s21, s21, s22')
    a.I('s_lshr_b32 s22, s2, 5')
    a.I('s_and_b32 s23, s20, 7')
    a.I('s_lshr_b32 s24, s20, 3')
    a.I('s_lshl_b32 s25, s22, 3'); a.I('s_add_u32 s25, s25, s23')
    a.I('s_mov_b32 s40, 0')
    a.I('v_lshlrev_b32 v5, 4, v1')
    a.I('v_and_b32 v6, 31, v1'); a.I('v_lshlrev_b32 v7, 2, v6'); a.I('v_lshlrev_b32 v8, 2, v1')
    a.I('s_mul_i32 s44, s24, 72'); a.I('s_add_u32 s44, s44, s23'); a.I('s_lshl_b32 s44, s44, 10')
    a.I('s_waitcnt lgkmcnt(0)')
    a.I(f's_mul_i32 s26, s21, {IMG}')
    a.I('s_add_u32 s8, s4, s26'); a.I('s_addc_u32 s9, s5, 0')
    a.I(f's_add_u32 s8, s8, {WS.KVIMG}'); a.I('s_addc_u32 s9, s9, 0')
    a.I(f's_mov_b32 s10, {IMG}'); a.I('s_mov_b32 s11, 0x00020000')
    def dma(j):
        a.I(f's_add_u32 s26, s44, {j*8192}')
        a.I('s_mov_b32 m0, s26')
        a.vmem('buffer_load_dwordx4 v5, s[8:11], s26 offen lds')
    a.label('K2_RESTART')
    dma(0); dma(1)
    a.I('s_cmp_lg_u32 s40, 0'); a.I('s_cbranch_scc1 K2_SKIPQ0')
    srd(a, 12, 4, 5, WS.QIMG_SZ, WS.QIMG)
    srd(a, 16, 4, 5, WS.KMAX_SZ, WS.KMAX)
    a.I('s_lshl_b32 s26, s21, 6'); a.I('s_add_u32 s26, s26, s25'); a.I(f's_mul_i32 s26, s26, {QT_BYTES}')
    a.vmem(f'buffer_load_dwordx4 {r(QLO,4)}, v5, s[12:15], s26 offen')
    a.vmem(f'buffer_load_dword v{QHI}, v7, s[12:15], s26 offen offset:1024')
    a.I('s_lshl_b32 s26, s21, 8')
    a.vmem('buffer_load_dword v9, v8, s[16:19], s26 offen')
    a.label('K2_SKIPQ0')
    stamp(a, 0)
    a.I(f's_mul_i32 s27, s24, {32*KV_TILE}')
    a.I('v_add_u32 v2, s27, v5'); a.I('v_add_u32 v3, s27, v7')
    a.I('v_min_u32 v4, 17, v6'); a.I('v_lshrrev_b32 v10, 5, v1'); a.I('v_mul_u32_u24 v11, 18, v10')
    a.I('v_add_u32 v4, v4, v11'); a.I('v_lshlrev_b32 v4, 4, v4'); a.I('v_add_u32 v4, s27, v4')
    for j in range(16): a.I(f'v_mov_b32 v{O+j}, 0')
    a.I('v_cmp_eq_u32 vcc, 18, v6'); a.I('v_mov_b32 v12, 0x3f803f80'); a.I('v_cndmask_b32 v12, 0, v12, vcc')
    for j in range(16): a.I(f'v_mov_b32 v{VF[0]+j}, v12')
    a.I('s_mov_b32 s42, 0x3ffff'); a.I('s_mov_b32 s43, 0x3ffff')
    a.I('s_cmp_lg_u32 s40, 0'); a.I('s_cbranch_scc1 K2_SKIPQ')
    for j in range(1, 4): a.I(f'v_mov_b32 v{QHI+j}, 0')
    for b in KHI:
        for j in range(1, 4): a.I(f'v_mov_b32 v{b+j}, 0')
    a.I('s_waitcnt vmcnt(0)')
    a.I('v_cmp_eq_u32 vcc, 0, v10')
    a.I(f'v_cndmask_b32 v{QHI}, 0, v{QHI}, vcc')
    a.I('v_mov_b32 v12, 0')
    for q in [QLO, QLO+1, QLO+2, QLO+3, QHI]:
        a.I(f'v_lshlrev_b32 v13, 16, v{q}'); a.I('v_fmac_f32 v12, v13, v13')
        a.I(f'v_and_b32 v13, 0xffff0000, v{q}'); a.I('v_fmac_f32 v12, v13, v13')
    a.I('v_mov_b32 v13, v12'); a.I('v_permlane32_swap_b32 v12, v13'); a.I('v_add_f32 v12, v12, v13')
    for dpp in ('quad_perm:[1,0,3,2]', 'quad_perm:[2,3,0,1]', 'row_half_mirror', 'row_mirror'):
        a.I(f'v_max_f32_dpp v9, v9, v9 {dpp} row_mask:0xf bank_mask:0xf')
    a.I('v_mov_b32 v13, v9'); a.I('v_permlane16_swap_b32 v9, v13'); a.I('v_max_f32 v9, v9, v13')
    a.I('v_mov_b32 v13, v9'); a.I('v_permlane32_swap_b32 v9, v13'); a.I('v_max_f32 v9, v9, v13')
    a.I('v_mul_f32 v12, v12, v9'); a.I('v_sqrt_f32 v12, v12')
    a.I(f'v_mul_f32 v12, {hexf(-1.015625)}, v12')
    for j in range(16): a.I(f'v_mov_b32 v{CI+j}, v12')
    a.label('K2_SKIPQ')
    stamp(a, 1)
    a.I('s_cmp_eq_u32 s40, 0'); a.I('s_cbranch_scc1 K2_MAIN')
    for j in range(2, 9): dma(j)
    a.I('s_waitcnt vmcnt(0) lgkmcnt(0)'); a.I('s_barrier')
    a.I('v_mov_b32 v12, 0xff800000')
    a.I('v_mov_b32 v14, v2'); a.I('v_mov_b32 v15, v3')
    a.I('s_mov_b32 s28, 32')
    a.label('K2_MAXLOOP')
    a.I(f'ds_read_b128 {r(KLO[0],4)}, v14'); a.I(f'ds_read_b32 v{KHI[0]}, v15 offset:1024')
    a.I('s_waitcnt lgkmcnt(0)')
    a.I(mf(S0, KLO[0], QLO, '0')); a.I(mfh(S0, KHI[0], QHI, r(S0,16)))
    for j in range(0, 16, 2): a.I(f'v_max3_f32 v12, v12, v{S0+j}, v{S0+j+1}')
    a.I(f'v_add_u32 v14, {KV_TILE}, v14'); a.I(f'v_add_u32 v15, {KV_TILE}, v15')
    a.I('s_sub_u32 s28, s28, 1'); a.I('s_cmp_lg_u32 s28, 0'); a.I('s_cbranch_scc1 K2_MAXLOOP')
    a.I('v_mov_b32 v13, v12'); a.I('v_permlane32_swap_b32 v12, v13'); a.I('v_max_f32 v12, v12, v13')
    a.I('s_lshl_b32 s28, s20, 8'); a.I(f's_add_u32 s28, s28, {SPARE}'); a.I('v_add_u32 v14, s28, v8')
    a.I('ds_write_b32 v14, v12')
    a.I('s_waitcnt lgkmcnt(0)'); a.I('s_barrier')
    a.I('s_xor_b32 s28, s20, 8'); a.I('s_lshl_b32 s28, s28, 8'); a.I(f's_add_u32 s28, s28, {SPARE}'); a.I('v_add_u32 v14, s28, v8')
    a.I('ds_read_b32 v13, v14'); a.I('s_waitcnt lgkmcnt(0)')
    a.I('v_max_f32 v12, v12, v13'); a.I('v_sub_f32 v12, 0, v12')
    for j in range(16): a.I(f'v_mov_b32 v{CI+j}, v12')
    a.label('K2_MAIN')
    a.I('s_waitcnt vmcnt(0) lgkmcnt(0)'); a.I('s_barrier')
    stamp(a, 2)
    def rdK(t, buf):
        a.I(f'ds_read_b128 {r(KLO[buf],4)}, v2 offset:{t*KV_TILE}')
        a.I(f'ds_read_b32 v{KHI[buf]}, v3 offset:{t*KV_TILE+1024}')
    def rdV(t, buf):
        a.I('s_mov_b64 exec, s[42:43]')
        a.I(f'ds_read_b128 {r(VF[buf],4)}, v4 offset:{t*KV_TILE+VT_OFF}')
        a.I(f'ds_read_b128 {r(VF[buf]+4,4)}, v4 offset:{t*KV_TILE+VT_OFF+576}')
        a.I('s_mov_b64 exec, -1')
    rdK(0, 0); rdK(1, 1); rdV(0, 0)
    for j in range(4): a.I(f'v_mov_b32 v{P+4+j}, 0')
    a.I('s_waitcnt lgkmcnt(0)')
    a.I(mf(S0, KLO[0], QLO, r(CI,16))); a.I(mfh(S0, KHI[0], QHI, r(S0,16)))
    U = 8
    def tile(t, extra=None):
        cur = (S0, S1)[t & 1]; nxt = (S0, S1)[(t+1) & 1]
        kb = (t+1) & 1
        a.I('s_waitcnt lgkmcnt(0)')
        a.I(mf(nxt, KLO[kb], QLO, r(CI,16)))
        a.I(mf(O, VF[(t+1) & 1]+4, P+4, r(O,16)))
        for j in range(8): a.I(f'v_exp_f32 v{cur+j}, v{cur+j}')
        a.I(mfh(nxt, KHI[kb], QHI, r(nxt,16)))
        rdK(t+2, t & 1); rdV(t+1, (t+1) & 1)
        if extra: extra()
        for j in range(4): a.I(f'v_cvt_pk_bf16_f32 v{P+j}, v{cur+2*j}, v{cur+2*j+1}')
        for j in range(8): a.I(f'v_exp_f32 v{cur+8+j}, v{cur+8+j}')
        a.I(mf(O, VF[t & 1], P, r(O,16)))
        for j in range(4): a.I(f'v_cvt_pk_bf16_f32 v{P+4+j}, v{cur+8+2*j}, v{cur+8+2*j+1}')
    PF = 81
    a.I('s_setprio 3')
    dl = [[2, 3], [4, 5], [6, 7], [8]]
    for t in range(U):
        if t == 5:
            a.I('s_waitcnt vmcnt(0)'); a.I('s_barrier')
        if t == 5 and os.environ.get('NOCPF', '0') != '1':
            a.I('s_cmp_ge_u32 s2, 8'); a.I('s_cbranch_scc1 K2_NCP')
            code_prefetch(a, 'k3_kernel', 16384, 's20', 'K2', vtmp=(12, 13, 14))
            a.label('K2_NCP')
        if t == 6:
            a.I('s_mul_i32 s52, s2, 48'); a.I('s_add_u32 s52, s52, s20'); a.I('s_mov_b32 s68, s52')
            prep_issue(a, 'K2_PI0')
        tile(t, (lambda t=t: [dma(j) for j in dl[t]]) if t < 4 else None)
    for v in (2, 3, 4): a.I(f'v_add_u32 v{v}, {U*KV_TILE}, v{v}')
    a.I('s_mov_b32 s28, 3')
    a.label('K2_LOOP')
    a.I('s_cmp_eq_u32 s28, 3'); a.I('s_cbranch_scc1 K2_P2')
    a.I('s_cmp_eq_u32 s28, 2'); a.I('s_cbranch_scc1 K2_P1')
    a.I('s_setprio 0'); a.I('s_branch K2_PD')
    a.label('K2_P1'); a.I('s_setprio 1'); a.I('s_branch K2_PD')
    a.label('K2_P2'); a.I('s_setprio 2')
    a.label('K2_PD')
    prep_consume(a, 'K2_PC')
    a.I('s_add_u32 s68, s68, 16'); a.I('s_mov_b32 s52, s68'); a.I('s_mov_b32 s60, -1')
    a.I('s_cmp_eq_u32 s28, 1'); a.I('s_cbranch_scc1 K2_PI1_E')
    prep_issue(a, 'K2_PI1')
    for t in range(U): tile(t)
    for v in (2, 3, 4): a.I(f'v_add_u32 v{v}, {U*KV_TILE}, v{v}')
    a.I('s_sub_u32 s28, s28, 1'); a.I('s_cmp_lg_u32 s28, 0'); a.I('s_cbranch_scc1 K2_LOOP')
    a.I(mf(O, VF[1]+4, P+4, r(O,16)))
    stamp(a, 3)
    a.I('v_mov_b32 v12, 0'); a.I(f'v_mov_b32 v13, {SPARE}')
    a.I('s_cmp_lg_u32 s20, 0'); a.I('s_cbranch_scc1 K2_NZ'); a.I('ds_write_b32 v13, v12'); a.label('K2_NZ')
    a.I('s_waitcnt lgkmcnt(0)')
    a.I('s_barrier')
    a.I('s_mul_i32 s28, s23, 3072'); a.I('v_add_u32 v14, s28, v5')
    a.I('s_cmp_eq_u32 s24, 0'); a.I('s_cbranch_scc1 K2_M0')
    for j in range(3): a.I(f'ds_write_b128 v14, {r(O+4*j,4)} offset:{j*1024}')
    a.I('s_waitcnt lgkmcnt(0)')
    a.I('s_barrier')
    a.I('s_branch K2_M1')
    a.label('K2_M0')
    a.I('s_barrier')
    for j in range(3): a.I(f'ds_read_b128 {r(S0+4*j,4)}, v14 offset:{j*1024}')
    a.I('s_waitcnt lgkmcnt(0)')
    for j in range(12): a.I(f'v_add_f32 v{O+j}, v{O+j}, v{S0+j}')
    a.I(f'v_mov_b32 v12, v{O+10}'); a.I(f'v_permlane32_swap_b32 v{O+10}, v12')
    a.I(f's_mov_b32 s29, {hexf(2.0**-90)}')
    a.I(f'v_cmp_nle_f32 vcc, s29, v{O+10}')
    a.I('s_cmp_eq_u64 vcc, 0'); a.I('s_cbranch_scc1 K2_M1')
    a.I('v_mov_b32 v12, 1'); a.I(f'v_mov_b32 v13, {SPARE}'); a.I('ds_write_b32 v13, v12')
    a.I('s_waitcnt lgkmcnt(0)')
    a.label('K2_M1')
    a.I('s_barrier')
    a.I(f'v_mov_b32 v13, {SPARE}'); a.I('ds_read_b32 v12, v13'); a.I('s_waitcnt lgkmcnt(0)')
    a.I('v_readfirstlane_b32 s29, v12')
    a.I('s_cmp_eq_u32 s29, 0'); a.I('s_cbranch_scc1 K2_FIN')
    a.I('s_cmp_lg_u32 s40, 0'); a.I('s_cbranch_scc1 K2_FIN')
    a.I('s_mov_b32 s40, 1')
    a.I('s_barrier')
    a.I('s_branch K2_RESTART')
    a.label('K2_FIN')
    stamp(a, 4)
    a.I('s_cmp_lg_u32 s24, 0'); a.I('s_cbranch_scc1 K2_END')
    a.I(f'v_rcp_f32 v12, v{O+10}')
    for j in range(10): a.I(f'v_mul_f32 v{O+j}, v{O+j}, v12')
    for j in range(5): a.I(f'v_cvt_pk_bf16_f32 v{S0+j}, v{O+2*j}, v{O+2*j+1}')
    srd(a, 12, 4, 5, WS.OF_SZ, WS.OF)
    a.I('v_bfe_u32 v12, v1, 4, 1'); a.I('s_lshl_b32 s28, s25, 1'); a.I('v_add_u32 v12, s28, v12')
    a.I('v_mul_u32_u24 v12, 18, v12'); a.I('v_lshlrev_b32 v12, 10, v12')
    a.I('v_and_b32 v13, 15, v1'); a.I('v_lshl_add_u32 v12, v13, 4, v12')
    a.I('v_lshrrev_b32 v14, 5, v1'); a.I('v_lshl_add_u32 v14, v14, 8, v12')
    a.I('s_lshr_b32 s28, s21, 1'); a.I('s_lshl_b32 s28, s28, 10'); a.I('s_and_b32 s29, s21, 1'); a.I('s_lshl_b32 s29, s29, 9'); a.I('s_add_u32 s28, s28, s29')
    a.vmem(f'buffer_store_dwordx4 {r(S0,4)}, v14, s[12:15], s28 offen')
    a.I('s_lshr_b32 s28, s21, 4'); a.I('s_add_u32 s28, s28, 16'); a.I('s_lshl_b32 s28, s28, 10')
    a.I('s_bfe_u32 s29, s21, 0x20002'); a.I('s_lshl_b32 s29, s29, 8'); a.I('s_add_u32 s28, s28, s29')
    a.I('s_and_b32 s29, s21, 3'); a.I('s_lshl_b32 s29, s29, 2'); a.I('s_add_u32 s28, s28, s29')
    a.I('s_mov_b32 exec_hi, 0')
    a.vmem(f'buffer_store_dword v{S0+4}, v12, s[12:15], s28 offen')
    a.label('K2_END')
    a.I('s_endpgm')
    return kernel_text('k2_kernel', a, 128), (256, 1024, 163840)
```

```python
from common import *
import os

S0, S1, O, CI, P, QLO, QHI = 16, 32, 48, 64, 80, 88, 92
KLO = (96, 100); KHI = (104, 108); VF = (112, 120)
IMG = 64*KV_TILE
SPARE = IMG
def r(b, n): return f'v[{b}:{b+n-1}]'
def mf(d, a_, b_, c): return f'v_mfma_f32_32x32x16_bf16 {r(d,16)}, {r(a_,4)}, {r(b_,4)}, {c}'
def mfh(d, a_, b_, c):
    if os.environ.get('QK8', '1') == '1': return f'v_mfma_f32_32x32x8_bf16 {r(d,16)}, {r(a_,2)}, {r(b_,2)}, {c}'
    return mf(d, a_, b_, c)

NFR1, NFR2, NFRO = 288*18, 36*144, 36*18
NFR = NFR1 + NFR2 + NFRO
def prep_issue(a, L):
    a.I('s_mov_b32 s60, -1')
    a.I(f's_cmp_ge_u32 s52, {NFR}'); a.I(f's_cbranch_scc1 {L}_E')
    a.I('v_lshrrev_b32 v9, 1, v1')
    a.I('v_and_b32 v10, 1, v1'); a.I('v_lshlrev_b32 v10, 4, v10')
    a.I(f's_cmp_ge_u32 s52, {NFR1+NFR2}'); a.I(f's_cbranch_scc1 {L}_O')
    a.I(f's_cmp_ge_u32 s52, {NFR1}'); a.I(f's_cbranch_scc1 {L}_2')
    sdiv(a, 's53', 's52', 288, NFR1-1); a.I('s_mul_i32 s54, s53, 288'); a.I('s_sub_u32 s54, s52, s54')
    sdiv(a, 's55', 's54', 3, 287); a.I('s_mul_i32 s61, s55, 3'); a.I('s_sub_u32 s61, s54, s61')
    a.I('s_mul_i32 s60, s55, 54'); a.I('s_mul_i32 s62, s53, 3'); a.I('s_add_u32 s60, s60, s62'); a.I('s_add_u32 s60, s60, s61'); a.I('s_lshl_b32 s60, s60, 10')
    srd(a, 56, 4, 5, WS.W1S_SZ, WS.W1S); srd(a, 64, 46, 47, 576*9216)
    a.I('v_mul_u32_u24 v9, 9216, v9'); a.I(f's_mul_i32 s61, s53, {32*9216}'); a.I('s_lshl_b32 s62, s54, 5'); a.I('s_add_u32 s61, s61, s62')
    a.I(f's_branch {L}_G')
    a.label(f'{L}_2')
    a.I(f's_sub_u32 s52, s52, {NFR1}')
    sdiv(a, 's53', 's52', 36, NFR2-1); a.I('s_mul_i32 s54, s53, 36'); a.I('s_sub_u32 s54, s52, s54')
    sdiv(a, 's55', 's54', 3, 35); a.I('s_mul_i32 s61, s55, 3'); a.I('s_sub_u32 s61, s54, s61')
    sdiv(a, 's62', 's53', 18, 143); a.I('s_mul_i32 s63, s62, 18'); a.I('s_sub_u32 s63, s53, s63')
    a.I('s_mul_i32 s60, s62, 12'); a.I('s_add_u32 s60, s60, s55'); a.I('s_mul_i32 s60, s60, 18'); a.I('s_add_u32 s60, s60, s63'); a.I('s_mul_i32 s60, s60, 3')
    a.I('s_add_u32 s60, s60, s61'); a.I('s_lshl_b32 s60, s60, 10')
    srd(a, 56, 4, 5, WS.W2S_SZ, WS.W2S); srd(a, 64, 48, 49, F*1152)
    a.I('v_mul_u32_u24 v9, 1152, v9'); a.I(f's_mul_i32 s61, s53, {32*1152}'); a.I('s_lshl_b32 s62, s54, 5'); a.I('s_add_u32 s61, s61, s62')
    a.I(f's_branch {L}_G')
    a.label(f'{L}_O')
    a.I(f's_sub_u32 s52, s52, {NFR1+NFR2}')
    sdiv(a, 's53', 's52', 36, NFRO-1); a.I('s_mul_i32 s54, s53, 36'); a.I('s_sub_u32 s54, s52, s54')
    sdiv(a, 's55', 's54', 9, 35); a.I('s_mul_i32 s61, s55, 9'); a.I('s_sub_u32 s61, s54, s61')
    a.I('s_mul_i32 s60, s55, 18'); a.I('s_add_u32 s60, s60, s53'); a.I('s_mul_i32 s60, s60, 9'); a.I('s_add_u32 s60, s60, s61'); a.I('s_lshl_b32 s60, s60, 10')
    srd(a, 56, 4, 5, WS.WOF_SZ, WS.WOF); srd(a, 64, 50, 51, 576*1152)
    a.I('v_bfe_u32 v11, v9, 2, 2')
    a.I('s_cmp_ge_u32 s53, 16'); a.I(f's_cbranch_scc1 {L}_O2')
    a.I('v_lshrrev_b32 v12, 1, v11'); a.I('v_mul_u32_u24 v12, 18, v12'); a.I('v_and_b32 v11, 1, v11'); a.I('v_lshl_add_u32 v12, v11, 2, v12')
    a.I('v_lshrrev_b32 v11, 4, v9'); a.I('v_lshl_add_u32 v12, v11, 3, v12'); a.I('v_and_b32 v11, 3, v9'); a.I('v_add_u32 v9, v12, v11')
    a.I('s_mul_i32 s61, s53, 36'); a.I(f's_branch {L}_O3')
    a.label(f'{L}_O2')
    a.I('v_mul_u32_u24 v12, 72, v11'); a.I('v_lshrrev_b32 v11, 4, v9'); a.I('v_lshlrev_b32 v11, 1, v11'); a.I('v_bfe_u32 v13, v9, 1, 1'); a.I('v_add_u32 v11, v11, v13')
    a.I('v_mul_u32_u24 v11, 18, v11'); a.I('v_add_u32 v12, v12, v11'); a.I('v_and_b32 v11, 1, v9'); a.I('v_add_u32 v12, v12, v11'); a.I('v_add_u32 v9, 16, v12')
    a.I('s_sub_u32 s61, s53, 16'); a.I('s_mul_i32 s61, s61, 288')
    a.label(f'{L}_O3')
    a.I('v_mul_u32_u24 v9, 1152, v9'); a.I('s_mul_i32 s61, s61, 1152'); a.I('s_lshl_b32 s62, s54, 5'); a.I('s_add_u32 s61, s61, s62')
    a.label(f'{L}_G')
    a.I('v_add_u32 v9, v9, v10')
    a.I('s_lshl_b32 s62, s20, 10'); a.I(f's_add_u32 m0, s62, {SPARE}')
    a.I('buffer_load_dwordx4 v9, s[64:67], s61 offen lds')
    a.label(f'{L}_E')

def prep_consume(a, L):
    a.I('s_cmp_eq_u32 s60, -1'); a.I(f's_cbranch_scc1 {L}_E')
    a.I('s_waitcnt vmcnt(0)')
    a.I('v_lshrrev_b32 v9, 2, v1'); a.I('v_lshlrev_b32 v9, 5, v9'); a.I('v_and_b32 v10, 3, v1'); a.I('v_lshl_add_u32 v9, v10, 3, v9')
    a.I('s_lshl_b32 s62, s20, 10'); a.I(f's_add_u32 s62, s62, {SPARE}'); a.I('v_add_u32 v9, s62, v9')
    a.I('ds_read_b64_tr_b16 v[12:13], v9'); a.I('ds_read_b64_tr_b16 v[14:15], v9 offset:512')
    a.I('s_waitcnt lgkmcnt(0)')
    a.I('buffer_store_dwordx4 v[12:15], v5, s[56:59], s60 offen ' + os.environ.get('PREPFLAG', 'sc1'))
    a.label(f'{L}_E')

def k2():
    a = Asm()
    a.I('s_cmp_ge_u32 s2, 256'); a.I('s_cbranch_scc1 K2_END')
    a.I(f's_load_dwordx2 s[4:5], s[0:1], {A_WS}')
    a.I(f's_load_dwordx2 s[46:47], s[0:1], {A_W1}')
    a.I(f's_load_dwordx2 s[48:49], s[0:1], {A_W2}')
    a.I(f's_load_dwordx2 s[50:51], s[0:1], {A_WO}')
    a.I('v_lshrrev_b32 v1, 6, v0'); a.I('v_readfirstlane_b32 s20, v1')
    a.I('v_and_b32 v1, 63, v0')
    a.I('s_and_b32 s21, s2, 7'); a.I('s_lshl_b32 s21, s21, 2'); a.I('s_bfe_u32 s22, s2, 0x20003'); a.I('s_add_u32 s21, s21, s22')
    a.I('s_lshr_b32 s22, s2, 5')
    a.I('s_and_b32 s23, s20, 7')
    a.I('s_lshr_b32 s24, s20, 3')
    a.I('s_lshl_b32 s25, s22, 3'); a.I('s_add_u32 s25, s25, s23')
    a.I('s_mov_b32 s40, 0')
    a.I('v_lshlrev_b32 v5, 4, v1')
    a.I('v_and_b32 v6, 31, v1'); a.I('v_lshlrev_b32 v7, 2, v6'); a.I('v_lshlrev_b32 v8, 2, v1')
    a.I('s_mul_i32 s44, s24, 72'); a.I('s_add_u32 s44, s44, s23'); a.I('s_lshl_b32 s44, s44, 10')
    a.I('s_waitcnt lgkmcnt(0)')
    a.I(f's_mul_i32 s26, s21, {IMG}')
    a.I('s_add_u32 s8, s4, s26'); a.I('s_addc_u32 s9, s5, 0')
    a.I(f's_add_u32 s8, s8, {WS.KVIMG}'); a.I('s_addc_u32 s9, s9, 0')
    a.I(f's_mov_b32 s10, {IMG}'); a.I('s_mov_b32 s11, 0x00020000')
    def dma(j):
        a.I(f's_add_u32 s26, s44, {j*8192}')
        a.I('s_mov_b32 m0, s26')
        a.vmem('buffer_load_dwordx4 v5, s[8:11], s26 offen lds')
    srd(a, 12, 4, 5, WS.QIMG_SZ, WS.QIMG)
    srd(a, 16, 4, 5, WS.KMAX_SZ, WS.KMAX)
    a.I('s_lshl_b32 s26, s21, 6'); a.I('s_add_u32 s26, s26, s25'); a.I(f's_mul_i32 s26, s26, {QT_BYTES}')
    a.vmem(f'buffer_load_dwordx4 {r(QLO,4)}, v5, s[12:15], s26 offen')
    a.vmem(f'buffer_load_dword v{QHI}, v7, s[12:15], s26 offen offset:1024')
    a.I('s_lshl_b32 s26, s21, 8')
    a.vmem('buffer_load_dword v9, v8, s[16:19], s26 offen')
    a.label('K2_RESTART')
    dma(0); dma(1)
    a.label('K2_SKIPQ0')
    stamp(a, 0)
    a.I(f's_mul_i32 s27, s24, {32*KV_TILE}')
    a.I('v_add_u32 v2, s27, v5'); a.I('v_add_u32 v3, s27, v7')
    a.I('v_min_u32 v4, 17, v6'); a.I('v_lshrrev_b32 v10, 5, v1'); a.I('v_mul_u32_u24 v11, 18, v10')
    a.I('v_add_u32 v4, v4, v11'); a.I('v_lshlrev_b32 v4, 4, v4'); a.I('v_add_u32 v4, s27, v4')
    for j in range(16): a.I(f'v_mov_b32 v{O+j}, 0')
    a.I('v_cmp_eq_u32 vcc, 18, v6'); a.I('v_mov_b32 v12, 0x3f803f80'); a.I('v_cndmask_b32 v12, 0, v12, vcc')
    for j in range(16): a.I(f'v_mov_b32 v{VF[0]+j}, v12')
    a.I('s_mov_b32 s42, 0x3ffff'); a.I('s_mov_b32 s43, 0x3ffff')
    a.I('s_cmp_lg_u32 s40, 0'); a.I('s_cbranch_scc1 K2_SKIPQ')
    for j in range(1, 4): a.I(f'v_mov_b32 v{QHI+j}, 0')
    for b in KHI:
        for j in range(1, 4): a.I(f'v_mov_b32 v{b+j}, 0')
    a.I('s_waitcnt vmcnt(2)')
    a.I('v_cmp_eq_u32 vcc, 0, v10')
    a.I(f'v_cndmask_b32 v{QHI}, 0, v{QHI}, vcc')
    a.I('v_mov_b32 v12, 0')
    for q in [QLO, QLO+1, QLO+2, QLO+3, QHI]:
        a.I(f'v_lshlrev_b32 v13, 16, v{q}'); a.I('v_fmac_f32 v12, v13, v13')
        a.I(f'v_and_b32 v13, 0xffff0000, v{q}'); a.I('v_fmac_f32 v12, v13, v13')
    a.I('v_mov_b32 v13, v12'); a.I('v_permlane32_swap_b32 v12, v13'); a.I('v_add_f32 v12, v12, v13')
    for dpp in ('quad_perm:[1,0,3,2]', 'quad_perm:[2,3,0,1]', 'row_half_mirror', 'row_mirror'):
        a.I(f'v_max_f32_dpp v9, v9, v9 {dpp} row_mask:0xf bank_mask:0xf')
    a.I('v_mov_b32 v13, v9'); a.I('v_permlane16_swap_b32 v9, v13'); a.I('v_max_f32 v9, v9, v13')
    a.I('v_mov_b32 v13, v9'); a.I('v_permlane32_swap_b32 v9, v13'); a.I('v_max_f32 v9, v9, v13')
    a.I('v_mul_f32 v12, v12, v9'); a.I('v_sqrt_f32 v12, v12')
    a.I(f'v_mul_f32 v12, {hexf(-1.015625)}, v12')
    for j in range(16): a.I(f'v_mov_b32 v{CI+j}, v12')
    a.label('K2_SKIPQ')
    stamp(a, 1)
    a.I('s_cmp_eq_u32 s40, 0'); a.I('s_cbranch_scc1 K2_MAIN')
    for j in range(2, 9): dma(j)
    a.I('s_waitcnt vmcnt(0) lgkmcnt(0)'); a.I('s_barrier')
    a.I('v_mov_b32 v12, 0xff800000')
    a.I('v_mov_b32 v14, v2'); a.I('v_mov_b32 v15, v3')
    a.I('s_mov_b32 s28, 32')
    a.label('K2_MAXLOOP')
    a.I(f'ds_read_b128 {r(KLO[0],4)}, v14'); a.I(f'ds_read_b32 v{KHI[0]}, v15 offset:1024')
    a.I('s_waitcnt lgkmcnt(0)')
    a.I(mf(S0, KLO[0], QLO, '0')); a.I(mfh(S0, KHI[0], QHI, r(S0,16)))
    for j in range(0, 16, 2): a.I(f'v_max3_f32 v12, v12, v{S0+j}, v{S0+j+1}')
    a.I(f'v_add_u32 v14, {KV_TILE}, v14'); a.I(f'v_add_u32 v15, {KV_TILE}, v15')
    a.I('s_sub_u32 s28, s28, 1'); a.I('s_cmp_lg_u32 s28, 0'); a.I('s_cbranch_scc1 K2_MAXLOOP')
    a.I('v_mov_b32 v13, v12'); a.I('v_permlane32_swap_b32 v12, v13'); a.I('v_max_f32 v12, v12, v13')
    a.I('s_lshl_b32 s28, s20, 8'); a.I(f's_add_u32 s28, s28, {SPARE}'); a.I('v_add_u32 v14, s28, v8')
    a.I('ds_write_b32 v14, v12')
    a.I('s_waitcnt lgkmcnt(0)'); a.I('s_barrier')
    a.I('s_xor_b32 s28, s20, 8'); a.I('s_lshl_b32 s28, s28, 8'); a.I(f's_add_u32 s28, s28, {SPARE}'); a.I('v_add_u32 v14, s28, v8')
    a.I('ds_read_b32 v13, v14'); a.I('s_waitcnt lgkmcnt(0)')
    a.I('v_max_f32 v12, v12, v13'); a.I('v_sub_f32 v12, 0, v12')
    for j in range(16): a.I(f'v_mov_b32 v{CI+j}, v12')
    a.label('K2_MAIN')
    a.I('s_waitcnt vmcnt(0) lgkmcnt(0)'); a.I('s_barrier')
    stamp(a, 2)
    def rdK(t, buf):
        a.I(f'ds_read_b128 {r(KLO[buf],4)}, v2 offset:{t*KV_TILE}')
        a.I(f'ds_read_b32 v{KHI[buf]}, v3 offset:{t*KV_TILE+1024}')
    def rdV(t, buf):
        a.I('s_mov_b64 exec, s[42:43]')
        a.I(f'ds_read_b128 {r(VF[buf],4)}, v4 offset:{t*KV_TILE+VT_OFF}')
        a.I(f'ds_read_b128 {r(VF[buf]+4,4)}, v4 offset:{t*KV_TILE+VT_OFF+576}')
        a.I('s_mov_b64 exec, -1')
    rdK(0, 0); rdK(1, 1); rdV(0, 0)
    for j in range(4): a.I(f'v_mov_b32 v{P+4+j}, 0')
    a.I('s_waitcnt lgkmcnt(0)')
    a.I(mf(S0, KLO[0], QLO, r(CI,16))); a.I(mfh(S0, KHI[0], QHI, r(S0,16)))
    U = 8
    def tile(t, extra=None):
        cur = (S0, S1)[t & 1]; nxt = (S0, S1)[(t+1) & 1]
        kb = (t+1) & 1
        a.I('s_waitcnt lgkmcnt(0)')
        a.I(mf(nxt, KLO[kb], QLO, r(CI,16)))
        a.I(mf(O, VF[(t+1) & 1]+4, P+4, r(O,16)))
        for j in range(8): a.I(f'v_exp_f32 v{cur+j}, v{cur+j}')
        a.I(mfh(nxt, KHI[kb], QHI, r(nxt,16)))
        rdK(t+2, t & 1); rdV(t+1, (t+1) & 1)
        if extra: extra()
        for j in range(4): a.I(f'v_cvt_pk_bf16_f32 v{P+j}, v{cur+2*j}, v{cur+2*j+1}')
        for j in range(8): a.I(f'v_exp_f32 v{cur+8+j}, v{cur+8+j}')
        a.I(mf(O, VF[t & 1], P, r(O,16)))
        for j in range(4): a.I(f'v_cvt_pk_bf16_f32 v{P+4+j}, v{cur+8+2*j}, v{cur+8+2*j+1}')
    PF = 81
    a.I('s_setprio 3')
    dl = [[2, 3], [4, 5], [6, 7], [8]]
    for t in range(U):
        if t == 5:
            a.I('s_waitcnt vmcnt(0)'); a.I('s_barrier')
        if t == 5 and os.environ.get('NOCPF', '0') != '1':
            a.I('s_cmp_ge_u32 s2, 8'); a.I('s_cbranch_scc1 K2_NCP')
            code_prefetch(a, 'k3_kernel', 16384, 's20', 'K2', vtmp=(12, 13, 14))
            a.label('K2_NCP')
        if t == 6:
            a.I('s_mul_i32 s52, s2, 48'); a.I('s_add_u32 s52, s52, s20'); a.I('s_mov_b32 s68, s52')
            prep_issue(a, 'K2_PI0')
        tile(t, (lambda t=t: [dma(j) for j in dl[t]]) if t < 4 else None)
    for v in (2, 3, 4): a.I(f'v_add_u32 v{v}, {U*KV_TILE}, v{v}')
    a.I('s_mov_b32 s28, 3')
    a.label('K2_LOOP')
    a.I('s_cmp_eq_u32 s28, 3'); a.I('s_cbranch_scc1 K2_P2')
    a.I('s_cmp_eq_u32 s28, 2'); a.I('s_cbranch_scc1 K2_P1')
    a.I('s_setprio 0'); a.I('s_branch K2_PD')
    a.label('K2_P1'); a.I('s_setprio 1'); a.I('s_branch K2_PD')
    a.label('K2_P2'); a.I('s_setprio 2')
    a.label('K2_PD')
    prep_consume(a, 'K2_PC')
    a.I('s_add_u32 s68, s68, 16'); a.I('s_mov_b32 s52, s68'); a.I('s_mov_b32 s60, -1')
    a.I('s_cmp_eq_u32 s28, 1'); a.I('s_cbranch_scc1 K2_PI1_E')
    prep_issue(a, 'K2_PI1')
    for t in range(U): tile(t)
    for v in (2, 3, 4): a.I(f'v_add_u32 v{v}, {U*KV_TILE}, v{v}')
    a.I('s_sub_u32 s28, s28, 1'); a.I('s_cmp_lg_u32 s28, 0'); a.I('s_cbranch_scc1 K2_LOOP')
    a.I(mf(O, VF[1]+4, P+4, r(O,16)))
    stamp(a, 3)
    a.I('v_mov_b32 v12, 0'); a.I(f'v_mov_b32 v13, {SPARE}')
    a.I('s_cmp_lg_u32 s20, 0'); a.I('s_cbranch_scc1 K2_NZ'); a.I('ds_write_b32 v13, v12'); a.label('K2_NZ')
    a.I('s_waitcnt lgkmcnt(0)')
    a.I('s_barrier')
    a.I('s_mul_i32 s28, s23, 3072'); a.I('v_add_u32 v14, s28, v5')
    a.I('s_cmp_eq_u32 s24, 0'); a.I('s_cbranch_scc1 K2_M0')
    for j in range(3): a.I(f'ds_write_b128 v14, {r(O+4*j,4)} offset:{j*1024}')
    a.I('s_waitcnt lgkmcnt(0)')
    a.I('s_barrier')
    a.I('s_branch K2_M1')
    a.label('K2_M0')
    a.I('s_barrier')
    for j in range(3): a.I(f'ds_read_b128 {r(S0+4*j,4)}, v14 offset:{j*1024}')
    a.I('s_waitcnt lgkmcnt(0)')
    for j in range(12): a.I(f'v_add_f32 v{O+j}, v{O+j}, v{S0+j}')
    a.I(f'v_mov_b32 v12, v{O+10}'); a.I(f'v_permlane32_swap_b32 v{O+10}, v12')
    a.I(f's_mov_b32 s29, {hexf(2.0**-90)}')
    a.I(f'v_cmp_nle_f32 vcc, s29, v{O+10}')
    a.I('s_cmp_eq_u64 vcc, 0'); a.I('s_cbranch_scc1 K2_M1')
    a.I('v_mov_b32 v12, 1'); a.I(f'v_mov_b32 v13, {SPARE}'); a.I('ds_write_b32 v13, v12')
    a.I('s_waitcnt lgkmcnt(0)')
    a.label('K2_M1')
    a.I('s_barrier')
    a.I(f'v_mov_b32 v13, {SPARE}'); a.I('ds_read_b32 v12, v13'); a.I('s_waitcnt lgkmcnt(0)')
    a.I('v_readfirstlane_b32 s29, v12')
    a.I('s_cmp_eq_u32 s29, 0'); a.I('s_cbranch_scc1 K2_FIN')
    a.I('s_cmp_lg_u32 s40, 0'); a.I('s_cbranch_scc1 K2_FIN')
    a.I('s_mov_b32 s40, 1')
    a.I('s_barrier')
    a.I('s_branch K2_RESTART')
    a.label('K2_FIN')
    stamp(a, 4)
    a.I('s_cmp_lg_u32 s24, 0'); a.I('s_cbranch_scc1 K2_END')
    a.I(f'v_rcp_f32 v12, v{O+10}')
    for j in range(10): a.I(f'v_mul_f32 v{O+j}, v{O+j}, v12')
    for j in range(5): a.I(f'v_cvt_pk_bf16_f32 v{S0+j}, v{O+2*j}, v{O+2*j+1}')
    srd(a, 12, 4, 5, WS.OF_SZ, WS.OF)
    a.I('v_bfe_u32 v12, v1, 4, 1'); a.I('s_lshl_b32 s28, s25, 1'); a.I('v_add_u32 v12, s28, v12')
    a.I('v_mul_u32_u24 v12, 18, v12'); a.I('v_lshlrev_b32 v12, 10, v12')
    a.I('v_and_b32 v13, 15, v1'); a.I('v_lshl_add_u32 v12, v13, 4, v12')
    a.I('v_lshrrev_b32 v14, 5, v1'); a.I('v_lshl_add_u32 v14, v14, 8, v12')
    a.I('s_lshr_b32 s28, s21, 1'); a.I('s_lshl_b32 s28, s28, 10'); a.I('s_and_b32 s29, s21, 1'); a.I('s_lshl_b32 s29, s29, 9'); a.I('s_add_u32 s28, s28, s29')
    a.vmem(f'buffer_store_dwordx4 {r(S0,4)}, v14, s[12:15], s28 offen')
    a.I('s_lshr_b32 s28, s21, 4'); a.I('s_add_u32 s28, s28, 16'); a.I('s_lshl_b32 s28, s28, 10')
    a.I('s_bfe_u32 s29, s21, 0x20002'); a.I('s_lshl_b32 s29, s29, 8'); a.I('s_add_u32 s28, s28, s29')
    a.I('s_and_b32 s29, s21, 3'); a.I('s_lshl_b32 s29, s29, 2'); a.I('s_add_u32 s28, s28, s29')
    a.I('s_mov_b32 exec_hi, 0')
    a.vmem(f'buffer_store_dword v{S0+4}, v12, s[12:15], s28 offen')
    a.label('K2_END')
    a.I('s_endpgm')
    return kernel_text('k2_kernel', a, 128), (256, 1024, 163840)
```

```python
from common import *
import os

def wave_setup(a):
    a.I('v_lshrrev_b32 v1, 6, v0')
    a.I('v_readfirstlane_b32 s20, v1')
    a.I('v_and_b32 v1, 63, v0')
    a.I('v_lshlrev_b32 v2, 4, v1')

def apply_gs(a, raw, dst, T, G, Sx, emit=None):
    L = []
    for q in range(4):
        L.append(f'v_lshlrev_b32 v{T+2*q}, 16, {raw(q)}')
        L.append(f'v_and_b32 v{T+2*q+1}, 0xffff0000, {raw(q)}')
    for q in range(8):
        L.append(f'v_fma_f32 v{T+q}, v{T+q}, v{G+q}, v{Sx+q}')
    for q in range(4):
        L.append(f'v_cvt_pk_bf16_f32 {dst(q)}, v{T+2*q}, v{T+2*q+1}')
    return L

ACC = 16
WF, NWF = 88, 12
XB = 136
XR, XRING, XD = 16, 8, 7
GV, TT, XO, MT = 80, 112, 120, 136
NSLOT, STAGE = 5, 18432
XOFF1 = NSLOT*STAGE
GTOFF = XOFF1 + 6*8192
K1_LDS = GTOFF + 4608
def acc(nb, tb): return ACC + (nb*2 + tb)*4

def k1_consumer(a, swap):
    nks = 18
    ltok, xtok = {}, {}
    def wreg(z): return WF + (z % NWF)*4
    def wread(z):
        ks, nb = divmod(z, 9)
        st = ks // 2; slot = st % NSLOT
        base = 6 + slot // 3
        off = (slot % 3)*STAGE + ((ks & 1)*9 + nb)*1024
        ltok[z] = a.lds(f'ds_read_b128 {r4(wreg(z))}, v{base} offset:{off}')
    def xread(ks):
        for tb in range(2):
            xtok[ks] = a.lds(f'ds_read_b128 {r4(XB+(ks & 1)*8+tb*4)}, v{9+tb} offset:{(ks % 6)*8192}')
    a.I('s_barrier')
    stamp(a, 1)
    xread(0)
    for z in range(9): wread(z)
    nz = 9
    for ks in range(nks):
        if ks == 6: stamp(a, 4)
        if ks & 1 and ks + 1 < nks: a.I('s_barrier')
        if ks + 1 < nks: xread(ks + 1)
        xb = XB + (ks & 1)*8
        for nb in range(9):
            z = ks*9 + nb
            if nb == 0: a.wait(lg=max(ltok[z+2], xtok[ks]))
            elif nb % 3 == 0: a.wait(lg=ltok[z+2])
            wf = wreg(z)
            for tb in range(2):
                c = '0' if ks == 0 else r4(acc(nb, tb))
                if swap: a.I(f'v_mfma_f32_16x16x32_bf16 {r4(acc(nb,tb))}, {r4(xb+tb*4)}, {r4(wf)}, {c}')
                else:    a.I(f'v_mfma_f32_16x16x32_bf16 {r4(acc(nb,tb))}, {r4(wf)}, {r4(xb+tb*4)}, {c}')
            if nz < nks*9: wread(nz); nz += 1
    stamp(a, 2)
    a.I('s_barrier')
    stamp(a, 3)

def k1_loader(a):
    nst = 9
    wtok = {}
    def W(st):
        slot = st % NSLOT
        a.I(f's_add_u32 m0, s23, {slot*STAGE}'); a.I(f's_mov_b32 s24, {st*STAGE}')
        a.I('s_mov_b32 exec_hi, 0'); a.vmem('buffer_load_dwordx4 v3, s[8:11], s24 offen lds'); a.I('s_mov_b32 exec_hi, -1')
        for o in (512, 1536, 2560, 3584): a.vmem(f'buffer_load_dwordx4 v3, s[8:11], s24 offen offset:{o} lds')
        wtok[st] = a.vm
    W(0); W(1); W(2)
    a.I('s_barrier')
    a.wait(vm=wtok[0]); a.I('s_barrier')
    for s in range(1, nst):
        if s + 2 < nst: W(s+2)
        a.wait(vm=wtok[s]); a.I('s_barrier')
    a.I('s_barrier')
    a.I('s_endpgm')

def k1_producer(a):
    nst = 9
    XR4, NRING = 16, 4
    xtok, gtok = {}, {}
    def xload_items(s):
        sl = s % NRING
        L = []
        for t in range(4):
            def f(t=t):
                a.I(f's_mov_b32 s25, {s*2048 + t*KS*1024}')
                a.vmem(f'buffer_load_dwordx4 {r4(XR4+sl*16+4*t)}, v4, s[12:15], s25 offen')
                if t == 3: xtok[s] = a.vm
            L.append(f)
        return L
    def gread(s):
        for q in range(4): a.lds(f'ds_read_b128 {r4(GV+(s & 1)*16+4*q)}, v8 offset:{s*512+q*16}')
        gtok[s] = a.lg
    def produce(s):
        vm_items = xload_items(s + 3) if s + 3 < nst else []
        sl = s % NRING; G = GV + (s & 1)*16
        a.wait(vm=xtok[s], lg=gtok[s])
        for t in range(4):
            raw = XR4+sl*16+4*t; dst = XO+(t & 1)*4
            for q in range(4):
                a.I(f'v_lshlrev_b32 v{TT+2*q}, 16, v{raw+q}'); a.I(f'v_and_b32 v{TT+2*q+1}, 0xffff0000, v{raw+q}')
            for q in range(8): a.I(f'v_fma_f32 v{TT+q}, v{TT+q}, v{G+q}, v{G+8+q}')
            for q in range(4): a.I(f'v_cvt_pk_bf16_f32 v{dst+q}, v{TT+2*q}, v{TT+2*q+1}')
            a.lds(f'ds_write_b128 v9, {r4(dst)} offset:{((2*s) % 6)*8192 + t*1024}')
            if vm_items: vm_items.pop(0)()
        if s + 2 < nst: gread(s + 2)
    srd(a, 16, 4, 5, WS.MODP_SZ, WS.MODP)
    a.I('v_lshlrev_b32 v11, 2, v10')
    for i in range(3):
        for z, idx in enumerate((0, 3456, 576, 3456+576)):
            a.I(f's_mov_b32 s26, {(idx+256*i)*4}'); a.vmem(f'buffer_load_dword v{MT+4*i+z}, v11, s[16:19], s26 offen')
    mtok = a.vm
    for s in range(3):
        for f in xload_items(s): f()
    a.wait(vm=mtok)
    for i in range(3):
        b = MT + 4*i
        a.I(f'v_add_f32 v{b}, v{b}, v{b+1}'); bf16_round_f32(a, f'v{b}', f'v{b}')
        a.I(f'v_add_f32 v{b+2}, v{b+2}, v{b+3}'); bf16_round_f32(a, f'v{b+2}', f'v{b+2}')
        a.I(f'v_add_f32 v{b+2}, 1.0, v{b+2}'); bf16_round_f32(a, f'v{b+2}', f'v{b+2}')
        a.I(f'v_mul_f32 v{b}, s31, v{b}'); a.I(f'v_mul_f32 v{b+2}, s31, v{b+2}')
        a.I(f'v_add_u32 v12, {256*i}, v10')
        a.I('v_lshrrev_b32 v13, 5, v12'); a.I('v_lshlrev_b32 v13, 2, v13'); a.I('v_bfe_u32 v14, v12, 2, 2'); a.I('v_add_u32 v13, v13, v14')
        a.I('v_bfe_u32 v14, v12, 4, 1'); a.I('v_lshlrev_b32 v14, 2, v14'); a.I('v_and_b32 v15, 3, v12'); a.I('v_add_u32 v14, v14, v15')
        a.I('v_lshlrev_b32 v15, 6, v13'); a.I('v_lshl_add_u32 v15, v14, 2, v15'); a.I(f'v_add_u32 v15, {GTOFF}, v15')
        if i == 2:
            a.I('v_cmp_gt_u32 vcc, 64, v10'); a.I('s_and_saveexec_b64 s[36:37], vcc')
        a.lds(f'ds_write_b32 v15, v{b+2}'); a.lds(f'ds_write_b32 v15, v{b} offset:32')
        if i == 2: a.I('s_mov_b64 exec, s[36:37]')
    a.I('s_waitcnt lgkmcnt(0)'); a.I('s_barrier')
    gread(0); gread(1)
    for s in range(nst):
        produce(s)
        a.wait(lg=a.lg - (4 if s + 2 < nst else 0)); a.I('s_barrier')
    a.I('s_barrier')
    a.I('s_endpgm')

def k1():
    import k0 as K0
    a = Asm()
    a.I(f's_cmp_ge_u32 s2, {192+K0.NPREP}'); a.I('s_cbranch_scc1 K1_END')
    a.I(f's_load_dwordx2 s[4:5], s[0:1], {A_WS}')
    a.I('s_cmp_ge_u32 s2, 192'); a.I('s_cbranch_scc1 K1_PREP')
    wave_setup(a)
    a.I('s_and_b32 s33, s20, 3')
    a.I('s_mul_i32 s23, s33, 4608'); a.I('v_add_u32 v3, s23, v2')
    a.I('v_mov_b32 v6, v2'); a.I(f'v_add_u32 v7, {3*STAGE}, v2')
    a.I('v_lshrrev_b32 v8, 4, v1'); a.I('v_lshlrev_b32 v8, 6, v8'); a.I(f'v_add_u32 v8, {GTOFF}, v8')
    a.I('s_lshl_b32 s26, s33, 11'); a.I(f's_add_u32 s26, s26, {XOFF1}'); a.I('v_add_u32 v9, s26, v2'); a.I('v_add_u32 v10, 1024, v9')
    a.I('s_and_b32 s26, s2, 7'); a.I('s_lshr_b32 s27, s2, 3')
    a.I('s_lshr_b32 s21, s26, 1'); a.I('s_lshl_b32 s21, s21, 2'); a.I('s_and_b32 s28, s27, 3'); a.I('s_add_u32 s21, s21, s28')
    a.I('s_and_b32 s22, s26, 1'); a.I('s_mul_i32 s22, s22, 6'); a.I('s_lshr_b32 s28, s27, 2'); a.I('s_add_u32 s22, s22, s28')
    a.I('s_lshl_b32 s26, s21, 3'); a.I('s_lshl_b32 s27, s33, 1'); a.I('s_add_u32 s29, s26, s27')
    a.I('s_lshl_b32 s34, s21, 2'); a.I('s_add_u32 s34, s34, s33')
    a.I('s_cmp_lt_u32 s20, 4'); a.I('s_cbranch_scc1 K1_CONS')
    a.I('s_waitcnt lgkmcnt(0)')
    a.I('s_cmp_lt_u32 s20, 8'); a.I('s_cbranch_scc1 K1_PROD')
    a.I(f's_mul_i32 s26, s22, {18*9*1024}')
    a.I('s_add_u32 s8, s4, s26'); a.I('s_addc_u32 s9, s5, 0')
    a.I(f's_add_u32 s8, s8, {WS.WQKVF}'); a.I('s_addc_u32 s9, s9, 0')
    a.I(f's_mov_b32 s10, {18*9*1024}'); a.I('s_mov_b32 s11, 0x00020000')
    k1_loader(a)
    a.label('K1_PROD')
    srd(a, 12, 4, 5, WS.NF_SZ, WS.NF)
    a.I('s_and_b32 s36, s20, 1'); a.I('s_bfe_u32 s37, s20, 0x10001')
    a.I('s_lshl_b32 s26, s21, 3'); a.I('s_lshl_b32 s27, s37, 2'); a.I('s_add_u32 s26, s26, s27')
    a.I(f's_mul_i32 s27, s26, {KS*1024}'); a.I('s_lshl_b32 s28, s36, 10'); a.I('s_add_u32 s27, s27, s28'); a.I('v_add_u32 v4, s27, v2')
    a.I('s_lshl_b32 s28, s36, 8'); a.I('v_add_u32 v8, s28, v8')
    a.I('s_lshl_b32 s27, s37, 12'); a.I('s_lshl_b32 s28, s36, 13'); a.I('s_add_u32 s27, s27, s28'); a.I(f's_add_u32 s27, s27, {XOFF1}'); a.I('v_add_u32 v9, s27, v2')
    a.I('s_mov_b32 s31, 1.0'); a.I('s_cmp_lt_u32 s22, 4'); a.I(f's_cselect_b32 s31, {hexf(QSCALE)}, s31')
    a.I('v_subrev_u32 v10, 256, v0')
    k1_producer(a)
    a.label('K1_CONS')
    a.I('s_waitcnt lgkmcnt(0)')
    a.I('s_barrier')
    a.I('s_cmp_ge_u32 s22, 8'); a.I('s_cbranch_scc1 K1_V')
    k1_consumer(a, False)
    a.I('v_and_b32 v10, 15, v1'); a.I('v_lshrrev_b32 v13, 4, v1')
    a.I('s_mov_b32 s26, s34')
    a.I('s_and_b32 s30, s22, 3'); a.I('s_lshl_b32 s30, s30, 3')
    ST = 88
    def qk_store(img_off, img_sz, tilebytes, hi_off):
        srd(a, 16, 4, 5, img_sz, img_off)
        a.I('v_lshrrev_b32 v14, 1, v13'); a.I('v_add_u32 v14, s30, v14'); a.I('v_lshlrev_b32 v14, 6, v14'); a.I('v_add_u32 v14, s26, v14')
        a.I(f's_movk_i32 s31, {tilebytes}'); a.I('v_mul_lo_u32 v14, v14, s31')
        a.I('v_and_b32 v15, 1, v13'); a.I('v_lshl_add_u32 v14, v15, 9, v14'); a.I('v_lshl_add_u32 v14, v10, 4, v14')
        for tb in range(2):
            for p in range(4):
                d = ST + (tb*4+p)*4
                b0, b1 = acc(2*p, tb), acc(2*p+1, tb)
                a.I(f'v_cvt_pk_bf16_f32 v{d}, v{b0}, v{b0+1}'); a.I(f'v_cvt_pk_bf16_f32 v{d+1}, v{b0+2}, v{b0+3}')
                a.I(f'v_cvt_pk_bf16_f32 v{d+2}, v{b1}, v{b1+1}'); a.I(f'v_cvt_pk_bf16_f32 v{d+3}, v{b1+2}, v{b1+3}')
                a.I(f's_mov_b32 s31, {p*2*64*tilebytes}')
                a.vmem(f'buffer_store_dwordx4 {r4(d)}, v14, s[16:19], s31 offen offset:{tb*256} ' + os.environ.get('K1FLAG', 'sc1'))
        a.I('v_lshlrev_b32 v14, 1, v13'); a.I('v_add_u32 v14, s30, v14'); a.I('v_lshlrev_b32 v14, 6, v14'); a.I('v_add_u32 v14, s26, v14')
        a.I(f's_movk_i32 s31, {tilebytes}'); a.I('v_mul_lo_u32 v14, v14, s31'); a.I('v_lshl_add_u32 v14, v10, 2, v14')
        a.I(f's_mov_b32 s31, {64*tilebytes}')
        for tb in range(2):
            b = acc(8, tb); d = ST + 32 + tb*2
            a.I(f'v_cvt_pk_bf16_f32 v{d}, v{b}, v{b+1}'); a.I(f'v_cvt_pk_bf16_f32 v{d+1}, v{b+2}, v{b+3}')
            a.vmem(f'buffer_store_dword v{d}, v14, s[16:19], 0 offen offset:{hi_off+tb*64}')
            a.vmem(f'buffer_store_dword v{d+1}, v14, s[16:19], s31 offen offset:{hi_off+tb*64}')
    a.I('s_cmp_ge_u32 s22, 4'); a.I('s_cbranch_scc1 K1_K')
    qk_store(WS.QIMG, WS.QIMG_SZ, QT_BYTES, 1024)
    a.I('s_endpgm')
    a.label('K1_K')
    qk_store(WS.KVIMG, WS.KVIMG_SZ, KV_TILE, 1024)
    N0 = 88
    for p in range(4):
        for tb in range(2):
            b0, b1 = acc(2*p, tb), acc(2*p+1, tb)
            d = N0 + p*2 + tb
            a.I(f'v_mul_f32 v{d}, v{b0}, v{b0}')
            for v in [b0+1, b0+2, b0+3, b1, b1+1, b1+2, b1+3]: a.I(f'v_fmac_f32 v{d}, v{v}, v{v}')
    for p in range(4):
        for tb in range(2):
            d = N0 + p*2 + tb
            a.I(f'v_mov_b32 v9, v{d}'); a.I(f'v_permlane16_swap_b32 v{d}, v9'); a.I(f'v_add_f32 v{d}, v{d}, v9')
        a.I(f'v_max_f32 v{N0+16+p}, v{N0+p*2}, v{N0+p*2+1}')
    for e in range(2):
        for tb in range(2):
            b = acc(8, tb); d = N0 + 24 + e*2 + tb
            a.I(f'v_mul_f32 v{d}, v{b+2*e}, v{b+2*e}'); a.I(f'v_fmac_f32 v{d}, v{b+2*e+1}, v{b+2*e+1}')
        a.I(f'v_max_f32 v{N0+20+e}, v{N0+24+e*2}, v{N0+25+e*2}')
    for q in range(6):
        d = N0 + 16 + q
        for dpp in ('quad_perm:[1,0,3,2]', 'quad_perm:[2,3,0,1]', 'row_half_mirror', 'row_mirror'):
            a.I(f'v_max_f32_dpp v{d}, v{d}, v{d} {dpp} row_mask:0xf bank_mask:0xf')
    a.I('s_lshl_b32 s28, s20, 6')
    a.I('v_lshrrev_b32 v9, 5, v1'); a.I('v_lshlrev_b32 v9, 3, v9'); a.I('v_add_u32 v9, s28, v9')
    a.I('v_lshlrev_b32 v11, 4, v13'); a.I('v_add_u32 v11, s28, v11')
    for p in range(4): a.I(f'ds_write_b32 v9, v{N0+16+p} offset:{p*16}')
    for e in range(2): a.I(f'ds_write_b32 v11, v{N0+20+e} offset:{e*8+4}')
    a.I('v_and_b32 v12, 7, v1'); a.I('v_lshlrev_b32 v12, 3, v12'); a.I('v_add_u32 v12, s28, v12')
    a.I(f'ds_read_b64 {r2(N0+30)}, v12'); a.I('s_waitcnt lgkmcnt(0)')
    a.I(f'v_add_f32 v9, v{N0+30}, v{N0+31}')
    srd(a, 16, 4, 5, WS.KMAX_SZ, WS.KMAX)
    a.I('v_and_b32 v14, 7, v1'); a.I('v_add_u32 v14, s30, v14'); a.I('v_lshlrev_b32 v14, 6, v14'); a.I('v_add_u32 v14, s26, v14'); a.I('v_lshlrev_b32 v14, 2, v14')
    a.I('s_mov_b64 exec, 0xff')
    a.I('buffer_store_dword v9, v14, s[16:19], 0 offen')
    a.I('s_endpgm')
    a.label('K1_V')
    a.I('v_bfe_u32 v11, v1, 3, 1'); a.I('v_lshlrev_b32 v11, 10, v11')
    a.I('v_and_b32 v12, 0x30, v1'); a.I('v_and_b32 v13, 7, v1'); a.I('v_add_u32 v12, v12, v13'); a.I('v_lshl_add_u32 v11, v12, 4, v11')
    a.I('s_lshl_b32 s26, s33, 11'); a.I(f's_add_u32 s26, s26, {XOFF1}'); a.I('v_add_u32 v9, s26, v11'); a.I('v_add_u32 v10, 128, v9')
    k1_consumer(a, True)
    a.I('v_and_b32 v10, 15, v1'); a.I('v_lshrrev_b32 v13, 4, v1')
    a.I('s_mov_b32 s26, s34')
    srd(a, 16, 4, 5, WS.KVIMG_SZ, WS.KVIMG)
    a.I('s_and_b32 s30, s22, 3'); a.I('s_lshl_b32 s30, s30, 3')
    a.I('s_lshl_b32 s31, s30, 6'); a.I('s_add_u32 s31, s31, s26'); a.I(f's_mul_i32 s31, s31, {KV_TILE}')
    a.I(f'v_mul_u32_u24 v14, {DV}, v13'); a.I('v_add_u32 v15, v14, v10'); a.I('v_lshlrev_b32 v15, 4, v15')
    for nb in range(9):
        d = 88 + (nb % 6)*4
        b0, b1 = acc(nb, 0), acc(nb, 1)
        a.I(f'v_cvt_pk_bf16_f32 v{d}, v{b0}, v{b0+1}'); a.I(f'v_cvt_pk_bf16_f32 v{d+1}, v{b0+2}, v{b0+3}')
        a.I(f'v_cvt_pk_bf16_f32 v{d+2}, v{b1}, v{b1+1}'); a.I(f'v_cvt_pk_bf16_f32 v{d+3}, v{b1+2}, v{b1+3}')
        if nb < 8:
            a.I(f's_add_u32 s32, s31, {nb*64*KV_TILE}')
            a.vmem(f'buffer_store_dwordx4 {r4(d)}, v15, s[16:19], s32 offen offset:{VT_OFF} ' + os.environ.get('K1FLAG', 'sc1'))
        else:
            a.I('v_lshrrev_b32 v9, 1, v10'); a.I(f's_mov_b32 s32, {64*KV_TILE}'); a.I('v_mul_lo_u32 v9, v9, s32')
            a.I('v_and_b32 v11, 1, v10'); a.I('v_add_u32 v11, v11, v14'); a.I('v_add_u32 v11, 16, v11'); a.I('v_lshl_add_u32 v9, v11, 4, v9')
            a.vmem(f'buffer_store_dwordx4 {r4(d)}, v9, s[16:19], s31 offen offset:{VT_OFF}')
    a.I('s_endpgm')
    a.label('K1_PREP')
    a.I(f's_load_dwordx2 s[8:9], s[0:1], {A_W1}')
    a.I('s_sub_u32 s3, s2, 192')
    K0.prep_body(a, 's3', 'K1P')
    a.label('K1_END')
    a.I('s_endpgm')
    return kernel_text('k1_kernel', a, 160), (192+K0.NPREP, 768, K1_LDS)

def k3():
    a = Asm()
    A3 = 16
    def ac(nb, tb): return A3 + (nb*2+tb)*4
    a.I('s_cmp_ge_u32 s2, 256'); a.I('s_cbranch_scc1 K3_END')
    a.I(f's_load_dwordx2 s[4:5], s[0:1], {A_WS}')
    wave_setup(a)
    a.I('s_and_b32 s21, s2, 7'); a.I('s_lshl_b32 s21, s21, 3'); a.I('s_bfe_u32 s26, s2, 0x30003'); a.I('s_add_u32 s21, s21, s26')
    a.I('s_lshr_b32 s22, s2, 6')
    a.I('s_waitcnt lgkmcnt(0)')
    a.I(f's_mul_i32 s26, s22, {18*9*1024}')
    a.I('s_add_u32 s8, s4, s26'); a.I('s_addc_u32 s9, s5, 0')
    a.I(f's_add_u32 s8, s8, {WS.WOF}'); a.I('s_addc_u32 s9, s9, 0')
    a.I(f's_mov_b32 s10, {18*9*1024}'); a.I('s_mov_b32 s11, 0x00020000')
    srd(a, 12, 4, 5, WS.OF_SZ, WS.OF)
    a.I(f's_mul_i32 s27, s21, {2*KS*1024}')
    a.I('s_lshl_b32 s28, s20, 10'); a.I('s_add_u32 s27, s27, s28')
    a.I('s_mul_i32 s29, s20, 9216')
    toks = {}
    WFR = 88
    GA, G2R, XRS = 160, 180, 200
    def kload(i):
        a.I(f's_add_u32 s30, s27, {i*4096}')
        a.vmem(f'buffer_load_dwordx4 {r4(8*i,"a")}, v2, s[12:15], s30 offen')
        a.I(f's_add_u32 s30, s30, {KS*1024}')
        a.vmem(f'buffer_load_dwordx4 {r4(8*i+4,"a")}, v2, s[12:15], s30 offen')
        for nb in range(9):
            if nb % 4 == 0: a.I(f's_add_u32 s30, s29, {i*36864 + nb*1024}')
            a.vmem(f'buffer_load_dwordx4 {r4(WFR+36*(i % 3)+4*nb)}, v2, s[8:11], s30 offen offset:{(nb % 4)*1024}')
            toks[(i, nb)] = a.vm
    for i in range(3): kload(i)
    stamp(a, 0)
    for i in range(5):
        for nb in range(9):
            if nb % 3 == 0: a.wait(vm=toks[(i, nb+2)])
            for tb in range(2):
                c = '0' if i == 0 else r4(ac(nb, tb))
                a.I(f'v_mfma_f32_16x16x32_bf16 {r4(ac(nb,tb))}, {r4(WFR+36*(i % 3)+4*nb)}, {r4(8*i+4*tb,"a")}, {c}')
        if i == 0: kload(3)
        if i == 1: kload(4)
        if i == 2:
            srd(a, 16, 4, 5, WS.MOD_SZ, WS.MOD); srd(a, 24, 4, 5, WS.XF_SZ, WS.XF); srd(a, 48, 4, 5, WS.G2_SZ, WS.G2)
            a.I('s_lshr_b32 s31, s20, 1'); a.I('s_mul_i32 s31, s31, 5')
            a.I('s_mul_i32 s32, s22, 9'); a.I('s_add_u32 s32, s32, s31')
            a.I('v_lshrrev_b32 v9, 4, v1'); a.I('v_lshlrev_b32 v9, 4, v9')
            a.I('s_lshl_b32 s52, s32, 6'); a.I(f's_add_u32 s33, s52, {2*576*4}')
            for q in range(5): a.vmem(f'buffer_load_dwordx4 {r4(GA+4*q)}, v9, s[16:19], s33 offen offset:{q*64}')
            for q in range(5): a.vmem(f'buffer_load_dwordx4 {r4(G2R+4*q)}, v9, s[48:51], s52 offen offset:{q*64}')
            a.I('s_and_b32 s34, s20, 1'); a.I('s_lshl_b32 s35, s21, 1'); a.I('s_add_u32 s34, s34, s35')
            a.I(f's_mul_i32 s35, s34, {KS*1024}'); a.I('v_add_u32 v10, s35, v2')
            for q in range(5):
                a.I(f's_add_u32 s36, s32, {q}'); a.I('s_and_b32 s37, s36, 1'); a.I('s_lshr_b32 s36, s36, 1'); a.I('s_lshl_b32 s36, s36, 10')
                a.I('s_lshl_b32 s37, s37, 3'); a.I(f's_add_u32 s{40+q}, s36, s37')
                a.vmem(f'buffer_load_dwordx2 {r2(XRS+2*q)}, v10, s[24:27], s{40+q} offen')
    stamp(a, 2)
    a.I('s_mul_i32 s38, s20, 18432'); a.I('v_add_u32 v11, s38, v2')
    for nb in range(9):
        for tb in range(2): a.I(f'ds_write_b128 v11, {r4(ac(nb,tb))} offset:{(nb*2+tb)*1024}')
    a.I('s_waitcnt lgkmcnt(0)'); a.I('s_barrier')
    stamp(a, 3)
    a.I('s_lshl_b32 s38, s31, 1'); a.I('s_and_b32 s39, s20, 1'); a.I('s_add_u32 s38, s38, s39'); a.I('s_lshl_b32 s38, s38, 10')
    a.I('v_add_u32 v11, s38, v2'); a.I(f'v_add_u32 v12, {2*18432}, v11')
    for q in range(5):
        for wv in range(4):
            a.I(f'ds_read_b128 {r4(A3+q*16+wv*4)}, v{11 + wv//2} offset:{(wv % 2)*18432 + q*2048}')
    srd(a, 8, 4, 5, WS.X1F_SZ, WS.X1F); srd(a, 12, 4, 5, WS.X1G_SZ, WS.X1G)
    a.I('v_mov_b32 v13, 0'); a.I('v_mov_b32 v14, 0')
    a.I('s_waitcnt vmcnt(0) lgkmcnt(0)')
    for q in range(5):
        if q == 4:
            a.I('s_cmp_ge_u32 s20, 2'); a.I('s_cbranch_scc1 K3_SKIP5')
        b = A3 + q*16
        for r in range(4):
            a.I(f'v_add_f32 v{b+r}, v{b+r}, v{b+4+r}'); a.I(f'v_add_f32 v{b+8+r}, v{b+8+r}, v{b+12+r}')
        for r in range(4):
            a.I(f'v_add_f32 v{b+r}, v{b+r}, v{b+8+r}')
            x = XRS + 2*q + r//2
            if r % 2 == 0: a.I(f'v_lshlrev_b32 v{b+4+r}, 16, v{x}')
            else: a.I(f'v_and_b32 v{b+4+r}, 0xffff0000, v{x}')
        for r in range(4): a.I(f'v_fma_f32 v{b+r}, v{b+r}, v{GA+4*q+r}, v{b+4+r}')
        d = 100 + 2*q
        a.I(f'v_cvt_pk_bf16_f32 v{d}, v{b}, v{b+1}'); a.I(f'v_cvt_pk_bf16_f32 v{d+1}, v{b+2}, v{b+3}')
        a.vmem(f'buffer_store_dwordx2 {r2(d)}, v10, s[8:11], s{40+q} offen')
        for z in range(2):
            a.I(f'v_lshlrev_b32 v{b+4+2*z}, 16, v{d+z}'); a.I(f'v_and_b32 v{b+5+2*z}, 0xffff0000, v{d+z}')
        for r in range(4):
            a.I(f'v_add_f32 v13, v13, v{b+4+r}'); a.I(f'v_fmac_f32 v14, v{b+4+r}, v{b+4+r}')
            a.I(f'v_mul_f32 v{b+8+r}, v{b+4+r}, v{G2R+4*q+r}')
        a.I(f'v_cvt_pk_bf16_f32 v{b+12}, v{b+8}, v{b+9}'); a.I(f'v_cvt_pk_bf16_f32 v{b+13}, v{b+10}, v{b+11}')
        a.vmem(f'buffer_store_dwordx2 {r2(b+12)}, v10, s[12:15], s{40+q} offen')
    a.label('K3_SKIP5')
    for r in ('v13', 'v14'):
        a.I(f'v_mov_b32 v15, {r}'); a.I(f'v_permlane16_swap_b32 {r}, v15'); a.I(f'v_add_f32 {r}, {r}, v15')
        a.I(f'v_mov_b32 v15, {r}'); a.I(f'v_permlane32_swap_b32 {r}, v15'); a.I(f'v_add_f32 {r}, {r}, v15')
    a.I('v_mov_b32 v112, v13'); a.I('v_mov_b32 v113, v14')
    srd(a, 8, 4, 5, WS.STAT2_SZ, WS.STAT2)
    a.I('s_lshl_b32 s36, s34, 10'); a.I('s_lshl_b32 s37, s22, 4'); a.I('s_add_u32 s36, s36, s37')
    a.I('s_lshr_b32 s37, s20, 1'); a.I('s_lshl_b32 s37, s37, 3'); a.I('s_add_u32 s36, s36, s37')
    a.I('v_and_b32 v15, 15, v1'); a.I('v_lshlrev_b32 v15, 6, v15')
    a.I('v_cmp_gt_u32 vcc, 16, v1'); a.I('s_and_saveexec_b64 s[46:47], vcc')
    a.vmem('buffer_store_dwordx2 v[112:113], v15, s[8:11], s36 offen')
    a.I('s_endpgm')
    a.label('K3_END')
    a.I('s_endpgm')
    return kernel_text('k3_kernel', a, 212+40, accum=212), (256, 256, 4*18432)

AC4 = 16
RING = 64
NR = 18
BF4 = 136
XOFF, HOFF, UTL, STL, CNT = 0, 73728, 147456, 152064, 152576
def k4():
    a = Asm()
    a.I('s_cmp_ge_u32 s2, 256'); a.I('s_cbranch_scc1 K4_END')
    a.I(f's_load_dwordx2 s[4:5], s[0:1], {A_WS}')
    wave_setup(a)
    a.I('s_and_b32 s26, s2, 7'); a.I('s_lshr_b32 s27, s2, 3')
    a.I('s_and_b32 s22, s26, 3'); a.I('s_lshl_b32 s22, s22, 1'); a.I('s_and_b32 s28, s27, 1'); a.I('s_add_u32 s22, s22, s28')
    a.I('s_lshr_b32 s21, s26, 2'); a.I('s_lshl_b32 s21, s21, 4'); a.I('s_lshr_b32 s28, s27, 1'); a.I('s_add_u32 s21, s21, s28')
    a.I('s_and_b32 s28, s20, 3'); a.I('s_lshl_b32 s29, s21, 2'); a.I('s_add_u32 s29, s29, s28'); a.I('s_mul_i32 s29, s29, 18')
    a.I('s_lshr_b32 s38, s20, 2'); a.I('s_add_u32 s29, s29, s38'); a.I('s_lshl_b32 s29, s29, 10')
    a.I('s_lshl_b32 s30, s20, 10')
    a.I('s_mul_i32 s31, s22, 12'); a.I('s_add_u32 s31, s31, s20'); a.I(f's_mul_i32 s31, s31, {54*1024}')
    a.I('v_and_b32 v8, 15, v1'); a.I('v_lshlrev_b32 v9, 6, v8')
    a.I(f'v_mov_b32 v10, {CNT}'); a.I('v_mov_b32 v11, 0'); a.I('ds_write_b32 v10, v11'); a.I('ds_write_b32 v10, v11 offset:4'); a.I('ds_write_b32 v10, v11 offset:8'); a.I('ds_write_b32 v10, v11 offset:12'); a.I('ds_write_b32 v10, v11 offset:16'); a.I('ds_write_b32 v10, v11 offset:20')
    a.I('s_waitcnt lgkmcnt(0)')
    srd(a, 40, 4, 5, WS.STAT2_SZ, WS.STAT2)
    a.I('s_cmp_ge_u32 s20, 4'); a.I('s_cbranch_scc1 K4_NS0')
    a.I('s_lshl_b32 s35, s21, 2'); a.I('s_add_u32 s35, s35, s20'); a.I('s_lshl_b32 s35, s35, 10')
    for q in range(4): a.I(f'buffer_load_dwordx4 {r4(AC4+4*q)}, v9, s[40:43], s35 offen offset:{q*16}')
    a.vm -= 4
    a.label('K4_NS0')
    srd(a, 16, 4, 5, WS.X1G_SZ, WS.X1G); srd(a, 8, 4, 5, WS.W1S_SZ, WS.W1S)
    xt = []
    def xdma(i):
        a.I(f's_add_u32 m0, s30, {i*12*1024}'); a.I(f's_add_u32 s34, s29, {i*3*1024}')
        xt.append(a.vmem('buffer_load_dwordx4 v2, s[16:19], s34 offen lds'))
    wt = {}; wstate = {}
    def wissue(q):
        if q >= 108 or q in wt: return
        sl = q % NR
        off = (q % 54)*1024; srdn = 8 if q < 54 else 12
        key = (srdn, off & ~4095)
        if wstate.get('k') != key:
            a.I(f's_add_u32 s33, s31, {off & ~4095}'); wstate['k'] = key
        wt[q] = a.vmem(f'buffer_load_dwordx4 {r4(RING+4*sl)}, v2, s[{srdn}:{srdn+3}], s33 offen offset:{off & 4095}')
    xdma(0); xdma(1)
    for q in range(6): wissue(q)
    srd(a, 12, 4, 5, WS.W2S_SZ, WS.W2S); srd(a, 24, 4, 5, WS.UT1_SZ, WS.UT1)
    a.I('s_cmp_lt_u32 s20, 4'); a.I('s_cbranch_scc1 K4_PA'); a.I('s_cmp_lt_u32 s20, 8'); a.I('s_cbranch_scc1 K4_PB')
    a.I('s_setprio 1'); a.I('s_branch K4_PD')
    a.label('K4_PB'); a.I('s_setprio 2'); a.I('s_branch K4_PD')
    a.label('K4_PA'); a.I('s_setprio 3')
    a.label('K4_PD')
    tok = {}
    def late_loads():
        for i in range(2, 6): xdma(i)
        a.I('s_mul_i32 s34, s20, 384'); a.I(f's_add_u32 m0, s34, {UTL}')
        a.I('s_cmp_ge_u32 s20, 6'); a.I(f's_cselect_b32 s35, {F*4 - 2304}, 0'); a.I('s_add_u32 s35, s35, s34')
        a.I('s_mul_i32 s36, s22, 2304'); a.I('s_add_u32 s35, s35, s36')
        a.I('s_mov_b64 exec, 0xffffff'); a.vmem('buffer_load_dwordx4 v2, s[24:27], s35 offen lds'); a.I('s_mov_b64 exec, -1')
        tok['ut'] = a.vm
    stamp(a, 0)
    a.I('v_mov_b32 v3, v2'); a.I('v_add_u32 v4, 36864, v2'); a.I(f'v_add_u32 v5, {HOFF}, v2'); a.I(f'v_add_u32 v6, {HOFF+36864}, v2')
    btok = {}
    def bread(kind, ks, st):
        base = (3 if kind == 'x' else 5) + (ks // 9)
        for tb in range(4):
            btok[(kind, ks, tb)] = a.lds(f'ds_read_b128 {r4(BF4+st*16+tb*4)}, v{base} offset:{((ks % 9)*4+tb)*1024}')
    nxt_w = [6]
    st8 = {'q': 0}
    def pump():
        nis = 0
        while nxt_w[0] < min(st8['q'] + NR, 108) and nis < 2:
            wissue(nxt_w[0]); nxt_w[0] += 1; nis += 1
    def gemm(kind, hooks={}):
        for ks in range(18):
            cur = ks % 2
            if ks in hooks:
                lg0 = a.lg
                hooks[ks]()
                a.lg = lg0
            if ks + 1 < 18: bread(kind, ks+1, 1-cur)
            q = st8['q']
            a.wait(vm=wt[q+2], lg=btok[(kind, ks, 3)])
            for fb in range(3):
                for tb in range(4):
                    d = r4(AC4+(fb*4+tb)*4)
                    a.I(f'v_mfma_f32_16x16x32_bf16 {d}, {r4(RING+4*(st8["q"] % NR))}, {r4(BF4+cur*16+tb*4)}, {"0" if ks == 0 else d}')
                st8['q'] += 1
                pump()
    a.wait(vm=xt[1])
    a.I('s_cmp_ge_u32 s20, 4'); a.I('s_cbranch_scc1 K4_NS1')
    b = AC4
    for z in range(1, 8):
        a.I(f'v_add_f32 v{b}, v{b}, v{b+2*z}'); a.I(f'v_add_f32 v{b+1}, v{b+1}, v{b+2*z+1}')
    a.I(f'v_mul_f32 v{b}, {hexf(1.0/576)}, v{b}'); a.I(f'v_mul_f32 v{b+1}, {hexf(1.0/576)}, v{b+1}')
    a.I(f'v_fma_f32 v{b+1}, -v{b}, v{b}, v{b+1}'); a.I(f'v_max_f32 v{b+1}, 0, v{b+1}'); a.I(f'v_add_f32 v{b+1}, {hexf(1e-5)}, v{b+1}')
    a.I(f'v_rsq_f32 v{b+1}, v{b+1}')
    a.I(f'v_mul_f32 v{b+2}, {hexf(LOG2E)}, v{b+1}'); a.I(f'v_mul_f32 v{b+3}, v{b+2}, v{b}')
    a.I('v_lshlrev_b32 v8, 3, v8'); a.I('s_lshl_b32 s35, s20, 7'); a.I(f's_add_u32 s35, s35, {STL}'); a.I('v_add_u32 v8, s35, v8')
    a.I(f'ds_write_b64 v8, {r2(b+2)}')
    a.label('K4_NS1')
    a.I('s_waitcnt lgkmcnt(0)'); a.I('s_barrier')
    stamp(a, 1)
    bread('x', 0, 0)
    def hx():
        for i in range(2, 6): pass
    def gate():
        L = a.newlabel('K4_GATE')
        a.I('s_cmp_eq_u32 s38, 0'); a.I(f's_cbranch_scc1 {L}_D')
        a.I('s_lshl_b32 s36, s38, 2'); a.I(f's_add_u32 s36, s36, {CNT+8}'); a.I('v_mov_b32 v10, s36')
        a.label(L)
        a.I('ds_read_b32 v11, v10'); a.I('s_waitcnt lgkmcnt(0)'); a.I('v_readfirstlane_b32 s36, v11')
        a.I('s_cmp_ge_u32 s36, 4'); a.I(f's_cbranch_scc1 {L}_D'); a.I('s_sleep 4'); a.I(f's_branch {L}')
        a.label(f'{L}_D')
    def sig_g1():
        L = a.newlabel('K4_SIG')
        a.I('s_cmp_ge_u32 s38, 2'); a.I(f's_cbranch_scc1 {L}')
        a.I('s_lshl_b32 s36, s38, 2'); a.I(f's_add_u32 s36, s36, {CNT+12}'); a.I('v_mov_b32 v10, s36'); a.I('v_mov_b32 v11, 1')
        a.I('s_mov_b64 exec, 1'); a.I('ds_add_u32 v10, v11'); a.I('s_mov_b64 exec, -1')
        a.label(L)
    def sig_x():
        a.wait(vm=tok['ut'])
        a.I(f'v_mov_b32 v10, {CNT+20}'); a.I('v_mov_b32 v11, 1')
        a.I('s_mov_b64 exec, 1'); a.I('ds_add_u32 v10, v11'); a.I('s_mov_b64 exec, -1')
    def h1():
        L = a.newlabel('K4_H1')
        a.I('s_cmp_eq_u32 s38, 0'); a.I(f's_cbranch_scc1 {L}')
        lg0 = a.lg
        sig_x(); gate()
        a.label(L)
    def h4():
        L = a.newlabel('K4_H4')
        a.I('s_cmp_lg_u32 s38, 0'); a.I(f's_cbranch_scc1 {L}')
        sig_x()
        a.label(L)
    def h5():
        L = a.newlabel('K4_H5')
        a.I(f'v_mov_b32 v10, {CNT+20}')
        a.label(L)
        a.I('ds_read_b32 v11, v10'); a.I('s_waitcnt lgkmcnt(0)'); a.I('v_readfirstlane_b32 s36, v11')
        a.I('s_cmp_ge_u32 s36, 12'); a.I(f's_cbranch_scc1 {L}_D'); a.I('s_sleep 2'); a.I(f's_branch {L}')
        a.label(f'{L}_D')
    gemm('x', hooks={0: late_loads, 1: h1, 4: h4, 5: h5, 13: sig_g1})
    stamp(a, 2)
    a.I('s_mul_i32 s35, s20, 3')
    a.I('v_lshrrev_b32 v14, 4, v1'); a.I('v_lshlrev_b32 v14, 4, v14'); a.I('s_mul_i32 s36, s20, 192'); a.I(f's_add_u32 s36, s36, {UTL}'); a.I('v_add_u32 v7, s36, v14')
    a.I('v_and_b32 v14, 15, v1'); a.I('v_lshlrev_b32 v14, 3, v14'); a.I(f'v_add_u32 v14, {STL}, v14')
    T0 = BF4
    for tb in range(4): a.I(f'ds_read_b64 {r2(T0+2*tb)}, v14 offset:{tb*128}')
    for fb in range(3):
        a.I(f'ds_read_b128 {r4(T0+8+fb*8)}, v7 offset:{fb*64}'); a.I(f'ds_read_b128 {r4(T0+12+fb*8)}, v7 offset:{fb*64+2304}')
    for fb in range(3):
        a.I(f's_add_u32 s36, s35, {fb}'); a.I('s_and_b32 s37, s36, 1'); a.I('s_lshr_b32 s36, s36, 1')
        a.I('s_lshl_b32 s36, s36, 12'); a.I('s_lshl_b32 s37, s37, 3'); a.I('s_add_u32 s36, s36, s37'); a.I(f'v_add_u32 v{7+fb}, s36, v5')
    a.I('s_waitcnt lgkmcnt(0)')
    for fb in range(3):
        U_, T_ = T0+8+fb*8, T0+12+fb*8
        for r in range(4): a.I(f'v_mul_f32 v{T_+r}, {hexf(LOG2E)}, v{T_+r}')
        for tb in range(4):
            b = AC4 + (fb*4+tb)*4
            for r in range(4): a.I(f'v_fma_f32 v{10+r}, -v{T0+2*tb+1}, v{U_+r}, v{T_+r}')
            for r in range(4): a.I(f'v_fma_f32 v{b+r}, v{b+r}, v{T0+2*tb}, v{10+r}')
            for r in range(4): a.I(f'v_exp_f32 v{10+r}, -v{b+r}')
            for r in range(4): a.I(f'v_add_f32 v{10+r}, 1.0, v{10+r}')
            for r in range(4): a.I(f'v_rcp_f32 v{10+r}, v{10+r}')
            for r in range(4): a.I(f'v_mul_f32 v{b+r}, v{b+r}, v{10+r}')
            a.I(f'v_cvt_pk_bf16_f32 v14, v{b}, v{b+1}'); a.I(f'v_cvt_pk_bf16_f32 v15, v{b+2}, v{b+3}')
            a.lds(f'ds_write_b64 v{7+fb}, v[14:15] offset:{tb*1024}')
    a.I('s_waitcnt lgkmcnt(0)')
    a.I('s_lshl_b32 s36, s38, 2'); a.I(f's_add_u32 s36, s36, {CNT}'); a.I('v_mov_b32 v10, s36'); a.I('v_mov_b32 v11, 1')
    a.I('s_mov_b64 exec, 1'); a.I('ds_add_u32 v10, v11'); a.I('s_mov_b64 exec, -1')
    a.I('s_setprio 0')
    stamp(a, 3)
    def poll(g):
        def f():
            L = a.newlabel('K4_POLL')
            a.I(f'v_mov_b32 v10, {CNT+4*g}')
            a.label(L)
            a.I('ds_read_b32 v11, v10'); a.I('s_waitcnt lgkmcnt(0)'); a.I('v_readfirstlane_b32 s36, v11')
            a.I('s_cmp_ge_u32 s36, 4'); a.I(f's_cbranch_scc1 {L}_D'); a.I('s_sleep 2'); a.I(f's_branch {L}')
            a.label(f'{L}_D')
        return f
    poll(0)()
    bread('h', 0, 0)
    gemm('h', hooks={5: poll(1), 11: poll(2)})
    stamp(a, 4)
    srd(a, 16, 4, 5, WS.PART_SZ, WS.PART)
    a.I('s_lshl_b32 s28, s22, 6'); a.I('s_lshl_b32 s29, s21, 1'); a.I('s_add_u32 s28, s28, s29'); a.I('s_mul_i32 s28, s28, 36')
    a.I('s_mul_i32 s29, s20, 3'); a.I('s_add_u32 s28, s28, s29'); a.I('s_lshl_b32 s28, s28, 10')
    for nb in range(3):
        for pr in range(2):
            b0, b1 = AC4+(nb*4+2*pr)*4, AC4+(nb*4+2*pr+1)*4
            d = RING + (nb*2+pr)*4
            a.I(f'v_cvt_pk_bf16_f32 v{d}, v{b0}, v{b0+1}'); a.I(f'v_cvt_pk_bf16_f32 v{d+1}, v{b0+2}, v{b0+3}')
            a.I(f'v_cvt_pk_bf16_f32 v{d+2}, v{b1}, v{b1+1}'); a.I(f'v_cvt_pk_bf16_f32 v{d+3}, v{b1+2}, v{b1+3}')
            a.I(f's_add_u32 s29, s28, {(pr*36+nb)*1024}')
            a.vmem(f'buffer_store_dwordx4 {r4(d)}, v2, s[16:19], s29 offen ' + os.environ.get('PARTFLAG', 'sc1'))
    a.label('K4_END')
    a.I('s_endpgm')
    return kernel_text('k4_kernel', a, 168), (256, 768, CNT + 64)

def k5():
    a = Asm()
    NWG = 64*18//4
    a.I(f's_cmp_ge_u32 s2, {NWG}'); a.I('s_cbranch_scc1 K5_END')
    a.I(f's_load_dwordx2 s[4:5], s[0:1], {A_WS}'); a.I(f's_load_dwordx2 s[6:7], s[0:1], {A_OUT}')
    wave_setup(a)
    a.I('s_lshl_b32 s21, s2, 2'); a.I('s_add_u32 s21, s21, s20')
    sdiv(a, 's22', 's21', 18, 1151)
    a.I('s_mul_i32 s23, s22, 18'); a.I('s_sub_u32 s23, s21, s23')
    a.I('s_mul_i32 s28, s22, 36'); a.I('s_lshl_b32 s29, s23, 1'); a.I('s_add_u32 s28, s28, s29'); a.I('s_lshl_b32 s28, s28, 10')
    a.I('v_lshrrev_b32 v3, 4, v1'); a.I('v_lshlrev_b32 v4, 4, v3')
    a.I('s_waitcnt lgkmcnt(0)')
    srd(a, 8, 4, 5, WS.PART_SZ, WS.PART)
    for j in range(8):
        a.vmem(f'buffer_load_dwordx4 {r4(16+8*j)}, v2, s[8:11], s28 offen')
        a.vmem(f'buffer_load_dwordx4 {r4(20+8*j)}, v2, s[8:11], s28 offen offset:1024')
        if j < 7: a.I(f's_add_u32 s28, s28, {64*36*1024}')
    srd(a, 12, 4, 5, WS.X1F_SZ, WS.X1F); srd(a, 16, 4, 5, WS.MOD_SZ, WS.MOD); srd(a, 24, 6, 7, S*D*2)
    a.I('s_mul_i32 s28, s22, 36'); a.I('s_add_u32 s28, s28, s23'); a.I('s_lshl_b32 s28, s28, 10')
    a.vmem('buffer_load_dwordx4 v[80:83], v2, s[12:15], s28 offen')
    a.I(f's_add_u32 s28, s28, {18*1024}')
    a.vmem('buffer_load_dwordx4 v[84:87], v2, s[12:15], s28 offen')
    a.I('s_lshl_b32 s28, s23, 7'); a.I(f's_add_u32 s28, s28, {5*576*4}')
    a.vmem('buffer_load_dwordx4 v[88:91], v4, s[16:19], s28 offen')
    a.vmem('buffer_load_dwordx4 v[92:95], v4, s[16:19], s28 offen offset:64')
    a.I('v_and_b32 v5, 15, v1'); a.I('v_mul_u32_u24 v5, 1152, v5')
    a.I('v_and_b32 v6, 1, v3'); a.I('v_lshl_add_u32 v5, v6, 5, v5'); a.I('v_lshrrev_b32 v6, 1, v3'); a.I('v_lshl_add_u32 v5, v6, 4, v5')
    a.I(f's_mul_i32 s28, s22, {32*1152}'); a.I('s_lshl_b32 s29, s23, 6'); a.I('s_add_u32 s28, s28, s29')
    for r in range(16): a.I(f'v_mov_b32 v{96+r}, 0')
    for j in range(8):
        a.I(f's_waitcnt vmcnt({18 - 2*j - 2 + 0})' if False else f's_waitcnt vmcnt({max(0, 20 - 2*(j+1))})')
        for e in range(2):
            for z in range(4):
                w = 16 + 8*j + 4*e + z
                a.I(f'v_lshlrev_b32 v6, 16, v{w}'); a.I(f'v_and_b32 v7, 0xffff0000, v{w}')
                a.I(f'v_add_f32 v{96+e*8+2*z}, v{96+e*8+2*z}, v6'); a.I(f'v_add_f32 v{97+e*8+2*z}, v{97+e*8+2*z}, v7')
    a.I('s_waitcnt vmcnt(0)')
    LN2 = math.log(2.0)
    for r in range(8): a.I(f'v_mul_f32 v{88+r}, {hexf(LN2)}, v{88+r}')
    for h in range(2):
        for e in range(2):
            for r in range(4):
                x = 80 + 4*h + 2*e + r//2
                if r % 2 == 0: a.I(f'v_lshlrev_b32 v6, 16, v{x}')
                else: a.I(f'v_and_b32 v6, 0xffff0000, v{x}')
                a.I(f'v_fma_f32 v{96+e*8+h*4+r}, v{96+e*8+h*4+r}, v{88+4*e+r}, v6')
        d = 112 + 4*h
        a.I(f'v_cvt_pk_bf16_f32 v{d}, v{96+h*4}, v{97+h*4}'); a.I(f'v_cvt_pk_bf16_f32 v{d+1}, v{98+h*4}, v{99+h*4}')
        a.I(f'v_cvt_pk_bf16_f32 v{d+2}, v{104+h*4}, v{105+h*4}'); a.I(f'v_cvt_pk_bf16_f32 v{d+3}, v{106+h*4}, v{107+h*4}')
        a.I(f'v_permlane16_swap_b32 v{d}, v{d+2}'); a.I(f'v_permlane16_swap_b32 v{d+1}, v{d+3}')
        a.vmem(f'buffer_store_dwordx4 {r4(d)}, v5, s[24:27], s28 offen')
        if h == 0: a.I(f's_add_u32 s28, s28, {16*1152}')
    a.label('K5_END')
    a.I('s_endpgm')
    return kernel_text('k5_kernel', a, 120), (NWG, 256, 0)
```

```python
from common import *
import os

def wave_setup(a):
    a.I('v_lshrrev_b32 v1, 6, v0')
    a.I('v_readfirstlane_b32 s20, v1')
    a.I('v_and_b32 v1, 63, v0')
    a.I('v_lshlrev_b32 v2, 4, v1')

def apply_gs(a, raw, dst, T, G, Sx, emit=None):
    L = []
    for q in range(4):
        L.append(f'v_lshlrev_b32 v{T+2*q}, 16, {raw(q)}')
        L.append(f'v_and_b32 v{T+2*q+1}, 0xffff0000, {raw(q)}')
    for q in range(8):
        L.append(f'v_fma_f32 v{T+q}, v{T+q}, v{G+q}, v{Sx+q}')
    for q in range(4):
        L.append(f'v_cvt_pk_bf16_f32 {dst(q)}, v{T+2*q}, v{T+2*q+1}')
    return L

ACC = 16
WF, NWF = 88, 12
XB = 136
XR, XRING, XD = 16, 8, 7
GV, TT, XO, MT = 80, 112, 120, 136
NSLOT, STAGE = 5, 18432
XOFF1 = NSLOT*STAGE
GTOFF = XOFF1 + 6*8192
K1_LDS = GTOFF + 4608
def acc(nb, tb): return ACC + (nb*2 + tb)*4

def k1_consumer(a, swap):
    nks = 18
    ltok, xtok = {}, {}
    def wreg(z): return WF + (z % NWF)*4
    def wread(z):
        ks, nb = divmod(z, 9)
        st = ks // 2; slot = st % NSLOT
        base = 6 + slot // 3
        off = (slot % 3)*STAGE + ((ks & 1)*9 + nb)*1024
        ltok[z] = a.lds(f'ds_read_b128 {r4(wreg(z))}, v{base} offset:{off}')
    def xread(ks):
        for tb in range(2):
            xtok[ks] = a.lds(f'ds_read_b128 {r4(XB+(ks & 1)*8+tb*4)}, v{9+tb} offset:{(ks % 6)*8192}')
    a.I('s_barrier')
    stamp(a, 1)
    xread(0)
    for z in range(9): wread(z)
    nz = 9
    for ks in range(nks):
        if ks == 6: stamp(a, 4)
        if ks & 1 and ks + 1 < nks: a.I('s_barrier')
        if ks + 1 < nks: xread(ks + 1)
        xb = XB + (ks & 1)*8
        for nb in range(9):
            z = ks*9 + nb
            if nb == 0: a.wait(lg=max(ltok[z+2], xtok[ks]))
            elif nb % 3 == 0: a.wait(lg=ltok[z+2])
            wf = wreg(z)
            for tb in range(2):
                c = '0' if ks == 0 else r4(acc(nb, tb))
                if swap: a.I(f'v_mfma_f32_16x16x32_bf16 {r4(acc(nb,tb))}, {r4(xb+tb*4)}, {r4(wf)}, {c}')
                else:    a.I(f'v_mfma_f32_16x16x32_bf16 {r4(acc(nb,tb))}, {r4(wf)}, {r4(xb+tb*4)}, {c}')
            if nz < nks*9: wread(nz); nz += 1
    stamp(a, 2)
    a.I('s_barrier')
    stamp(a, 3)

def k1_loader(a):
    nst = 9
    wtok = {}
    def W(st):
        slot = st % NSLOT
        a.I(f's_add_u32 m0, s23, {slot*STAGE}'); a.I(f's_mov_b32 s24, {st*STAGE}')
        a.I('s_mov_b32 exec_hi, 0'); a.vmem('buffer_load_dwordx4 v3, s[8:11], s24 offen lds'); a.I('s_mov_b32 exec_hi, -1')
        for o in (512, 1536, 2560, 3584): a.vmem(f'buffer_load_dwordx4 v3, s[8:11], s24 offen offset:{o} lds')
        wtok[st] = a.vm
    W(0); W(1); W(2)
    a.I('s_barrier')
    a.wait(vm=wtok[0]); a.I('s_barrier')
    for s in range(1, nst):
        if s + 2 < nst: W(s+2)
        a.wait(vm=wtok[s]); a.I('s_barrier')
    a.I('s_barrier')
    a.I('s_endpgm')

def k1_producer(a):
    nst = 9
    XR4, NRING = 16, 4
    xtok, gtok = {}, {}
    def xload_items(s):
        sl = s % NRING
        L = []
        for t in range(4):
            def f(t=t):
                a.I(f's_mov_b32 s25, {s*2048 + t*KS*1024}')
                a.vmem(f'buffer_load_dwordx4 {r4(XR4+sl*16+4*t)}, v4, s[12:15], s25 offen')
                if t == 3: xtok[s] = a.vm
            L.append(f)
        return L
    def gread(s):
        for q in range(4): a.lds(f'ds_read_b128 {r4(GV+(s & 1)*16+4*q)}, v8 offset:{s*512+q*16}')
        gtok[s] = a.lg
    def produce(s):
        vm_items = xload_items(s + 3) if s + 3 < nst else []
        sl = s % NRING; G = GV + (s & 1)*16
        a.wait(vm=xtok[s], lg=gtok[s])
        for t in range(4):
            raw = XR4+sl*16+4*t; dst = XO+(t & 1)*4
            for q in range(4):
                a.I(f'v_lshlrev_b32 v{TT+2*q}, 16, v{raw+q}'); a.I(f'v_and_b32 v{TT+2*q+1}, 0xffff0000, v{raw+q}')
            for q in range(8): a.I(f'v_fma_f32 v{TT+q}, v{TT+q}, v{G+q}, v{G+8+q}')
            for q in range(4): a.I(f'v_cvt_pk_bf16_f32 v{dst+q}, v{TT+2*q}, v{TT+2*q+1}')
            a.lds(f'ds_write_b128 v9, {r4(dst)} offset:{((2*s) % 6)*8192 + t*1024}')
            if vm_items: vm_items.pop(0)()
        if s + 2 < nst: gread(s + 2)
    srd(a, 16, 4, 5, WS.MODP_SZ, WS.MODP)
    a.I('v_lshlrev_b32 v11, 2, v10')
    for i in range(3):
        for z, idx in enumerate((0, 3456, 576, 3456+576)):
            a.I(f's_mov_b32 s26, {(idx+256*i)*4}'); a.vmem(f'buffer_load_dword v{MT+4*i+z}, v11, s[16:19], s26 offen')
    mtok = a.vm
    for s in range(3):
        for f in xload_items(s): f()
    a.wait(vm=mtok)
    for i in range(3):
        b = MT + 4*i
        a.I(f'v_add_f32 v{b}, v{b}, v{b+1}'); bf16_round_f32(a, f'v{b}', f'v{b}')
        a.I(f'v_add_f32 v{b+2}, v{b+2}, v{b+3}'); bf16_round_f32(a, f'v{b+2}', f'v{b+2}')
        a.I(f'v_add_f32 v{b+2}, 1.0, v{b+2}'); bf16_round_f32(a, f'v{b+2}', f'v{b+2}')
        a.I(f'v_mul_f32 v{b}, s31, v{b}'); a.I(f'v_mul_f32 v{b+2}, s31, v{b+2}')
        a.I(f'v_add_u32 v12, {256*i}, v10')
        a.I('v_lshrrev_b32 v13, 5, v12'); a.I('v_lshlrev_b32 v13, 2, v13'); a.I('v_bfe_u32 v14, v12, 2, 2'); a.I('v_add_u32 v13, v13, v14')
        a.I('v_bfe_u32 v14, v12, 4, 1'); a.I('v_lshlrev_b32 v14, 2, v14'); a.I('v_and_b32 v15, 3, v12'); a.I('v_add_u32 v14, v14, v15')
        a.I('v_lshlrev_b32 v15, 6, v13'); a.I('v_lshl_add_u32 v15, v14, 2, v15'); a.I(f'v_add_u32 v15, {GTOFF}, v15')
        if i == 2:
            a.I('v_cmp_gt_u32 vcc, 64, v10'); a.I('s_and_saveexec_b64 s[36:37], vcc')
        a.lds(f'ds_write_b32 v15, v{b+2}'); a.lds(f'ds_write_b32 v15, v{b} offset:32')
        if i == 2: a.I('s_mov_b64 exec, s[36:37]')
    a.I('s_waitcnt lgkmcnt(0)'); a.I('s_barrier')
    gread(0); gread(1)
    for s in range(nst):
        produce(s)
        a.wait(lg=a.lg - (4 if s + 2 < nst else 0)); a.I('s_barrier')
    a.I('s_barrier')
    a.I('s_endpgm')

def k1():
    import k0 as K0
    a = Asm()
    a.I(f's_cmp_ge_u32 s2, {192+K0.NPREP}'); a.I('s_cbranch_scc1 K1_END')
    a.I(f's_load_dwordx2 s[4:5], s[0:1], {A_WS}')
    a.I('s_cmp_ge_u32 s2, 192'); a.I('s_cbranch_scc1 K1_PREP')
    wave_setup(a)
    a.I('s_and_b32 s33, s20, 3')
    a.I('s_mul_i32 s23, s33, 4608'); a.I('v_add_u32 v3, s23, v2')
    a.I('v_mov_b32 v6, v2'); a.I(f'v_add_u32 v7, {3*STAGE}, v2')
    a.I('v_lshrrev_b32 v8, 4, v1'); a.I('v_lshlrev_b32 v8, 6, v8'); a.I(f'v_add_u32 v8, {GTOFF}, v8')
    a.I('s_lshl_b32 s26, s33, 11'); a.I(f's_add_u32 s26, s26, {XOFF1}'); a.I('v_add_u32 v9, s26, v2'); a.I('v_add_u32 v10, 1024, v9')
    a.I('s_and_b32 s26, s2, 7'); a.I('s_lshr_b32 s27, s2, 3')
    a.I('s_lshr_b32 s21, s26, 1'); a.I('s_lshl_b32 s21, s21, 2'); a.I('s_and_b32 s28, s27, 3'); a.I('s_add_u32 s21, s21, s28')
    a.I('s_and_b32 s22, s26, 1'); a.I('s_mul_i32 s22, s22, 6'); a.I('s_lshr_b32 s28, s27, 2'); a.I('s_add_u32 s22, s22, s28')
    a.I('s_lshl_b32 s26, s21, 3'); a.I('s_lshl_b32 s27, s33, 1'); a.I('s_add_u32 s29, s26, s27')
    a.I('s_lshl_b32 s34, s21, 2'); a.I('s_add_u32 s34, s34, s33')
    a.I('s_cmp_lt_u32 s20, 4'); a.I('s_cbranch_scc1 K1_CONS')
    a.I('s_waitcnt lgkmcnt(0)')
    a.I('s_cmp_lt_u32 s20, 8'); a.I('s_cbranch_scc1 K1_PROD')
    a.I(f's_mul_i32 s26, s22, {18*9*1024}')
    a.I('s_add_u32 s8, s4, s26'); a.I('s_addc_u32 s9, s5, 0')
    a.I(f's_add_u32 s8, s8, {WS.WQKVF}'); a.I('s_addc_u32 s9, s9, 0')
    a.I(f's_mov_b32 s10, {18*9*1024}'); a.I('s_mov_b32 s11, 0x00020000')
    k1_loader(a)
    a.label('K1_PROD')
    srd(a, 12, 4, 5, WS.NF_SZ, WS.NF)
    a.I('s_and_b32 s36, s20, 1'); a.I('s_bfe_u32 s37, s20, 0x10001')
    a.I('s_lshl_b32 s26, s21, 3'); a.I('s_lshl_b32 s27, s37, 2'); a.I('s_add_u32 s26, s26, s27')
    a.I(f's_mul_i32 s27, s26, {KS*1024}'); a.I('s_lshl_b32 s28, s36, 10'); a.I('s_add_u32 s27, s27, s28'); a.I('v_add_u32 v4, s27, v2')
    a.I('s_lshl_b32 s28, s36, 8'); a.I('v_add_u32 v8, s28, v8')
    a.I('s_lshl_b32 s27, s37, 12'); a.I('s_lshl_b32 s28, s36, 13'); a.I('s_add_u32 s27, s27, s28'); a.I(f's_add_u32 s27, s27, {XOFF1}'); a.I('v_add_u32 v9, s27, v2')
    a.I('s_mov_b32 s31, 1.0'); a.I('s_cmp_lt_u32 s22, 4'); a.I(f's_cselect_b32 s31, {hexf(QSCALE)}, s31')
    a.I('v_subrev_u32 v10, 256, v0')
    k1_producer(a)
    a.label('K1_CONS')
    a.I('s_waitcnt lgkmcnt(0)')
    a.I('s_barrier')
    a.I('s_cmp_ge_u32 s22, 8'); a.I('s_cbranch_scc1 K1_V')
    k1_consumer(a, False)
    a.I('v_and_b32 v10, 15, v1'); a.I('v_lshrrev_b32 v13, 4, v1')
    a.I('s_mov_b32 s26, s34')
    a.I('s_and_b32 s30, s22, 3'); a.I('s_lshl_b32 s30, s30, 3')
    ST = 88
    def qk_store(img_off, img_sz, tilebytes, hi_off):
        srd(a, 16, 4, 5, img_sz, img_off)
        a.I('v_lshrrev_b32 v14, 1, v13'); a.I('v_add_u32 v14, s30, v14'); a.I('v_lshlrev_b32 v14, 6, v14'); a.I('v_add_u32 v14, s26, v14')
        a.I(f's_movk_i32 s31, {tilebytes}'); a.I('v_mul_lo_u32 v14, v14, s31')
        a.I('v_and_b32 v15, 1, v13'); a.I('v_lshl_add_u32 v14, v15, 9, v14'); a.I('v_lshl_add_u32 v14, v10, 4, v14')
        for tb in range(2):
            for p in range(4):
                d = ST + (tb*4+p)*4
                b0, b1 = acc(2*p, tb), acc(2*p+1, tb)
                a.I(f'v_cvt_pk_bf16_f32 v{d}, v{b0}, v{b0+1}'); a.I(f'v_cvt_pk_bf16_f32 v{d+1}, v{b0+2}, v{b0+3}')
                a.I(f'v_cvt_pk_bf16_f32 v{d+2}, v{b1}, v{b1+1}'); a.I(f'v_cvt_pk_bf16_f32 v{d+3}, v{b1+2}, v{b1+3}')
                a.I(f's_mov_b32 s31, {p*2*64*tilebytes}')
                a.vmem(f'buffer_store_dwordx4 {r4(d)}, v14, s[16:19], s31 offen offset:{tb*256} ' + os.environ.get('K1FLAG', 'sc1'))
        a.I('v_lshlrev_b32 v14, 1, v13'); a.I('v_add_u32 v14, s30, v14'); a.I('v_lshlrev_b32 v14, 6, v14'); a.I('v_add_u32 v14, s26, v14')
        a.I(f's_movk_i32 s31, {tilebytes}'); a.I('v_mul_lo_u32 v14, v14, s31'); a.I('v_lshl_add_u32 v14, v10, 2, v14')
        a.I(f's_mov_b32 s31, {64*tilebytes}')
        for tb in range(2):
            b = acc(8, tb); d = ST + 32 + tb*2
            a.I(f'v_cvt_pk_bf16_f32 v{d}, v{b}, v{b+1}'); a.I(f'v_cvt_pk_bf16_f32 v{d+1}, v{b+2}, v{b+3}')
            a.vmem(f'buffer_store_dword v{d}, v14, s[16:19], 0 offen offset:{hi_off+tb*64}')
            a.vmem(f'buffer_store_dword v{d+1}, v14, s[16:19], s31 offen offset:{hi_off+tb*64}')
    a.I('s_cmp_ge_u32 s22, 4'); a.I('s_cbranch_scc1 K1_K')
    qk_store(WS.QIMG, WS.QIMG_SZ, QT_BYTES, 1024)
    a.I('s_endpgm')
    a.label('K1_K')
    qk_store(WS.KVIMG, WS.KVIMG_SZ, KV_TILE, 1024)
    N0 = 88
    for p in range(4):
        for tb in range(2):
            b0, b1 = acc(2*p, tb), acc(2*p+1, tb)
            d = N0 + p*2 + tb
            a.I(f'v_mul_f32 v{d}, v{b0}, v{b0}')
            for v in [b0+1, b0+2, b0+3, b1, b1+1, b1+2, b1+3]: a.I(f'v_fmac_f32 v{d}, v{v}, v{v}')
    for p in range(4):
        for tb in range(2):
            d = N0 + p*2 + tb
            a.I(f'v_mov_b32 v9, v{d}'); a.I(f'v_permlane16_swap_b32 v{d}, v9'); a.I(f'v_add_f32 v{d}, v{d}, v9')
        a.I(f'v_max_f32 v{N0+16+p}, v{N0+p*2}, v{N0+p*2+1}')
    for e in range(2):
        for tb in range(2):
            b = acc(8, tb); d = N0 + 24 + e*2 + tb
            a.I(f'v_mul_f32 v{d}, v{b+2*e}, v{b+2*e}'); a.I(f'v_fmac_f32 v{d}, v{b+2*e+1}, v{b+2*e+1}')
        a.I(f'v_max_f32 v{N0+20+e}, v{N0+24+e*2}, v{N0+25+e*2}')
    for q in range(6):
        d = N0 + 16 + q
        for dpp in ('quad_perm:[1,0,3,2]', 'quad_perm:[2,3,0,1]', 'row_half_mirror', 'row_mirror'):
            a.I(f'v_max_f32_dpp v{d}, v{d}, v{d} {dpp} row_mask:0xf bank_mask:0xf')
    a.I('s_lshl_b32 s28, s20, 6')
    a.I('v_lshrrev_b32 v9, 5, v1'); a.I('v_lshlrev_b32 v9, 3, v9'); a.I('v_add_u32 v9, s28, v9')
    a.I('v_lshlrev_b32 v11, 4, v13'); a.I('v_add_u32 v11, s28, v11')
    for p in range(4): a.I(f'ds_write_b32 v9, v{N0+16+p} offset:{p*16}')
    for e in range(2): a.I(f'ds_write_b32 v11, v{N0+20+e} offset:{e*8+4}')
    a.I('v_and_b32 v12, 7, v1'); a.I('v_lshlrev_b32 v12, 3, v12'); a.I('v_add_u32 v12, s28, v12')
    a.I(f'ds_read_b64 {r2(N0+30)}, v12'); a.I('s_waitcnt lgkmcnt(0)')
    a.I(f'v_add_f32 v9, v{N0+30}, v{N0+31}')
    srd(a, 16, 4, 5, WS.KMAX_SZ, WS.KMAX)
    a.I('v_and_b32 v14, 7, v1'); a.I('v_add_u32 v14, s30, v14'); a.I('v_lshlrev_b32 v14, 6, v14'); a.I('v_add_u32 v14, s26, v14'); a.I('v_lshlrev_b32 v14, 2, v14')
    a.I('s_mov_b64 exec, 0xff')
    a.I('buffer_store_dword v9, v14, s[16:19], 0 offen')
    a.I('s_endpgm')
    a.label('K1_V')
    a.I('v_bfe_u32 v11, v1, 3, 1'); a.I('v_lshlrev_b32 v11, 10, v11')
    a.I('v_and_b32 v12, 0x30, v1'); a.I('v_and_b32 v13, 7, v1'); a.I('v_add_u32 v12, v12, v13'); a.I('v_lshl_add_u32 v11, v12, 4, v11')
    a.I('s_lshl_b32 s26, s33, 11'); a.I(f's_add_u32 s26, s26, {XOFF1}'); a.I('v_add_u32 v9, s26, v11'); a.I('v_add_u32 v10, 128, v9')
    k1_consumer(a, True)
    a.I('v_and_b32 v10, 15, v1'); a.I('v_lshrrev_b32 v13, 4, v1')
    a.I('s_mov_b32 s26, s34')
    srd(a, 16, 4, 5, WS.KVIMG_SZ, WS.KVIMG)
    a.I('s_and_b32 s30, s22, 3'); a.I('s_lshl_b32 s30, s30, 3')
    a.I('s_lshl_b32 s31, s30, 6'); a.I('s_add_u32 s31, s31, s26'); a.I(f's_mul_i32 s31, s31, {KV_TILE}')
    a.I(f'v_mul_u32_u24 v14, {DV}, v13'); a.I('v_add_u32 v15, v14, v10'); a.I('v_lshlrev_b32 v15, 4, v15')
    for nb in range(9):
        d = 88 + (nb % 6)*4
        b0, b1 = acc(nb, 0), acc(nb, 1)
        a.I(f'v_cvt_pk_bf16_f32 v{d}, v{b0}, v{b0+1}'); a.I(f'v_cvt_pk_bf16_f32 v{d+1}, v{b0+2}, v{b0+3}')
        a.I(f'v_cvt_pk_bf16_f32 v{d+2}, v{b1}, v{b1+1}'); a.I(f'v_cvt_pk_bf16_f32 v{d+3}, v{b1+2}, v{b1+3}')
        if nb < 8:
            a.I(f's_add_u32 s32, s31, {nb*64*KV_TILE}')
            a.vmem(f'buffer_store_dwordx4 {r4(d)}, v15, s[16:19], s32 offen offset:{VT_OFF} ' + os.environ.get('K1FLAG', 'sc1'))
        else:
            a.I('v_lshrrev_b32 v9, 1, v10'); a.I(f's_mov_b32 s32, {64*KV_TILE}'); a.I('v_mul_lo_u32 v9, v9, s32')
            a.I('v_and_b32 v11, 1, v10'); a.I('v_add_u32 v11, v11, v14'); a.I('v_add_u32 v11, 16, v11'); a.I('v_lshl_add_u32 v9, v11, 4, v9')
            a.vmem(f'buffer_store_dwordx4 {r4(d)}, v9, s[16:19], s31 offen offset:{VT_OFF}')
    a.I('s_endpgm')
    a.label('K1_PREP')
    a.I(f's_load_dwordx2 s[8:9], s[0:1], {A_W1}')
    a.I('s_sub_u32 s3, s2, 192')
    K0.prep_body(a, 's3', 'K1P')
    a.label('K1_END')
    a.I('s_endpgm')
    return kernel_text('k1_kernel', a, 160), (192+K0.NPREP, 768, K1_LDS)

def k3():
    a = Asm()
    A3 = 16
    def ac(nb, tb): return A3 + (nb*2+tb)*4
    a.I('s_cmp_ge_u32 s2, 256'); a.I('s_cbranch_scc1 K3_END')
    a.I(f's_load_dwordx2 s[4:5], s[0:1], {A_WS}')
    wave_setup(a)
    a.I('s_and_b32 s21, s2, 7'); a.I('s_lshl_b32 s21, s21, 3'); a.I('s_bfe_u32 s26, s2, 0x30003'); a.I('s_add_u32 s21, s21, s26')
    a.I('s_lshr_b32 s22, s2, 6')
    a.I('s_waitcnt lgkmcnt(0)')
    a.I(f's_mul_i32 s26, s22, {18*9*1024}')
    a.I('s_add_u32 s8, s4, s26'); a.I('s_addc_u32 s9, s5, 0')
    a.I(f's_add_u32 s8, s8, {WS.WOF}'); a.I('s_addc_u32 s9, s9, 0')
    a.I(f's_mov_b32 s10, {18*9*1024}'); a.I('s_mov_b32 s11, 0x00020000')
    srd(a, 12, 4, 5, WS.OF_SZ, WS.OF)
    a.I(f's_mul_i32 s27, s21, {2*KS*1024}')
    a.I('s_lshl_b32 s28, s20, 10'); a.I('s_add_u32 s27, s27, s28')
    a.I('s_mul_i32 s29, s20, 9216')
    toks = {}
    WFR = 88
    GA, G2R, XRS = 160, 180, 200
    def kload(i):
        a.I(f's_add_u32 s30, s27, {i*4096}')
        a.vmem(f'buffer_load_dwordx4 {r4(8*i,"a")}, v2, s[12:15], s30 offen')
        a.I(f's_add_u32 s30, s30, {KS*1024}')
        a.vmem(f'buffer_load_dwordx4 {r4(8*i+4,"a")}, v2, s[12:15], s30 offen')
        for nb in range(9):
            if nb % 4 == 0: a.I(f's_add_u32 s30, s29, {i*36864 + nb*1024}')
            a.vmem(f'buffer_load_dwordx4 {r4(WFR+36*(i % 3)+4*nb)}, v2, s[8:11], s30 offen offset:{(nb % 4)*1024}')
            toks[(i, nb)] = a.vm
    for i in range(3): kload(i)
    stamp(a, 0)
    for i in range(5):
        for nb in range(9):
            if nb % 3 == 0: a.wait(vm=toks[(i, nb+2)])
            for tb in range(2):
                c = '0' if i == 0 else r4(ac(nb, tb))
                a.I(f'v_mfma_f32_16x16x32_bf16 {r4(ac(nb,tb))}, {r4(WFR+36*(i % 3)+4*nb)}, {r4(8*i+4*tb,"a")}, {c}')
        if i == 0: kload(3)
        if i == 1: kload(4)
        if i == 2:
            srd(a, 16, 4, 5, WS.MOD_SZ, WS.MOD); srd(a, 24, 4, 5, WS.XF_SZ, WS.XF); srd(a, 48, 4, 5, WS.G2_SZ, WS.G2)
            a.I('s_lshr_b32 s31, s20, 1'); a.I('s_mul_i32 s31, s31, 5')
            a.I('s_mul_i32 s32, s22, 9'); a.I('s_add_u32 s32, s32, s31')
            a.I('v_lshrrev_b32 v9, 4, v1'); a.I('v_lshlrev_b32 v9, 4, v9')
            a.I('s_lshl_b32 s52, s32, 6'); a.I(f's_add_u32 s33, s52, {2*576*4}')
            for q in range(5): a.vmem(f'buffer_load_dwordx4 {r4(GA+4*q)}, v9, s[16:19], s33 offen offset:{q*64}')
            for q in range(5): a.vmem(f'buffer_load_dwordx4 {r4(G2R+4*q)}, v9, s[48:51], s52 offen offset:{q*64}')
            a.I('s_and_b32 s34, s20, 1'); a.I('s_lshl_b32 s35, s21, 1'); a.I('s_add_u32 s34, s34, s35')
            a.I(f's_mul_i32 s35, s34, {KS*1024}'); a.I('v_add_u32 v10, s35, v2')
            for q in range(5):
                a.I(f's_add_u32 s36, s32, {q}'); a.I('s_and_b32 s37, s36, 1'); a.I('s_lshr_b32 s36, s36, 1'); a.I('s_lshl_b32 s36, s36, 10')
                a.I('s_lshl_b32 s37, s37, 3'); a.I(f's_add_u32 s{40+q}, s36, s37')
                a.vmem(f'buffer_load_dwordx2 {r2(XRS+2*q)}, v10, s[24:27], s{40+q} offen')
    stamp(a, 2)
    a.I('s_mul_i32 s38, s20, 18432'); a.I('v_add_u32 v11, s38, v2')
    for nb in range(9):
        for tb in range(2): a.I(f'ds_write_b128 v11, {r4(ac(nb,tb))} offset:{(nb*2+tb)*1024}')
    a.I('s_waitcnt lgkmcnt(0)'); a.I('s_barrier')
    stamp(a, 3)
    a.I('s_lshl_b32 s38, s31, 1'); a.I('s_and_b32 s39, s20, 1'); a.I('s_add_u32 s38, s38, s39'); a.I('s_lshl_b32 s38, s38, 10')
    a.I('v_add_u32 v11, s38, v2'); a.I(f'v_add_u32 v12, {2*18432}, v11')
    for q in range(5):
        for wv in range(4):
            a.I(f'ds_read_b128 {r4(A3+q*16+wv*4)}, v{11 + wv//2} offset:{(wv % 2)*18432 + q*2048}')
    srd(a, 8, 4, 5, WS.X1F_SZ, WS.X1F); srd(a, 12, 4, 5, WS.X1G_SZ, WS.X1G)
    a.I('v_mov_b32 v13, 0'); a.I('v_mov_b32 v14, 0')
    a.I('s_waitcnt vmcnt(0) lgkmcnt(0)')
    for q in range(5):
        if q == 4:
            a.I('s_cmp_ge_u32 s20, 2'); a.I('s_cbranch_scc1 K3_SKIP5')
        b = A3 + q*16
        for r in range(4):
            a.I(f'v_add_f32 v{b+r}, v{b+r}, v{b+4+r}'); a.I(f'v_add_f32 v{b+8+r}, v{b+8+r}, v{b+12+r}')
        for r in range(4):
            a.I(f'v_add_f32 v{b+r}, v{b+r}, v{b+8+r}')
            x = XRS + 2*q + r//2
            if r % 2 == 0: a.I(f'v_lshlrev_b32 v{b+4+r}, 16, v{x}')
            else: a.I(f'v_and_b32 v{b+4+r}, 0xffff0000, v{x}')
        for r in range(4): a.I(f'v_fma_f32 v{b+r}, v{b+r}, v{GA+4*q+r}, v{b+4+r}')
        d = 100 + 2*q
        a.I(f'v_cvt_pk_bf16_f32 v{d}, v{b}, v{b+1}'); a.I(f'v_cvt_pk_bf16_f32 v{d+1}, v{b+2}, v{b+3}')
        a.vmem(f'buffer_store_dwordx2 {r2(d)}, v10, s[8:11], s{40+q} offen')
        for z in range(2):
            a.I(f'v_lshlrev_b32 v{b+4+2*z}, 16, v{d+z}'); a.I(f'v_and_b32 v{b+5+2*z}, 0xffff0000, v{d+z}')
        for r in range(4):
            a.I(f'v_add_f32 v13, v13, v{b+4+r}'); a.I(f'v_fmac_f32 v14, v{b+4+r}, v{b+4+r}')
            a.I(f'v_mul_f32 v{b+8+r}, v{b+4+r}, v{G2R+4*q+r}')
        a.I(f'v_cvt_pk_bf16_f32 v{b+12}, v{b+8}, v{b+9}'); a.I(f'v_cvt_pk_bf16_f32 v{b+13}, v{b+10}, v{b+11}')
        a.vmem(f'buffer_store_dwordx2 {r2(b+12)}, v10, s[12:15], s{40+q} offen')
    a.label('K3_SKIP5')
    for r in ('v13', 'v14'):
        a.I(f'v_mov_b32 v15, {r}'); a.I(f'v_permlane16_swap_b32 {r}, v15'); a.I(f'v_add_f32 {r}, {r}, v15')
        a.I(f'v_mov_b32 v15, {r}'); a.I(f'v_permlane32_swap_b32 {r}, v15'); a.I(f'v_add_f32 {r}, {r}, v15')
    a.I('v_mov_b32 v112, v13'); a.I('v_mov_b32 v113, v14')
    srd(a, 8, 4, 5, WS.STAT2_SZ, WS.STAT2)
    a.I('s_lshl_b32 s36, s34, 10'); a.I('s_lshl_b32 s37, s22, 4'); a.I('s_add_u32 s36, s36, s37')
    a.I('s_lshr_b32 s37, s20, 1'); a.I('s_lshl_b32 s37, s37, 3'); a.I('s_add_u32 s36, s36, s37')
    a.I('v_and_b32 v15, 15, v1'); a.I('v_lshlrev_b32 v15, 6, v15')
    a.I('v_cmp_gt_u32 vcc, 16, v1'); a.I('s_and_saveexec_b64 s[46:47], vcc')
    a.vmem('buffer_store_dwordx2 v[112:113], v15, s[8:11], s36 offen')
    a.I('s_endpgm')
    a.label('K3_END')
    a.I('s_endpgm')
    return kernel_text('k3_kernel', a, 212+40, accum=212), (256, 256, 4*18432)

AC4 = 16
RING = 64
NR = 18
BF4 = 136
XOFF, HOFF, UTL, STL, CNT = 0, 73728, 147456, 152064, 152576
def k4():
    a = Asm()
    a.I('s_cmp_ge_u32 s2, 256'); a.I('s_cbranch_scc1 K4_END')
    a.I(f's_load_dwordx2 s[4:5], s[0:1], {A_WS}')
    wave_setup(a)
    a.I('s_and_b32 s26, s2, 7'); a.I('s_lshr_b32 s27, s2, 3')
    a.I('s_and_b32 s22, s26, 3'); a.I('s_lshl_b32 s22, s22, 1'); a.I('s_and_b32 s28, s27, 1'); a.I('s_add_u32 s22, s22, s28')
    a.I('s_lshr_b32 s21, s26, 2'); a.I('s_lshl_b32 s21, s21, 4'); a.I('s_lshr_b32 s28, s27, 1'); a.I('s_add_u32 s21, s21, s28')
    a.I('s_and_b32 s28, s20, 3'); a.I('s_lshl_b32 s29, s21, 2'); a.I('s_add_u32 s29, s29, s28'); a.I('s_mul_i32 s29, s29, 18')
    a.I('s_lshr_b32 s38, s20, 2'); a.I('s_add_u32 s29, s29, s38'); a.I('s_lshl_b32 s29, s29, 10')
    a.I('s_lshl_b32 s30, s20, 10')
    a.I('s_mul_i32 s31, s22, 12'); a.I('s_add_u32 s31, s31, s20'); a.I(f's_mul_i32 s31, s31, {54*1024}')
    a.I('v_and_b32 v8, 15, v1'); a.I('v_lshlrev_b32 v9, 6, v8')
    a.I(f'v_mov_b32 v10, {CNT}'); a.I('v_mov_b32 v11, 0'); a.I('ds_write_b32 v10, v11'); a.I('ds_write_b32 v10, v11 offset:4'); a.I('ds_write_b32 v10, v11 offset:8'); a.I('ds_write_b32 v10, v11 offset:12'); a.I('ds_write_b32 v10, v11 offset:16'); a.I('ds_write_b32 v10, v11 offset:20')
    a.I('s_waitcnt lgkmcnt(0)')
    srd(a, 40, 4, 5, WS.STAT2_SZ, WS.STAT2)
    a.I('s_cmp_ge_u32 s20, 4'); a.I('s_cbranch_scc1 K4_NS0')
    a.I('s_lshl_b32 s35, s21, 2'); a.I('s_add_u32 s35, s35, s20'); a.I('s_lshl_b32 s35, s35, 10')
    for q in range(4): a.I(f'buffer_load_dwordx4 {r4(AC4+4*q)}, v9, s[40:43], s35 offen offset:{q*16}')
    a.vm -= 4
    a.label('K4_NS0')
    srd(a, 16, 4, 5, WS.X1G_SZ, WS.X1G); srd(a, 8, 4, 5, WS.W1S_SZ, WS.W1S)
    xt = []
    def xdma(i):
        a.I(f's_add_u32 m0, s30, {i*12*1024}'); a.I(f's_add_u32 s34, s29, {i*3*1024}')
        xt.append(a.vmem('buffer_load_dwordx4 v2, s[16:19], s34 offen lds'))
    wt = {}; wstate = {}
    def wissue(q):
        if q >= 108 or q in wt: return
        sl = q % NR
        off = (q % 54)*1024; srdn = 8 if q < 54 else 12
        key = (srdn, off & ~4095)
        if wstate.get('k') != key:
            a.I(f's_add_u32 s33, s31, {off & ~4095}'); wstate['k'] = key
        wt[q] = a.vmem(f'buffer_load_dwordx4 {r4(RING+4*sl)}, v2, s[{srdn}:{srdn+3}], s33 offen offset:{off & 4095}')
    xdma(0); xdma(1)
    for q in range(6): wissue(q)
    srd(a, 12, 4, 5, WS.W2S_SZ, WS.W2S); srd(a, 24, 4, 5, WS.UT1_SZ, WS.UT1)
    a.I('s_cmp_lt_u32 s20, 4'); a.I('s_cbranch_scc1 K4_PA'); a.I('s_cmp_lt_u32 s20, 8'); a.I('s_cbranch_scc1 K4_PB')
    a.I('s_setprio 1' if 'noprio' not in os.environ.get('K4V', '') else 's_nop 0'); a.I('s_branch K4_PD')
    a.label('K4_PB'); a.I('s_setprio 2' if 'noprio' not in os.environ.get('K4V', '') else 's_nop 0'); a.I('s_branch K4_PD')
    a.label('K4_PA'); a.I('s_setprio 3' if 'noprio' not in os.environ.get('K4V', '') else 's_nop 0')
    a.label('K4_PD')
    tok = {}
    def late_loads():
        for i in range(2, 6): xdma(i)
        a.I('s_mul_i32 s34, s20, 384'); a.I(f's_add_u32 m0, s34, {UTL}')
        a.I('s_cmp_ge_u32 s20, 6'); a.I(f's_cselect_b32 s35, {F*4 - 2304}, 0'); a.I('s_add_u32 s35, s35, s34')
        a.I('s_mul_i32 s36, s22, 2304'); a.I('s_add_u32 s35, s35, s36')
        a.I('s_mov_b64 exec, 0xffffff'); a.vmem('buffer_load_dwordx4 v2, s[24:27], s35 offen lds'); a.I('s_mov_b64 exec, -1')
        tok['ut'] = a.vm
    stamp(a, 0)
    a.I('v_mov_b32 v3, v2'); a.I('v_add_u32 v4, 36864, v2'); a.I(f'v_add_u32 v5, {HOFF}, v2'); a.I(f'v_add_u32 v6, {HOFF+36864}, v2')
    btok = {}
    def bread(kind, ks, st):
        base = (3 if kind == 'x' else 5) + (ks // 9)
        for tb in range(4):
            btok[(kind, ks, tb)] = a.lds(f'ds_read_b128 {r4(BF4+st*16+tb*4)}, v{base} offset:{((ks % 9)*4+tb)*1024}')
    nxt_w = [6]
    st8 = {'q': 0}
    def pump():
        nis = 0
        while nxt_w[0] < min(st8['q'] + NR, 108) and nis < 2:
            wissue(nxt_w[0]); nxt_w[0] += 1; nis += 1
    def gemm(kind, hooks={}):
        for ks in range(18):
            cur = ks % 2
            if ks in hooks:
                lg0 = a.lg
                hooks[ks]()
                a.lg = lg0
            if ks + 1 < 18: bread(kind, ks+1, 1-cur)
            q = st8['q']
            a.wait(vm=wt[q+2], lg=btok[(kind, ks, 3)])
            for fb in range(3):
                for tb in range(4):
                    d = r4(AC4+(fb*4+tb)*4)
                    a.I(f'v_mfma_f32_16x16x32_bf16 {d}, {r4(RING+4*(st8["q"] % NR))}, {r4(BF4+cur*16+tb*4)}, {"0" if ks == 0 else d}')
                st8['q'] += 1
                pump()
    a.wait(vm=xt[1])
    a.I('s_cmp_ge_u32 s20, 4'); a.I('s_cbranch_scc1 K4_NS1')
    b = AC4
    for z in range(1, 8):
        a.I(f'v_add_f32 v{b}, v{b}, v{b+2*z}'); a.I(f'v_add_f32 v{b+1}, v{b+1}, v{b+2*z+1}')
    a.I(f'v_mul_f32 v{b}, {hexf(1.0/576)}, v{b}'); a.I(f'v_mul_f32 v{b+1}, {hexf(1.0/576)}, v{b+1}')
    a.I(f'v_fma_f32 v{b+1}, -v{b}, v{b}, v{b+1}'); a.I(f'v_max_f32 v{b+1}, 0, v{b+1}'); a.I(f'v_add_f32 v{b+1}, {hexf(1e-5)}, v{b+1}')
    a.I(f'v_rsq_f32 v{b+1}, v{b+1}')
    a.I(f'v_mul_f32 v{b+2}, {hexf(LOG2E)}, v{b+1}'); a.I(f'v_mul_f32 v{b+3}, v{b+2}, v{b}')
    a.I('v_lshlrev_b32 v8, 3, v8'); a.I('s_lshl_b32 s35, s20, 7'); a.I(f's_add_u32 s35, s35, {STL}'); a.I('v_add_u32 v8, s35, v8')
    a.I(f'ds_write_b64 v8, {r2(b+2)}')
    a.label('K4_NS1')
    a.I('s_waitcnt lgkmcnt(0)'); a.I('s_barrier')
    stamp(a, 1)
    bread('x', 0, 0)
    def hx():
        for i in range(2, 6): pass
    def gate():
        L = a.newlabel('K4_GATE')
        a.I('s_cmp_eq_u32 s38, 0'); a.I(f's_cbranch_scc1 {L}_D')
        a.I('s_lshl_b32 s36, s38, 2'); a.I(f's_add_u32 s36, s36, {CNT+8}'); a.I('v_mov_b32 v10, s36')
        a.label(L)
        a.I('ds_read_b32 v11, v10'); a.I('s_waitcnt lgkmcnt(0)'); a.I('v_readfirstlane_b32 s36, v11')
        a.I('s_cmp_ge_u32 s36, 4'); a.I(f's_cbranch_scc1 {L}_D'); a.I('s_sleep 4'); a.I(f's_branch {L}')
        a.label(f'{L}_D')
    def sig_g1():
        L = a.newlabel('K4_SIG')
        a.I('s_cmp_ge_u32 s38, 2'); a.I(f's_cbranch_scc1 {L}')
        a.I('s_lshl_b32 s36, s38, 2'); a.I(f's_add_u32 s36, s36, {CNT+12}'); a.I('v_mov_b32 v10, s36'); a.I('v_mov_b32 v11, 1')
        a.I('s_mov_b64 exec, 1'); a.I('ds_add_u32 v10, v11'); a.I('s_mov_b64 exec, -1')
        a.label(L)
    def sig_x():
        a.wait(vm=tok['ut'])
        a.I(f'v_mov_b32 v10, {CNT+20}'); a.I('v_mov_b32 v11, 1')
        a.I('s_mov_b64 exec, 1'); a.I('ds_add_u32 v10, v11'); a.I('s_mov_b64 exec, -1')
    def h1():
        L = a.newlabel('K4_H1')
        a.I('s_cmp_eq_u32 s38, 0'); a.I(f's_cbranch_scc1 {L}')
        lg0 = a.lg
        sig_x(); gate()
        a.label(L)
    def h4():
        L = a.newlabel('K4_H4')
        a.I('s_cmp_lg_u32 s38, 0'); a.I(f's_cbranch_scc1 {L}')
        sig_x()
        a.label(L)
    def h5():
        L = a.newlabel('K4_H5')
        a.I(f'v_mov_b32 v10, {CNT+20}')
        a.label(L)
        a.I('ds_read_b32 v11, v10'); a.I('s_waitcnt lgkmcnt(0)'); a.I('v_readfirstlane_b32 s36, v11')
        a.I('s_cmp_ge_u32 s36, 12'); a.I(f's_cbranch_scc1 {L}_D'); a.I('s_sleep 2'); a.I(f's_branch {L}')
        a.label(f'{L}_D')
    K4V = os.environ.get('K4V', '')
    if 'nogate' in K4V:
        def h1n():
            L = a.newlabel('K4_H1')
            a.I('s_cmp_eq_u32 s38, 0'); a.I(f's_cbranch_scc1 {L}')
            sig_x()
            a.label(L)
        gemm('x', hooks={0: late_loads, 1: h1n, 4: h4, 5: h5})
    else:
        gemm('x', hooks={0: late_loads, 1: h1, 4: h4, 5: h5, int(os.environ.get('K4SIG', '13')): sig_g1})
    stamp(a, 2)
    a.I('s_mul_i32 s35, s20, 3')
    a.I('v_lshrrev_b32 v14, 4, v1'); a.I('v_lshlrev_b32 v14, 4, v14'); a.I('s_mul_i32 s36, s20, 192'); a.I(f's_add_u32 s36, s36, {UTL}'); a.I('v_add_u32 v7, s36, v14')
    a.I('v_and_b32 v14, 15, v1'); a.I('v_lshlrev_b32 v14, 3, v14'); a.I(f'v_add_u32 v14, {STL}, v14')
    T0 = BF4
    for tb in range(4): a.I(f'ds_read_b64 {r2(T0+2*tb)}, v14 offset:{tb*128}')
    for fb in range(3):
        a.I(f'ds_read_b128 {r4(T0+8+fb*8)}, v7 offset:{fb*64}'); a.I(f'ds_read_b128 {r4(T0+12+fb*8)}, v7 offset:{fb*64+2304}')
    for fb in range(3):
        a.I(f's_add_u32 s36, s35, {fb}'); a.I('s_and_b32 s37, s36, 1'); a.I('s_lshr_b32 s36, s36, 1')
        a.I('s_lshl_b32 s36, s36, 12'); a.I('s_lshl_b32 s37, s37, 3'); a.I('s_add_u32 s36, s36, s37'); a.I(f'v_add_u32 v{7+fb}, s36, v5')
    a.I('s_waitcnt lgkmcnt(0)')
    for fb in range(3):
        U_, T_ = T0+8+fb*8, T0+12+fb*8
        for r in range(4): a.I(f'v_mul_f32 v{T_+r}, {hexf(LOG2E)}, v{T_+r}')
        for tb in range(4):
            b = AC4 + (fb*4+tb)*4
            for r in range(4): a.I(f'v_fma_f32 v{10+r}, -v{T0+2*tb+1}, v{U_+r}, v{T_+r}')
            for r in range(4): a.I(f'v_fma_f32 v{b+r}, v{b+r}, v{T0+2*tb}, v{10+r}')
            for r in range(4): a.I(f'v_exp_f32 v{10+r}, -v{b+r}')
            for r in range(4): a.I(f'v_add_f32 v{10+r}, 1.0, v{10+r}')
            for r in range(4): a.I(f'v_rcp_f32 v{10+r}, v{10+r}')
            for r in range(4): a.I(f'v_mul_f32 v{b+r}, v{b+r}, v{10+r}')
            a.I(f'v_cvt_pk_bf16_f32 v14, v{b}, v{b+1}'); a.I(f'v_cvt_pk_bf16_f32 v15, v{b+2}, v{b+3}')
            a.lds(f'ds_write_b64 v{7+fb}, v[14:15] offset:{tb*1024}')
    a.I('s_waitcnt lgkmcnt(0)')
    a.I('s_lshl_b32 s36, s38, 2'); a.I(f's_add_u32 s36, s36, {CNT}'); a.I('v_mov_b32 v10, s36'); a.I('v_mov_b32 v11, 1')
    a.I('s_mov_b64 exec, 1'); a.I('ds_add_u32 v10, v11'); a.I('s_mov_b64 exec, -1')
    a.I('s_setprio 0')
    stamp(a, 3)
    def poll(g):
        def f():
            L = a.newlabel('K4_POLL')
            a.I(f'v_mov_b32 v10, {CNT+4*g}')
            a.label(L)
            a.I('ds_read_b32 v11, v10'); a.I('s_waitcnt lgkmcnt(0)'); a.I('v_readfirstlane_b32 s36, v11')
            a.I('s_cmp_ge_u32 s36, 4'); a.I(f's_cbranch_scc1 {L}_D'); a.I('s_sleep 2'); a.I(f's_branch {L}')
            a.label(f'{L}_D')
        return f
    poll(0)()
    bread('h', 0, 0)
    gemm('h', hooks={5: poll(1), 11: poll(2)})
    stamp(a, 4)
    srd(a, 16, 4, 5, WS.PART_SZ, WS.PART)
    a.I('s_lshl_b32 s28, s22, 6'); a.I('s_lshl_b32 s29, s21, 1'); a.I('s_add_u32 s28, s28, s29'); a.I('s_mul_i32 s28, s28, 36')
    a.I('s_mul_i32 s29, s20, 3'); a.I('s_add_u32 s28, s28, s29'); a.I('s_lshl_b32 s28, s28, 10')
    for nb in range(3):
        for pr in range(2):
            b0, b1 = AC4+(nb*4+2*pr)*4, AC4+(nb*4+2*pr+1)*4
            d = RING + (nb*2+pr)*4
            a.I(f'v_cvt_pk_bf16_f32 v{d}, v{b0}, v{b0+1}'); a.I(f'v_cvt_pk_bf16_f32 v{d+1}, v{b0+2}, v{b0+3}')
            a.I(f'v_cvt_pk_bf16_f32 v{d+2}, v{b1}, v{b1+1}'); a.I(f'v_cvt_pk_bf16_f32 v{d+3}, v{b1+2}, v{b1+3}')
            a.I(f's_add_u32 s29, s28, {(pr*36+nb)*1024}')
            a.vmem(f'buffer_store_dwordx4 {r4(d)}, v2, s[16:19], s29 offen ' + os.environ.get('PARTFLAG', 'sc1'))
    a.label('K4_END')
    a.I('s_endpgm')
    return kernel_text('k4_kernel', a, 168), (256, 768, CNT + 64)

def k5():
    a = Asm()
    NWG = 64*18//4
    a.I(f's_cmp_ge_u32 s2, {NWG}'); a.I('s_cbranch_scc1 K5_END')
    a.I(f's_load_dwordx2 s[4:5], s[0:1], {A_WS}'); a.I(f's_load_dwordx2 s[6:7], s[0:1], {A_OUT}')
    wave_setup(a)
    a.I('s_lshl_b32 s21, s2, 2'); a.I('s_add_u32 s21, s21, s20')
    sdiv(a, 's22', 's21', 18, 1151)
    a.I('s_mul_i32 s23, s22, 18'); a.I('s_sub_u32 s23, s21, s23')
    a.I('s_mul_i32 s28, s22, 36'); a.I('s_lshl_b32 s29, s23, 1'); a.I('s_add_u32 s28, s28, s29'); a.I('s_lshl_b32 s28, s28, 10')
    a.I('v_lshrrev_b32 v3, 4, v1'); a.I('v_lshlrev_b32 v4, 4, v3')
    a.I('s_waitcnt lgkmcnt(0)')
    srd(a, 8, 4, 5, WS.PART_SZ, WS.PART)
    for j in range(8):
        a.vmem(f'buffer_load_dwordx4 {r4(16+8*j)}, v2, s[8:11], s28 offen')
        a.vmem(f'buffer_load_dwordx4 {r4(20+8*j)}, v2, s[8:11], s28 offen offset:1024')
        if j < 7: a.I(f's_add_u32 s28, s28, {64*36*1024}')
    srd(a, 12, 4, 5, WS.X1F_SZ, WS.X1F); srd(a, 16, 4, 5, WS.MOD_SZ, WS.MOD); srd(a, 24, 6, 7, S*D*2)
    a.I('s_mul_i32 s28, s22, 36'); a.I('s_add_u32 s28, s28, s23'); a.I('s_lshl_b32 s28, s28, 10')
    a.vmem('buffer_load_dwordx4 v[80:83], v2, s[12:15], s28 offen')
    a.I(f's_add_u32 s28, s28, {18*1024}')
    a.vmem('buffer_load_dwordx4 v[84:87], v2, s[12:15], s28 offen')
    a.I('s_lshl_b32 s28, s23, 7'); a.I(f's_add_u32 s28, s28, {5*576*4}')
    a.vmem('buffer_load_dwordx4 v[88:91], v4, s[16:19], s28 offen')
    a.vmem('buffer_load_dwordx4 v[92:95], v4, s[16:19], s28 offen offset:64')
    a.I('v_and_b32 v5, 15, v1'); a.I('v_mul_u32_u24 v5, 1152, v5')
    a.I('v_and_b32 v6, 1, v3'); a.I('v_lshl_add_u32 v5, v6, 5, v5'); a.I('v_lshrrev_b32 v6, 1, v3'); a.I('v_lshl_add_u32 v5, v6, 4, v5')
    a.I(f's_mul_i32 s28, s22, {32*1152}'); a.I('s_lshl_b32 s29, s23, 6'); a.I('s_add_u32 s28, s28, s29')
    for r in range(16): a.I(f'v_mov_b32 v{96+r}, 0')
    for j in range(8):
        a.I(f's_waitcnt vmcnt({18 - 2*j - 2 + 0})' if False else f's_waitcnt vmcnt({max(0, 20 - 2*(j+1))})')
        for e in range(2):
            for z in range(4):
                w = 16 + 8*j + 4*e + z
                a.I(f'v_lshlrev_b32 v6, 16, v{w}'); a.I(f'v_and_b32 v7, 0xffff0000, v{w}')
                a.I(f'v_add_f32 v{96+e*8+2*z}, v{96+e*8+2*z}, v6'); a.I(f'v_add_f32 v{97+e*8+2*z}, v{97+e*8+2*z}, v7')
    a.I('s_waitcnt vmcnt(0)')
    LN2 = math.log(2.0)
    for r in range(8): a.I(f'v_mul_f32 v{88+r}, {hexf(LN2)}, v{88+r}')
    for h in range(2):
        for e in range(2):
            for r in range(4):
                x = 80 + 4*h + 2*e + r//2
                if r % 2 == 0: a.I(f'v_lshlrev_b32 v6, 16, v{x}')
                else: a.I(f'v_and_b32 v6, 0xffff0000, v{x}')
                a.I(f'v_fma_f32 v{96+e*8+h*4+r}, v{96+e*8+h*4+r}, v{88+4*e+r}, v6')
        d = 112 + 4*h
        a.I(f'v_cvt_pk_bf16_f32 v{d}, v{96+h*4}, v{97+h*4}'); a.I(f'v_cvt_pk_bf16_f32 v{d+1}, v{98+h*4}, v{99+h*4}')
        a.I(f'v_cvt_pk_bf16_f32 v{d+2}, v{104+h*4}, v{105+h*4}'); a.I(f'v_cvt_pk_bf16_f32 v{d+3}, v{106+h*4}, v{107+h*4}')
        a.I(f'v_permlane16_swap_b32 v{d}, v{d+2}'); a.I(f'v_permlane16_swap_b32 v{d+1}, v{d+3}')
        a.vmem(f'buffer_store_dwordx4 {r4(d)}, v5, s[24:27], s28 offen')
        if h == 0: a.I(f's_add_u32 s28, s28, {16*1152}')
    a.label('K5_END')
    a.I('s_endpgm')
    return kernel_text('k5_kernel', a, 120), (NWG, 256, 0)
```

```python
from common import *
import os

def wave_setup(a):
    a.I('v_lshrrev_b32 v1, 6, v0')
    a.I('v_readfirstlane_b32 s20, v1')
    a.I('v_and_b32 v1, 63, v0')
    a.I('v_lshlrev_b32 v2, 4, v1')

def apply_gs(a, raw, dst, T, G, Sx, emit=None):
    L = []
    for q in range(4):
        L.append(f'v_lshlrev_b32 v{T+2*q}, 16, {raw(q)}')
        L.append(f'v_and_b32 v{T+2*q+1}, 0xffff0000, {raw(q)}')
    for q in range(8):
        L.append(f'v_fma_f32 v{T+q}, v{T+q}, v{G+q}, v{Sx+q}')
    for q in range(4):
        L.append(f'v_cvt_pk_bf16_f32 {dst(q)}, v{T+2*q}, v{T+2*q+1}')
    return L

ACC = 16
WF, NWF = 88, 12
XB = 136
XR, XRING, XD = 16, 8, 7
GV, TT, XO, MT = 80, 112, 120, 136
NSLOT, STAGE = 5, 18432
XOFF1 = NSLOT*STAGE
GTOFF = XOFF1 + 6*8192
K1_LDS = GTOFF + 4608
def acc(nb, tb): return ACC + (nb*2 + tb)*4

def k1_consumer(a, swap):
    nks = 18
    ltok, xtok = {}, {}
    def wreg(z): return WF + (z % NWF)*4
    def wread(z):
        ks, nb = divmod(z, 9)
        st = ks // 2; slot = st % NSLOT
        base = 6 + slot // 3
        off = (slot % 3)*STAGE + ((ks & 1)*9 + nb)*1024
        ltok[z] = a.lds(f'ds_read_b128 {r4(wreg(z))}, v{base} offset:{off}')
    def xread(ks):
        for tb in range(2):
            xtok[ks] = a.lds(f'ds_read_b128 {r4(XB+(ks & 1)*8+tb*4)}, v{9+tb} offset:{(ks % 6)*8192}')
    a.I('s_barrier')
    stamp(a, 1)
    xread(0)
    for z in range(9): wread(z)
    nz = 9
    for ks in range(nks):
        if ks == 6: stamp(a, 4)
        if ks & 1 and ks + 1 < nks: a.I('s_barrier')
        if ks + 1 < nks: xread(ks + 1)
        xb = XB + (ks & 1)*8
        for nb in range(9):
            z = ks*9 + nb
            if nb == 0: a.wait(lg=max(ltok[z+2], xtok[ks]))
            elif nb % 3 == 0: a.wait(lg=ltok[z+2])
            wf = wreg(z)
            for tb in range(2):
                c = '0' if ks == 0 else r4(acc(nb, tb))
                if swap: a.I(f'v_mfma_f32_16x16x32_bf16 {r4(acc(nb,tb))}, {r4(xb+tb*4)}, {r4(wf)}, {c}')
                else:    a.I(f'v_mfma_f32_16x16x32_bf16 {r4(acc(nb,tb))}, {r4(wf)}, {r4(xb+tb*4)}, {c}')
            if nz < nks*9: wread(nz); nz += 1
    stamp(a, 2)
    a.I('s_barrier')
    stamp(a, 3)

def k1_loader(a):
    nst = 9
    wtok = {}
    def W(st):
        slot = st % NSLOT
        a.I(f's_add_u32 m0, s23, {slot*STAGE}'); a.I(f's_mov_b32 s24, {st*STAGE}')
        a.I('s_mov_b32 exec_hi, 0'); a.vmem('buffer_load_dwordx4 v3, s[8:11], s24 offen lds'); a.I('s_mov_b32 exec_hi, -1')
        for o in (512, 1536, 2560, 3584): a.vmem(f'buffer_load_dwordx4 v3, s[8:11], s24 offen offset:{o} lds')
        wtok[st] = a.vm
    W(0); W(1); W(2)
    a.I('s_barrier')
    a.wait(vm=wtok[0]); a.I('s_barrier')
    for s in range(1, nst):
        if s + 2 < nst: W(s+2)
        a.wait(vm=wtok[s]); a.I('s_barrier')
    a.I('s_barrier')
    a.I('s_endpgm')

def k1_producer(a):
    nst = 9
    XR4, NRING = 16, 4
    xtok, gtok = {}, {}
    def xload_items(s):
        sl = s % NRING
        L = []
        for t in range(4):
            def f(t=t):
                a.I(f's_mov_b32 s25, {s*2048 + t*KS*1024}')
                a.vmem(f'buffer_load_dwordx4 {r4(XR4+sl*16+4*t)}, v4, s[12:15], s25 offen')
                if t == 3: xtok[s] = a.vm
            L.append(f)
        return L
    def gread(s):
        for q in range(4): a.lds(f'ds_read_b128 {r4(GV+(s & 1)*16+4*q)}, v8 offset:{s*512+q*16}')
        gtok[s] = a.lg
    def produce(s):
        vm_items = xload_items(s + 3) if s + 3 < nst else []
        sl = s % NRING; G = GV + (s & 1)*16
        a.wait(vm=xtok[s], lg=gtok[s])
        for t in range(4):
            raw = XR4+sl*16+4*t; dst = XO+(t & 1)*4
            for q in range(4):
                a.I(f'v_lshlrev_b32 v{TT+2*q}, 16, v{raw+q}'); a.I(f'v_and_b32 v{TT+2*q+1}, 0xffff0000, v{raw+q}')
            for q in range(8): a.I(f'v_fma_f32 v{TT+q}, v{TT+q}, v{G+q}, v{G+8+q}')
            for q in range(4): a.I(f'v_cvt_pk_bf16_f32 v{dst+q}, v{TT+2*q}, v{TT+2*q+1}')
            a.lds(f'ds_write_b128 v9, {r4(dst)} offset:{((2*s) % 6)*8192 + t*1024}')
            if vm_items: vm_items.pop(0)()
        if s + 2 < nst: gread(s + 2)
    srd(a, 16, 4, 5, WS.MODP_SZ, WS.MODP)
    a.I('v_lshlrev_b32 v11, 2, v10')
    for i in range(3):
        for z, idx in enumerate((0, 3456, 576, 3456+576)):
            a.I(f's_mov_b32 s26, {(idx+256*i)*4}'); a.vmem(f'buffer_load_dword v{MT+4*i+z}, v11, s[16:19], s26 offen')
    mtok = a.vm
    for s in range(3):
        for f in xload_items(s): f()
    a.wait(vm=mtok)
    for i in range(3):
        b = MT + 4*i
        a.I(f'v_add_f32 v{b}, v{b}, v{b+1}'); bf16_round_f32(a, f'v{b}', f'v{b}')
        a.I(f'v_add_f32 v{b+2}, v{b+2}, v{b+3}'); bf16_round_f32(a, f'v{b+2}', f'v{b+2}')
        a.I(f'v_add_f32 v{b+2}, 1.0, v{b+2}'); bf16_round_f32(a, f'v{b+2}', f'v{b+2}')
        a.I(f'v_mul_f32 v{b}, s31, v{b}'); a.I(f'v_mul_f32 v{b+2}, s31, v{b+2}')
        a.I(f'v_add_u32 v12, {256*i}, v10')
        a.I('v_lshrrev_b32 v13, 5, v12'); a.I('v_lshlrev_b32 v13, 2, v13'); a.I('v_bfe_u32 v14, v12, 2, 2'); a.I('v_add_u32 v13, v13, v14')
        a.I('v_bfe_u32 v14, v12, 4, 1'); a.I('v_lshlrev_b32 v14, 2, v14'); a.I('v_and_b32 v15, 3, v12'); a.I('v_add_u32 v14, v14, v15')
        a.I('v_lshlrev_b32 v15, 6, v13'); a.I('v_lshl_add_u32 v15, v14, 2, v15'); a.I(f'v_add_u32 v15, {GTOFF}, v15')
        if i == 2:
            a.I('v_cmp_gt_u32 vcc, 64, v10'); a.I('s_and_saveexec_b64 s[36:37], vcc')
        a.lds(f'ds_write_b32 v15, v{b+2}'); a.lds(f'ds_write_b32 v15, v{b} offset:32')
        if i == 2: a.I('s_mov_b64 exec, s[36:37]')
    a.I('s_waitcnt lgkmcnt(0)'); a.I('s_barrier')
    gread(0); gread(1)
    for s in range(nst):
        produce(s)
        a.wait(lg=a.lg - (4 if s + 2 < nst else 0)); a.I('s_barrier')
    a.I('s_barrier')
    a.I('s_endpgm')

def k1():
    import k0 as K0
    a = Asm()
    a.I(f's_cmp_ge_u32 s2, {192+K0.NPREP}'); a.I('s_cbranch_scc1 K1_END')
    a.I(f's_load_dwordx2 s[4:5], s[0:1], {A_WS}')
    a.I('s_cmp_ge_u32 s2, 192'); a.I('s_cbranch_scc1 K1_PREP')
    wave_setup(a)
    a.I('s_and_b32 s33, s20, 3')
    a.I('s_mul_i32 s23, s33, 4608'); a.I('v_add_u32 v3, s23, v2')
    a.I('v_mov_b32 v6, v2'); a.I(f'v_add_u32 v7, {3*STAGE}, v2')
    a.I('v_lshrrev_b32 v8, 4, v1'); a.I('v_lshlrev_b32 v8, 6, v8'); a.I(f'v_add_u32 v8, {GTOFF}, v8')
    a.I('s_lshl_b32 s26, s33, 11'); a.I(f's_add_u32 s26, s26, {XOFF1}'); a.I('v_add_u32 v9, s26, v2'); a.I('v_add_u32 v10, 1024, v9')
    a.I('s_and_b32 s26, s2, 7'); a.I('s_lshr_b32 s27, s2, 3')
    a.I('s_lshr_b32 s21, s26, 1'); a.I('s_lshl_b32 s21, s21, 2'); a.I('s_and_b32 s28, s27, 3'); a.I('s_add_u32 s21, s21, s28')
    a.I('s_and_b32 s22, s26, 1'); a.I('s_mul_i32 s22, s22, 6'); a.I('s_lshr_b32 s28, s27, 2'); a.I('s_add_u32 s22, s22, s28')
    a.I('s_lshl_b32 s26, s21, 3'); a.I('s_lshl_b32 s27, s33, 1'); a.I('s_add_u32 s29, s26, s27')
    a.I('s_lshl_b32 s34, s21, 2'); a.I('s_add_u32 s34, s34, s33')
    a.I('s_cmp_lt_u32 s20, 4'); a.I('s_cbranch_scc1 K1_CONS')
    a.I('s_waitcnt lgkmcnt(0)')
    a.I('s_cmp_lt_u32 s20, 8'); a.I('s_cbranch_scc1 K1_PROD')
    a.I(f's_mul_i32 s26, s22, {18*9*1024}')
    a.I('s_add_u32 s8, s4, s26'); a.I('s_addc_u32 s9, s5, 0')
    a.I(f's_add_u32 s8, s8, {WS.WQKVF}'); a.I('s_addc_u32 s9, s9, 0')
    a.I(f's_mov_b32 s10, {18*9*1024}'); a.I('s_mov_b32 s11, 0x00020000')
    k1_loader(a)
    a.label('K1_PROD')
    srd(a, 12, 4, 5, WS.NF_SZ, WS.NF)
    a.I('s_and_b32 s36, s20, 1'); a.I('s_bfe_u32 s37, s20, 0x10001')
    a.I('s_lshl_b32 s26, s21, 3'); a.I('s_lshl_b32 s27, s37, 2'); a.I('s_add_u32 s26, s26, s27')
    a.I(f's_mul_i32 s27, s26, {KS*1024}'); a.I('s_lshl_b32 s28, s36, 10'); a.I('s_add_u32 s27, s27, s28'); a.I('v_add_u32 v4, s27, v2')
    a.I('s_lshl_b32 s28, s36, 8'); a.I('v_add_u32 v8, s28, v8')
    a.I('s_lshl_b32 s27, s37, 12'); a.I('s_lshl_b32 s28, s36, 13'); a.I('s_add_u32 s27, s27, s28'); a.I(f's_add_u32 s27, s27, {XOFF1}'); a.I('v_add_u32 v9, s27, v2')
    a.I('s_mov_b32 s31, 1.0'); a.I('s_cmp_lt_u32 s22, 4'); a.I(f's_cselect_b32 s31, {hexf(QSCALE)}, s31')
    a.I('v_subrev_u32 v10, 256, v0')
    k1_producer(a)
    a.label('K1_CONS')
    a.I('s_waitcnt lgkmcnt(0)')
    a.I('s_barrier')
    a.I('s_cmp_ge_u32 s22, 8'); a.I('s_cbranch_scc1 K1_V')
    k1_consumer(a, False)
    a.I('v_and_b32 v10, 15, v1'); a.I('v_lshrrev_b32 v13, 4, v1')
    a.I('s_mov_b32 s26, s34')
    a.I('s_and_b32 s30, s22, 3'); a.I('s_lshl_b32 s30, s30, 3')
    ST = 88
    def qk_store(img_off, img_sz, tilebytes, hi_off):
        srd(a, 16, 4, 5, img_sz, img_off)
        a.I('v_lshrrev_b32 v14, 1, v13'); a.I('v_add_u32 v14, s30, v14'); a.I('v_lshlrev_b32 v14, 6, v14'); a.I('v_add_u32 v14, s26, v14')
        a.I(f's_movk_i32 s31, {tilebytes}'); a.I('v_mul_lo_u32 v14, v14, s31')
        a.I('v_and_b32 v15, 1, v13'); a.I('v_lshl_add_u32 v14, v15, 9, v14'); a.I('v_lshl_add_u32 v14, v10, 4, v14')
        for tb in range(2):
            for p in range(4):
                d = ST + (tb*4+p)*4
                b0, b1 = acc(2*p, tb), acc(2*p+1, tb)
                a.I(f'v_cvt_pk_bf16_f32 v{d}, v{b0}, v{b0+1}'); a.I(f'v_cvt_pk_bf16_f32 v{d+1}, v{b0+2}, v{b0+3}')
                a.I(f'v_cvt_pk_bf16_f32 v{d+2}, v{b1}, v{b1+1}'); a.I(f'v_cvt_pk_bf16_f32 v{d+3}, v{b1+2}, v{b1+3}')
                a.I(f's_mov_b32 s31, {p*2*64*tilebytes}')
                a.vmem(f'buffer_store_dwordx4 {r4(d)}, v14, s[16:19], s31 offen offset:{tb*256} ' + os.environ.get('K1FLAG', 'sc1'))
        a.I('v_lshlrev_b32 v14, 1, v13'); a.I('v_add_u32 v14, s30, v14'); a.I('v_lshlrev_b32 v14, 6, v14'); a.I('v_add_u32 v14, s26, v14')
        a.I(f's_movk_i32 s31, {tilebytes}'); a.I('v_mul_lo_u32 v14, v14, s31'); a.I('v_lshl_add_u32 v14, v10, 2, v14')
        a.I(f's_mov_b32 s31, {64*tilebytes}')
        for tb in range(2):
            b = acc(8, tb); d = ST + 32 + tb*2
            a.I(f'v_cvt_pk_bf16_f32 v{d}, v{b}, v{b+1}'); a.I(f'v_cvt_pk_bf16_f32 v{d+1}, v{b+2}, v{b+3}')
            a.vmem(f'buffer_store_dword v{d}, v14, s[16:19], 0 offen offset:{hi_off+tb*64}')
            a.vmem(f'buffer_store_dword v{d+1}, v14, s[16:19], s31 offen offset:{hi_off+tb*64}')
    a.I('s_cmp_ge_u32 s22, 4'); a.I('s_cbranch_scc1 K1_K')
    qk_store(WS.QIMG, WS.QIMG_SZ, QT_BYTES, 1024)
    a.I('s_endpgm')
    a.label('K1_K')
    qk_store(WS.KVIMG, WS.KVIMG_SZ, KV_TILE, 1024)
    N0 = 88
    for p in range(4):
        for tb in range(2):
            b0, b1 = acc(2*p, tb), acc(2*p+1, tb)
            d = N0 + p*2 + tb
            a.I(f'v_mul_f32 v{d}, v{b0}, v{b0}')
            for v in [b0+1, b0+2, b0+3, b1, b1+1, b1+2, b1+3]: a.I(f'v_fmac_f32 v{d}, v{v}, v{v}')
    for p in range(4):
        for tb in range(2):
            d = N0 + p*2 + tb
            a.I(f'v_mov_b32 v9, v{d}'); a.I(f'v_permlane16_swap_b32 v{d}, v9'); a.I(f'v_add_f32 v{d}, v{d}, v9')
        a.I(f'v_max_f32 v{N0+16+p}, v{N0+p*2}, v{N0+p*2+1}')
    for e in range(2):
        for tb in range(2):
            b = acc(8, tb); d = N0 + 24 + e*2 + tb
            a.I(f'v_mul_f32 v{d}, v{b+2*e}, v{b+2*e}'); a.I(f'v_fmac_f32 v{d}, v{b+2*e+1}, v{b+2*e+1}')
        a.I(f'v_max_f32 v{N0+20+e}, v{N0+24+e*2}, v{N0+25+e*2}')
    for q in range(6):
        d = N0 + 16 + q
        for dpp in ('quad_perm:[1,0,3,2]', 'quad_perm:[2,3,0,1]', 'row_half_mirror', 'row_mirror'):
            a.I(f'v_max_f32_dpp v{d}, v{d}, v{d} {dpp} row_mask:0xf bank_mask:0xf')
    a.I('s_lshl_b32 s28, s20, 6')
    a.I('v_lshrrev_b32 v9, 5, v1'); a.I('v_lshlrev_b32 v9, 3, v9'); a.I('v_add_u32 v9, s28, v9')
    a.I('v_lshlrev_b32 v11, 4, v13'); a.I('v_add_u32 v11, s28, v11')
    for p in range(4): a.I(f'ds_write_b32 v9, v{N0+16+p} offset:{p*16}')
    for e in range(2): a.I(f'ds_write_b32 v11, v{N0+20+e} offset:{e*8+4}')
    a.I('v_and_b32 v12, 7, v1'); a.I('v_lshlrev_b32 v12, 3, v12'); a.I('v_add_u32 v12, s28, v12')
    a.I(f'ds_read_b64 {r2(N0+30)}, v12'); a.I('s_waitcnt lgkmcnt(0)')
    a.I(f'v_add_f32 v9, v{N0+30}, v{N0+31}')
    srd(a, 16, 4, 5, WS.KMAX_SZ, WS.KMAX)
    a.I('v_and_b32 v14, 7, v1'); a.I('v_add_u32 v14, s30, v14'); a.I('v_lshlrev_b32 v14, 6, v14'); a.I('v_add_u32 v14, s26, v14'); a.I('v_lshlrev_b32 v14, 2, v14')
    a.I('s_mov_b64 exec, 0xff')
    a.I('buffer_store_dword v9, v14, s[16:19], 0 offen')
    a.I('s_endpgm')
    a.label('K1_V')
    a.I('v_bfe_u32 v11, v1, 3, 1'); a.I('v_lshlrev_b32 v11, 10, v11')
    a.I('v_and_b32 v12, 0x30, v1'); a.I('v_and_b32 v13, 7, v1'); a.I('v_add_u32 v12, v12, v13'); a.I('v_lshl_add_u32 v11, v12, 4, v11')
    a.I('s_lshl_b32 s26, s33, 11'); a.I(f's_add_u32 s26, s26, {XOFF1}'); a.I('v_add_u32 v9, s26, v11'); a.I('v_add_u32 v10, 128, v9')
    k1_consumer(a, True)
    a.I('v_and_b32 v10, 15, v1'); a.I('v_lshrrev_b32 v13, 4, v1')
    a.I('s_mov_b32 s26, s34')
    srd(a, 16, 4, 5, WS.KVIMG_SZ, WS.KVIMG)
    a.I('s_and_b32 s30, s22, 3'); a.I('s_lshl_b32 s30, s30, 3')
    a.I('s_lshl_b32 s31, s30, 6'); a.I('s_add_u32 s31, s31, s26'); a.I(f's_mul_i32 s31, s31, {KV_TILE}')
    a.I(f'v_mul_u32_u24 v14, {DV}, v13'); a.I('v_add_u32 v15, v14, v10'); a.I('v_lshlrev_b32 v15, 4, v15')
    for nb in range(9):
        d = 88 + (nb % 6)*4
        b0, b1 = acc(nb, 0), acc(nb, 1)
        a.I(f'v_cvt_pk_bf16_f32 v{d}, v{b0}, v{b0+1}'); a.I(f'v_cvt_pk_bf16_f32 v{d+1}, v{b0+2}, v{b0+3}')
        a.I(f'v_cvt_pk_bf16_f32 v{d+2}, v{b1}, v{b1+1}'); a.I(f'v_cvt_pk_bf16_f32 v{d+3}, v{b1+2}, v{b1+3}')
        if nb < 8:
            a.I(f's_add_u32 s32, s31, {nb*64*KV_TILE}')
            a.vmem(f'buffer_store_dwordx4 {r4(d)}, v15, s[16:19], s32 offen offset:{VT_OFF} ' + os.environ.get('K1FLAG', 'sc1'))
        else:
            a.I('v_lshrrev_b32 v9, 1, v10'); a.I(f's_mov_b32 s32, {64*KV_TILE}'); a.I('v_mul_lo_u32 v9, v9, s32')
            a.I('v_and_b32 v11, 1, v10'); a.I('v_add_u32 v11, v11, v14'); a.I('v_add_u32 v11, 16, v11'); a.I('v_lshl_add_u32 v9, v11, 4, v9')
            a.vmem(f'buffer_store_dwordx4 {r4(d)}, v9, s[16:19], s31 offen offset:{VT_OFF}')
    a.I('s_endpgm')
    a.label('K1_PREP')
    a.I(f's_load_dwordx2 s[8:9], s[0:1], {A_W1}')
    a.I('s_sub_u32 s3, s2, 192')
    K0.prep_body(a, 's3', 'K1P')
    a.label('K1_END')
    a.I('s_endpgm')
    return kernel_text('k1_kernel', a, 160), (192+K0.NPREP, 768, K1_LDS)

def k3():
    a = Asm()
    A3 = 16
    def ac(nb, tb): return A3 + (nb*2+tb)*4
    a.I('s_cmp_ge_u32 s2, 256'); a.I('s_cbranch_scc1 K3_END')
    a.I(f's_load_dwordx2 s[4:5], s[0:1], {A_WS}')
    wave_setup(a)
    a.I('s_and_b32 s21, s2, 7'); a.I('s_lshl_b32 s21, s21, 3'); a.I('s_bfe_u32 s26, s2, 0x30003'); a.I('s_add_u32 s21, s21, s26')
    a.I('s_lshr_b32 s22, s2, 6')
    a.I('s_waitcnt lgkmcnt(0)')
    a.I(f's_mul_i32 s26, s22, {18*9*1024}')
    a.I('s_add_u32 s8, s4, s26'); a.I('s_addc_u32 s9, s5, 0')
    a.I(f's_add_u32 s8, s8, {WS.WOF}'); a.I('s_addc_u32 s9, s9, 0')
    a.I(f's_mov_b32 s10, {18*9*1024}'); a.I('s_mov_b32 s11, 0x00020000')
    srd(a, 12, 4, 5, WS.OF_SZ, WS.OF)
    a.I(f's_mul_i32 s27, s21, {2*KS*1024}')
    a.I('s_lshl_b32 s28, s20, 10'); a.I('s_add_u32 s27, s27, s28')
    a.I('s_mul_i32 s29, s20, 9216')
    toks = {}
    WFR = 88
    GA, G2R, XRS = 160, 180, 200
    def kload(i):
        a.I(f's_add_u32 s30, s27, {i*4096}')
        a.vmem(f'buffer_load_dwordx4 {r4(8*i,"a")}, v2, s[12:15], s30 offen')
        a.I(f's_add_u32 s30, s30, {KS*1024}')
        a.vmem(f'buffer_load_dwordx4 {r4(8*i+4,"a")}, v2, s[12:15], s30 offen')
        for nb in range(9):
            if nb % 4 == 0: a.I(f's_add_u32 s30, s29, {i*36864 + nb*1024}')
            a.vmem(f'buffer_load_dwordx4 {r4(WFR+36*(i % 3)+4*nb)}, v2, s[8:11], s30 offen offset:{(nb % 4)*1024}')
            toks[(i, nb)] = a.vm
    for i in range(3): kload(i)
    stamp(a, 0)
    for i in range(5):
        for nb in range(9):
            if nb % 3 == 0: a.wait(vm=toks[(i, nb+2)])
            for tb in range(2):
                c = '0' if i == 0 else r4(ac(nb, tb))
                a.I(f'v_mfma_f32_16x16x32_bf16 {r4(ac(nb,tb))}, {r4(WFR+36*(i % 3)+4*nb)}, {r4(8*i+4*tb,"a")}, {c}')
        if i == 0: kload(3)
        if i == 1: kload(4)
        if i == 2:
            srd(a, 16, 4, 5, WS.MOD_SZ, WS.MOD); srd(a, 24, 4, 5, WS.XF_SZ, WS.XF); srd(a, 48, 4, 5, WS.G2_SZ, WS.G2)
            a.I('s_lshr_b32 s31, s20, 1'); a.I('s_mul_i32 s31, s31, 5')
            a.I('s_mul_i32 s32, s22, 9'); a.I('s_add_u32 s32, s32, s31')
            a.I('v_lshrrev_b32 v9, 4, v1'); a.I('v_lshlrev_b32 v9, 4, v9')
            a.I('s_lshl_b32 s52, s32, 6'); a.I(f's_add_u32 s33, s52, {2*576*4}')
            for q in range(5): a.vmem(f'buffer_load_dwordx4 {r4(GA+4*q)}, v9, s[16:19], s33 offen offset:{q*64}')
            for q in range(5): a.vmem(f'buffer_load_dwordx4 {r4(G2R+4*q)}, v9, s[48:51], s52 offen offset:{q*64}')
            a.I('s_and_b32 s34, s20, 1'); a.I('s_lshl_b32 s35, s21, 1'); a.I('s_add_u32 s34, s34, s35')
            a.I(f's_mul_i32 s35, s34, {KS*1024}'); a.I('v_add_u32 v10, s35, v2')
            for q in range(5):
                a.I(f's_add_u32 s36, s32, {q}'); a.I('s_and_b32 s37, s36, 1'); a.I('s_lshr_b32 s36, s36, 1'); a.I('s_lshl_b32 s36, s36, 10')
                a.I('s_lshl_b32 s37, s37, 3'); a.I(f's_add_u32 s{40+q}, s36, s37')
                a.vmem(f'buffer_load_dwordx2 {r2(XRS+2*q)}, v10, s[24:27], s{40+q} offen')
    stamp(a, 2)
    a.I('s_mul_i32 s38, s20, 18432'); a.I('v_add_u32 v11, s38, v2')
    for nb in range(9):
        for tb in range(2): a.I(f'ds_write_b128 v11, {r4(ac(nb,tb))} offset:{(nb*2+tb)*1024}')
    a.I('s_waitcnt lgkmcnt(0)'); a.I('s_barrier')
    stamp(a, 3)
    a.I('s_lshl_b32 s38, s31, 1'); a.I('s_and_b32 s39, s20, 1'); a.I('s_add_u32 s38, s38, s39'); a.I('s_lshl_b32 s38, s38, 10')
    a.I('v_add_u32 v11, s38, v2'); a.I(f'v_add_u32 v12, {2*18432}, v11')
    for q in range(5):
        for wv in range(4):
            a.I(f'ds_read_b128 {r4(A3+q*16+wv*4)}, v{11 + wv//2} offset:{(wv % 2)*18432 + q*2048}')
    srd(a, 8, 4, 5, WS.X1F_SZ, WS.X1F); srd(a, 12, 4, 5, WS.X1G_SZ, WS.X1G)
    a.I('v_mov_b32 v13, 0'); a.I('v_mov_b32 v14, 0')
    a.I('s_waitcnt vmcnt(0) lgkmcnt(0)')
    for q in range(5):
        if q == 4:
            a.I('s_cmp_ge_u32 s20, 2'); a.I('s_cbranch_scc1 K3_SKIP5')
        b = A3 + q*16
        for r in range(4):
            a.I(f'v_add_f32 v{b+r}, v{b+r}, v{b+4+r}'); a.I(f'v_add_f32 v{b+8+r}, v{b+8+r}, v{b+12+r}')
        for r in range(4):
            a.I(f'v_add_f32 v{b+r}, v{b+r}, v{b+8+r}')
            x = XRS + 2*q + r//2
            if r % 2 == 0: a.I(f'v_lshlrev_b32 v{b+4+r}, 16, v{x}')
            else: a.I(f'v_and_b32 v{b+4+r}, 0xffff0000, v{x}')
        for r in range(4): a.I(f'v_fma_f32 v{b+r}, v{b+r}, v{GA+4*q+r}, v{b+4+r}')
        d = 100 + 2*q
        a.I(f'v_cvt_pk_bf16_f32 v{d}, v{b}, v{b+1}'); a.I(f'v_cvt_pk_bf16_f32 v{d+1}, v{b+2}, v{b+3}')
        a.vmem(f'buffer_store_dwordx2 {r2(d)}, v10, s[8:11], s{40+q} offen')
        for z in range(2):
            a.I(f'v_lshlrev_b32 v{b+4+2*z}, 16, v{d+z}'); a.I(f'v_and_b32 v{b+5+2*z}, 0xffff0000, v{d+z}')
        for r in range(4):
            a.I(f'v_add_f32 v13, v13, v{b+4+r}'); a.I(f'v_fmac_f32 v14, v{b+4+r}, v{b+4+r}')
            a.I(f'v_mul_f32 v{b+8+r}, v{b+4+r}, v{G2R+4*q+r}')
        a.I(f'v_cvt_pk_bf16_f32 v{b+12}, v{b+8}, v{b+9}'); a.I(f'v_cvt_pk_bf16_f32 v{b+13}, v{b+10}, v{b+11}')
        a.vmem(f'buffer_store_dwordx2 {r2(b+12)}, v10, s[12:15], s{40+q} offen')
    a.label('K3_SKIP5')
    for r in ('v13', 'v14'):
        a.I(f'v_mov_b32 v15, {r}'); a.I(f'v_permlane16_swap_b32 {r}, v15'); a.I(f'v_add_f32 {r}, {r}, v15')
        a.I(f'v_mov_b32 v15, {r}'); a.I(f'v_permlane32_swap_b32 {r}, v15'); a.I(f'v_add_f32 {r}, {r}, v15')
    a.I('v_mov_b32 v112, v13'); a.I('v_mov_b32 v113, v14')
    srd(a, 8, 4, 5, WS.STAT2_SZ, WS.STAT2)
    a.I('s_lshl_b32 s36, s34, 10'); a.I('s_lshl_b32 s37, s22, 4'); a.I('s_add_u32 s36, s36, s37')
    a.I('s_lshr_b32 s37, s20, 1'); a.I('s_lshl_b32 s37, s37, 3'); a.I('s_add_u32 s36, s36, s37')
    a.I('v_and_b32 v15, 15, v1'); a.I('v_lshlrev_b32 v15, 6, v15')
    a.I('v_cmp_gt_u32 vcc, 16, v1'); a.I('s_and_saveexec_b64 s[46:47], vcc')
    a.vmem('buffer_store_dwordx2 v[112:113], v15, s[8:11], s36 offen')
    a.I('s_endpgm')
    a.label('K3_END')
    a.I('s_endpgm')
    return kernel_text('k3_kernel', a, 212+40, accum=212), (256, 256, 4*18432)

AC4 = 16
RING = 64
NR = 18
BF4 = 136
XOFF, HOFF, UTL, STL, CNT = 0, 73728, 147456, 152064, 152576
def k4():
    a = Asm()
    a.I('s_cmp_ge_u32 s2, 256'); a.I('s_cbranch_scc1 K4_END')
    a.I(f's_load_dwordx2 s[4:5], s[0:1], {A_WS}')
    wave_setup(a)
    a.I('s_and_b32 s26, s2, 7'); a.I('s_lshr_b32 s27, s2, 3')
    a.I('s_and_b32 s22, s26, 3'); a.I('s_lshl_b32 s22, s22, 1'); a.I('s_and_b32 s28, s27, 1'); a.I('s_add_u32 s22, s22, s28')
    a.I('s_lshr_b32 s21, s26, 2'); a.I('s_lshl_b32 s21, s21, 4'); a.I('s_lshr_b32 s28, s27, 1'); a.I('s_add_u32 s21, s21, s28')
    a.I('s_and_b32 s28, s20, 3'); a.I('s_lshl_b32 s29, s21, 2'); a.I('s_add_u32 s29, s29, s28'); a.I('s_mul_i32 s29, s29, 18')
    a.I('s_lshr_b32 s38, s20, 2'); a.I('s_add_u32 s29, s29, s38'); a.I('s_lshl_b32 s29, s29, 10')
    a.I('s_lshl_b32 s30, s20, 10')
    a.I('s_mul_i32 s31, s22, 12'); a.I('s_add_u32 s31, s31, s20'); a.I(f's_mul_i32 s31, s31, {54*1024}')
    a.I('v_and_b32 v8, 15, v1'); a.I('v_lshlrev_b32 v9, 6, v8')
    a.I(f'v_mov_b32 v10, {CNT}'); a.I('v_mov_b32 v11, 0'); a.I('ds_write_b32 v10, v11'); a.I('ds_write_b32 v10, v11 offset:4'); a.I('ds_write_b32 v10, v11 offset:8'); a.I('ds_write_b32 v10, v11 offset:12'); a.I('ds_write_b32 v10, v11 offset:16'); a.I('ds_write_b32 v10, v11 offset:20')
    a.I('s_waitcnt lgkmcnt(0)')
    srd(a, 40, 4, 5, WS.STAT2_SZ, WS.STAT2)
    a.I('s_cmp_ge_u32 s20, 4'); a.I('s_cbranch_scc1 K4_NS0')
    a.I('s_lshl_b32 s35, s21, 2'); a.I('s_add_u32 s35, s35, s20'); a.I('s_lshl_b32 s35, s35, 10')
    for q in range(4): a.I(f'buffer_load_dwordx4 {r4(AC4+4*q)}, v9, s[40:43], s35 offen offset:{q*16}')
    a.vm -= 4
    a.label('K4_NS0')
    srd(a, 16, 4, 5, WS.X1G_SZ, WS.X1G); srd(a, 8, 4, 5, WS.W1S_SZ, WS.W1S)
    xt = []
    def xdma(i):
        a.I(f's_add_u32 m0, s30, {i*12*1024}'); a.I(f's_add_u32 s34, s29, {i*3*1024}')
        xt.append(a.vmem('buffer_load_dwordx4 v2, s[16:19], s34 offen lds'))
    wt = {}; wstate = {}
    def wissue(q):
        if q >= 108 or q in wt: return
        sl = q % NR
        off = (q % 54)*1024; srdn = 8 if q < 54 else 12
        key = (srdn, off & ~4095)
        if wstate.get('k') != key:
            a.I(f's_add_u32 s33, s31, {off & ~4095}'); wstate['k'] = key
        if 'now' in os.environ.get('K4A', '') and q >= 18:
            wt[q] = a.vm; return
        wt[q] = a.vmem(f'buffer_load_dwordx4 {r4(RING+4*sl)}, v2, s[{srdn}:{srdn+3}], s33 offen offset:{off & 4095}')
    xdma(0); xdma(1)
    for q in range(6): wissue(q)
    srd(a, 12, 4, 5, WS.W2S_SZ, WS.W2S); srd(a, 24, 4, 5, WS.UT1_SZ, WS.UT1)
    a.I('s_cmp_lt_u32 s20, 4'); a.I('s_cbranch_scc1 K4_PA'); a.I('s_cmp_lt_u32 s20, 8'); a.I('s_cbranch_scc1 K4_PB')
    a.I('s_setprio 1' if 'noprio' not in os.environ.get('K4V', '') else 's_nop 0'); a.I('s_branch K4_PD')
    a.label('K4_PB'); a.I('s_setprio 2' if 'noprio' not in os.environ.get('K4V', '') else 's_nop 0'); a.I('s_branch K4_PD')
    a.label('K4_PA'); a.I('s_setprio 3' if 'noprio' not in os.environ.get('K4V', '') else 's_nop 0')
    a.label('K4_PD')
    tok = {}
    def late_loads():
        for i in range(2, 6): xdma(i)
        a.I('s_mul_i32 s34, s20, 384'); a.I(f's_add_u32 m0, s34, {UTL}')
        a.I('s_cmp_ge_u32 s20, 6'); a.I(f's_cselect_b32 s35, {F*4 - 2304}, 0'); a.I('s_add_u32 s35, s35, s34')
        a.I('s_mul_i32 s36, s22, 2304'); a.I('s_add_u32 s35, s35, s36')
        a.I('s_mov_b64 exec, 0xffffff'); a.vmem('buffer_load_dwordx4 v2, s[24:27], s35 offen lds'); a.I('s_mov_b64 exec, -1')
        tok['ut'] = a.vm
    stamp(a, 0)
    a.I('v_mov_b32 v3, v2'); a.I('v_add_u32 v4, 36864, v2'); a.I(f'v_add_u32 v5, {HOFF}, v2'); a.I(f'v_add_u32 v6, {HOFF+36864}, v2')
    btok = {}
    def bread(kind, ks, st):
        base = (3 if kind == 'x' else 5) + (ks // 9)
        for tb in range(4):
            if 'nold' in os.environ.get('K4A', '') and ks > 1:
                btok[(kind, ks, tb)] = a.lg; continue
            btok[(kind, ks, tb)] = a.lds(f'ds_read_b128 {r4(BF4+st*16+tb*4)}, v{base} offset:{((ks % 9)*4+tb)*1024}')
    nxt_w = [6]
    st8 = {'q': 0}
    def pump():
        nis = 0
        while nxt_w[0] < min(st8['q'] + NR, 108) and nis < 2:
            wissue(nxt_w[0]); nxt_w[0] += 1; nis += 1
    def gemm(kind, hooks={}):
        for ks in range(18):
            cur = ks % 2
            if ks in hooks:
                lg0 = a.lg
                hooks[ks]()
                a.lg = lg0
            if ks + 1 < 18: bread(kind, ks+1, 1-cur)
            q = st8['q']
            a.wait(vm=wt[q+2], lg=btok[(kind, ks, 3)])
            for fb in range(3):
                for tb in range(4):
                    d = r4(AC4+(fb*4+tb)*4)
                    a.I(f'v_mfma_f32_16x16x32_bf16 {d}, {r4(RING+4*(st8["q"] % NR))}, {r4(BF4+cur*16+tb*4)}, {"0" if ks == 0 else d}')
                st8['q'] += 1
                pump()
    a.wait(vm=xt[1])
    a.I('s_cmp_ge_u32 s20, 4'); a.I('s_cbranch_scc1 K4_NS1')
    b = AC4
    for z in range(1, 8):
        a.I(f'v_add_f32 v{b}, v{b}, v{b+2*z}'); a.I(f'v_add_f32 v{b+1}, v{b+1}, v{b+2*z+1}')
    a.I(f'v_mul_f32 v{b}, {hexf(1.0/576)}, v{b}'); a.I(f'v_mul_f32 v{b+1}, {hexf(1.0/576)}, v{b+1}')
    a.I(f'v_fma_f32 v{b+1}, -v{b}, v{b}, v{b+1}'); a.I(f'v_max_f32 v{b+1}, 0, v{b+1}'); a.I(f'v_add_f32 v{b+1}, {hexf(1e-5)}, v{b+1}')
    a.I(f'v_rsq_f32 v{b+1}, v{b+1}')
    a.I(f'v_mul_f32 v{b+2}, {hexf(LOG2E)}, v{b+1}'); a.I(f'v_mul_f32 v{b+3}, v{b+2}, v{b}')
    a.I('v_lshlrev_b32 v8, 3, v8'); a.I('s_lshl_b32 s35, s20, 7'); a.I(f's_add_u32 s35, s35, {STL}'); a.I('v_add_u32 v8, s35, v8')
    a.I(f'ds_write_b64 v8, {r2(b+2)}')
    a.label('K4_NS1')
    a.I('s_waitcnt lgkmcnt(0)'); a.I('s_barrier')
    stamp(a, 1)
    bread('x', 0, 0)
    def hx():
        for i in range(2, 6): pass
    def gate():
        L = a.newlabel('K4_GATE')
        a.I('s_cmp_eq_u32 s38, 0'); a.I(f's_cbranch_scc1 {L}_D')
        a.I('s_lshl_b32 s36, s38, 2'); a.I(f's_add_u32 s36, s36, {CNT+8}'); a.I('v_mov_b32 v10, s36')
        a.label(L)
        a.I('ds_read_b32 v11, v10'); a.I('s_waitcnt lgkmcnt(0)'); a.I('v_readfirstlane_b32 s36, v11')
        a.I('s_cmp_ge_u32 s36, 4'); a.I(f's_cbranch_scc1 {L}_D'); a.I('s_sleep 4'); a.I(f's_branch {L}')
        a.label(f'{L}_D')
    def sig_g1():
        L = a.newlabel('K4_SIG')
        a.I('s_cmp_ge_u32 s38, 2'); a.I(f's_cbranch_scc1 {L}')
        a.I('s_lshl_b32 s36, s38, 2'); a.I(f's_add_u32 s36, s36, {CNT+12}'); a.I('v_mov_b32 v10, s36'); a.I('v_mov_b32 v11, 1')
        a.I('s_mov_b64 exec, 1'); a.I('ds_add_u32 v10, v11'); a.I('s_mov_b64 exec, -1')
        a.label(L)
    def sig_x():
        a.wait(vm=tok['ut'])
        a.I(f'v_mov_b32 v10, {CNT+20}'); a.I('v_mov_b32 v11, 1')
        a.I('s_mov_b64 exec, 1'); a.I('ds_add_u32 v10, v11'); a.I('s_mov_b64 exec, -1')
    def h1():
        L = a.newlabel('K4_H1')
        a.I('s_cmp_eq_u32 s38, 0'); a.I(f's_cbranch_scc1 {L}')
        lg0 = a.lg
        sig_x(); gate()
        a.label(L)
    def h4():
        L = a.newlabel('K4_H4')
        a.I('s_cmp_lg_u32 s38, 0'); a.I(f's_cbranch_scc1 {L}')
        sig_x()
        a.label(L)
    def h5():
        L = a.newlabel('K4_H5')
        a.I(f'v_mov_b32 v10, {CNT+20}')
        a.label(L)
        a.I('ds_read_b32 v11, v10'); a.I('s_waitcnt lgkmcnt(0)'); a.I('v_readfirstlane_b32 s36, v11')
        a.I('s_cmp_ge_u32 s36, 12'); a.I(f's_cbranch_scc1 {L}_D'); a.I('s_sleep 2'); a.I(f's_branch {L}')
        a.label(f'{L}_D')
    K4V = os.environ.get('K4V', 'nogate')
    if 'nogate' in K4V:
        def h1n():
            L = a.newlabel('K4_H1')
            a.I('s_cmp_eq_u32 s38, 0'); a.I(f's_cbranch_scc1 {L}')
            sig_x()
            a.label(L)
        gemm('x', hooks={0: late_loads, 1: h1n, 4: h4, 5: h5})
    else:
        gemm('x', hooks={0: late_loads, 1: h1, 4: h4, 5: h5, int(os.environ.get('K4SIG', '13')): sig_g1})
    stamp(a, 2)
    a.I('s_mul_i32 s35, s20, 3')
    a.I('v_lshrrev_b32 v14, 4, v1'); a.I('v_lshlrev_b32 v14, 4, v14'); a.I('s_mul_i32 s36, s20, 192'); a.I(f's_add_u32 s36, s36, {UTL}'); a.I('v_add_u32 v7, s36, v14')
    a.I('v_and_b32 v14, 15, v1'); a.I('v_lshlrev_b32 v14, 3, v14'); a.I(f'v_add_u32 v14, {STL}, v14')
    T0 = BF4
    for tb in range(4): a.I(f'ds_read_b64 {r2(T0+2*tb)}, v14 offset:{tb*128}')
    for fb in range(3):
        a.I(f'ds_read_b128 {r4(T0+8+fb*8)}, v7 offset:{fb*64}'); a.I(f'ds_read_b128 {r4(T0+12+fb*8)}, v7 offset:{fb*64+2304}')
    for fb in range(3):
        a.I(f's_add_u32 s36, s35, {fb}'); a.I('s_and_b32 s37, s36, 1'); a.I('s_lshr_b32 s36, s36, 1')
        a.I('s_lshl_b32 s36, s36, 12'); a.I('s_lshl_b32 s37, s37, 3'); a.I('s_add_u32 s36, s36, s37'); a.I(f'v_add_u32 v{7+fb}, s36, v5')
    a.I('s_waitcnt lgkmcnt(0)')
    for fb in range(3):
        U_, T_ = T0+8+fb*8, T0+12+fb*8
        for r in range(4): a.I(f'v_mul_f32 v{T_+r}, {hexf(LOG2E)}, v{T_+r}')
        for tb in range(4):
            b = AC4 + (fb*4+tb)*4
            if 'nosilu' not in os.environ.get('K4A', ''):
                for r in range(4): a.I(f'v_fma_f32 v{10+r}, -v{T0+2*tb+1}, v{U_+r}, v{T_+r}')
                for r in range(4): a.I(f'v_fma_f32 v{b+r}, v{b+r}, v{T0+2*tb}, v{10+r}')
                for r in range(4): a.I(f'v_exp_f32 v{10+r}, -v{b+r}')
                for r in range(4): a.I(f'v_add_f32 v{10+r}, 1.0, v{10+r}')
                for r in range(4): a.I(f'v_rcp_f32 v{10+r}, v{10+r}')
                for r in range(4): a.I(f'v_mul_f32 v{b+r}, v{b+r}, v{10+r}')
            a.I(f'v_cvt_pk_bf16_f32 v14, v{b}, v{b+1}'); a.I(f'v_cvt_pk_bf16_f32 v15, v{b+2}, v{b+3}')
            a.lds(f'ds_write_b64 v{7+fb}, v[14:15] offset:{tb*1024}')
    a.I('s_waitcnt lgkmcnt(0)')
    a.I('s_lshl_b32 s36, s38, 2'); a.I(f's_add_u32 s36, s36, {CNT}'); a.I('v_mov_b32 v10, s36'); a.I('v_mov_b32 v11, 1')
    a.I('s_mov_b64 exec, 1'); a.I('ds_add_u32 v10, v11'); a.I('s_mov_b64 exec, -1')
    a.I('s_setprio 0')
    stamp(a, 3)
    def poll(g):
        def f():
            L = a.newlabel('K4_POLL')
            a.I(f'v_mov_b32 v10, {CNT+4*g}')
            a.label(L)
            a.I('ds_read_b32 v11, v10'); a.I('s_waitcnt lgkmcnt(0)'); a.I('v_readfirstlane_b32 s36, v11')
            a.I('s_cmp_ge_u32 s36, 4'); a.I(f's_cbranch_scc1 {L}_D'); a.I('s_sleep 2'); a.I(f's_branch {L}')
            a.label(f'{L}_D')
        return f
    poll(0)()
    bread('h', 0, 0)
    gemm('h', hooks={5: poll(1), 11: poll(2)})
    stamp(a, 4)
    srd(a, 16, 4, 5, WS.PART_SZ, WS.PART)
    a.I('s_lshl_b32 s28, s22, 6'); a.I('s_lshl_b32 s29, s21, 1'); a.I('s_add_u32 s28, s28, s29'); a.I('s_mul_i32 s28, s28, 36')
    a.I('s_mul_i32 s29, s20, 3'); a.I('s_add_u32 s28, s28, s29'); a.I('s_lshl_b32 s28, s28, 10')
    for nb in range(3):
        for pr in range(2):
            b0, b1 = AC4+(nb*4+2*pr)*4, AC4+(nb*4+2*pr+1)*4
            d = RING + (nb*2+pr)*4
            a.I(f'v_cvt_pk_bf16_f32 v{d}, v{b0}, v{b0+1}'); a.I(f'v_cvt_pk_bf16_f32 v{d+1}, v{b0+2}, v{b0+3}')
            a.I(f'v_cvt_pk_bf16_f32 v{d+2}, v{b1}, v{b1+1}'); a.I(f'v_cvt_pk_bf16_f32 v{d+3}, v{b1+2}, v{b1+3}')
            a.I(f's_add_u32 s29, s28, {(pr*36+nb)*1024}')
            a.vmem(f'buffer_store_dwordx4 {r4(d)}, v2, s[16:19], s29 offen ' + os.environ.get('PARTFLAG', 'sc1'))
    a.label('K4_END')
    a.I('s_endpgm')
    return kernel_text('k4_kernel', a, 168), (256, 768, CNT + 64)

def k5():
    a = Asm()
    NWG = 64*18//4
    a.I(f's_cmp_ge_u32 s2, {NWG}'); a.I('s_cbranch_scc1 K5_END')
    a.I(f's_load_dwordx2 s[4:5], s[0:1], {A_WS}'); a.I(f's_load_dwordx2 s[6:7], s[0:1], {A_OUT}')
    wave_setup(a)
    a.I('s_lshl_b32 s21, s2, 2'); a.I('s_add_u32 s21, s21, s20')
    sdiv(a, 's22', 's21', 18, 1151)
    a.I('s_mul_i32 s23, s22, 18'); a.I('s_sub_u32 s23, s21, s23')
    a.I('s_mul_i32 s28, s22, 36'); a.I('s_lshl_b32 s29, s23, 1'); a.I('s_add_u32 s28, s28, s29'); a.I('s_lshl_b32 s28, s28, 10')
    a.I('v_lshrrev_b32 v3, 4, v1'); a.I('v_lshlrev_b32 v4, 4, v3')
    a.I('s_waitcnt lgkmcnt(0)')
    srd(a, 8, 4, 5, WS.PART_SZ, WS.PART)
    for j in range(8):
        a.vmem(f'buffer_load_dwordx4 {r4(16+8*j)}, v2, s[8:11], s28 offen')
        a.vmem(f'buffer_load_dwordx4 {r4(20+8*j)}, v2, s[8:11], s28 offen offset:1024')
        if j < 7: a.I(f's_add_u32 s28, s28, {64*36*1024}')
    srd(a, 12, 4, 5, WS.X1F_SZ, WS.X1F); srd(a, 16, 4, 5, WS.MOD_SZ, WS.MOD); srd(a, 24, 6, 7, S*D*2)
    a.I('s_mul_i32 s28, s22, 36'); a.I('s_add_u32 s28, s28, s23'); a.I('s_lshl_b32 s28, s28, 10')
    a.vmem('buffer_load_dwordx4 v[80:83], v2, s[12:15], s28 offen')
    a.I(f's_add_u32 s28, s28, {18*1024}')
    a.vmem('buffer_load_dwordx4 v[84:87], v2, s[12:15], s28 offen')
    a.I('s_lshl_b32 s28, s23, 7'); a.I(f's_add_u32 s28, s28, {5*576*4}')
    a.vmem('buffer_load_dwordx4 v[88:91], v4, s[16:19], s28 offen')
    a.vmem('buffer_load_dwordx4 v[92:95], v4, s[16:19], s28 offen offset:64')
    a.I('v_and_b32 v5, 15, v1'); a.I('v_mul_u32_u24 v5, 1152, v5')
    a.I('v_and_b32 v6, 1, v3'); a.I('v_lshl_add_u32 v5, v6, 5, v5'); a.I('v_lshrrev_b32 v6, 1, v3'); a.I('v_lshl_add_u32 v5, v6, 4, v5')
    a.I(f's_mul_i32 s28, s22, {32*1152}'); a.I('s_lshl_b32 s29, s23, 6'); a.I('s_add_u32 s28, s28, s29')
    for r in range(16): a.I(f'v_mov_b32 v{96+r}, 0')
    for j in range(8):
        a.I(f's_waitcnt vmcnt({18 - 2*j - 2 + 0})' if False else f's_waitcnt vmcnt({max(0, 20 - 2*(j+1))})')
        for e in range(2):
            for z in range(4):
                w = 16 + 8*j + 4*e + z
                a.I(f'v_lshlrev_b32 v6, 16, v{w}'); a.I(f'v_and_b32 v7, 0xffff0000, v{w}')
                a.I(f'v_add_f32 v{96+e*8+2*z}, v{96+e*8+2*z}, v6'); a.I(f'v_add_f32 v{97+e*8+2*z}, v{97+e*8+2*z}, v7')
    a.I('s_waitcnt vmcnt(0)')
    LN2 = math.log(2.0)
    for r in range(8): a.I(f'v_mul_f32 v{88+r}, {hexf(LN2)}, v{88+r}')
    for h in range(2):
        for e in range(2):
            for r in range(4):
                x = 80 + 4*h + 2*e + r//2
                if r % 2 == 0: a.I(f'v_lshlrev_b32 v6, 16, v{x}')
                else: a.I(f'v_and_b32 v6, 0xffff0000, v{x}')
                a.I(f'v_fma_f32 v{96+e*8+h*4+r}, v{96+e*8+h*4+r}, v{88+4*e+r}, v6')
        d = 112 + 4*h
        a.I(f'v_cvt_pk_bf16_f32 v{d}, v{96+h*4}, v{97+h*4}'); a.I(f'v_cvt_pk_bf16_f32 v{d+1}, v{98+h*4}, v{99+h*4}')
        a.I(f'v_cvt_pk_bf16_f32 v{d+2}, v{104+h*4}, v{105+h*4}'); a.I(f'v_cvt_pk_bf16_f32 v{d+3}, v{106+h*4}, v{107+h*4}')
        a.I(f'v_permlane16_swap_b32 v{d}, v{d+2}'); a.I(f'v_permlane16_swap_b32 v{d+1}, v{d+3}')
        a.vmem(f'buffer_store_dwordx4 {r4(d)}, v5, s[24:27], s28 offen')
        if h == 0: a.I(f's_add_u32 s28, s28, {16*1152}')
    a.label('K5_END')
    a.I('s_endpgm')
    return kernel_text('k5_kernel', a, 120), (NWG, 256, 0)
```

```python
from common import *
import os

S0, S1, O, CI, P, QLO, QHI = 16, 32, 48, 64, 80, 88, 92
KLO = (96, 100); KHI = (104, 108); VF = (112, 120)
IMG = 64*KV_TILE
SPARE = IMG
def r(b, n): return f'v[{b}:{b+n-1}]'
def mf(d, a_, b_, c): return f'v_mfma_f32_32x32x16_bf16 {r(d,16)}, {r(a_,4)}, {r(b_,4)}, {c}'
def mfh(d, a_, b_, c):
    if os.environ.get('QK8', '1') == '1': return f'v_mfma_f32_32x32x8_bf16 {r(d,16)}, {r(a_,2)}, {r(b_,2)}, {c}'
    return mf(d, a_, b_, c)

NFR1, NFR2, NFRO = 288*18, 36*144, 36*18
NFR = NFR1 + NFR2 + NFRO
def prep_issue(a, L):
    a.I('s_mov_b32 s60, -1')
    a.I(f's_cmp_ge_u32 s52, {NFR}'); a.I(f's_cbranch_scc1 {L}_E')
    a.I('v_lshrrev_b32 v9, 1, v1')
    a.I('v_and_b32 v10, 1, v1'); a.I('v_lshlrev_b32 v10, 4, v10')
    a.I(f's_cmp_ge_u32 s52, {NFR1+NFR2}'); a.I(f's_cbranch_scc1 {L}_O')
    a.I(f's_cmp_ge_u32 s52, {NFR1}'); a.I(f's_cbranch_scc1 {L}_2')
    sdiv(a, 's53', 's52', 288, NFR1-1); a.I('s_mul_i32 s54, s53, 288'); a.I('s_sub_u32 s54, s52, s54')
    sdiv(a, 's55', 's54', 3, 287); a.I('s_mul_i32 s61, s55, 3'); a.I('s_sub_u32 s61, s54, s61')
    a.I('s_mul_i32 s60, s55, 54'); a.I('s_mul_i32 s62, s53, 3'); a.I('s_add_u32 s60, s60, s62'); a.I('s_add_u32 s60, s60, s61'); a.I('s_lshl_b32 s60, s60, 10')
    srd(a, 56, 4, 5, WS.W1S_SZ, WS.W1S); srd(a, 64, 46, 47, 576*9216)
    a.I('v_mul_u32_u24 v9, 9216, v9'); a.I(f's_mul_i32 s61, s53, {32*9216}'); a.I('s_lshl_b32 s62, s54, 5'); a.I('s_add_u32 s61, s61, s62')
    a.I(f's_branch {L}_G')
    a.label(f'{L}_2')
    a.I(f's_sub_u32 s52, s52, {NFR1}')
    sdiv(a, 's53', 's52', 36, NFR2-1); a.I('s_mul_i32 s54, s53, 36'); a.I('s_sub_u32 s54, s52, s54')
    sdiv(a, 's55', 's54', 3, 35); a.I('s_mul_i32 s61, s55, 3'); a.I('s_sub_u32 s61, s54, s61')
    sdiv(a, 's62', 's53', 18, 143); a.I('s_mul_i32 s63, s62, 18'); a.I('s_sub_u32 s63, s53, s63')
    a.I('s_mul_i32 s60, s62, 12'); a.I('s_add_u32 s60, s60, s55'); a.I('s_mul_i32 s60, s60, 18'); a.I('s_add_u32 s60, s60, s63'); a.I('s_mul_i32 s60, s60, 3')
    a.I('s_add_u32 s60, s60, s61'); a.I('s_lshl_b32 s60, s60, 10')
    srd(a, 56, 4, 5, WS.W2S_SZ, WS.W2S); srd(a, 64, 48, 49, F*1152)
    a.I('v_mul_u32_u24 v9, 1152, v9'); a.I(f's_mul_i32 s61, s53, {32*1152}'); a.I('s_lshl_b32 s62, s54, 5'); a.I('s_add_u32 s61, s61, s62')
    a.I(f's_branch {L}_G')
    a.label(f'{L}_O')
    a.I(f's_sub_u32 s52, s52, {NFR1+NFR2}')
    sdiv(a, 's53', 's52', 36, NFRO-1); a.I('s_mul_i32 s54, s53, 36'); a.I('s_sub_u32 s54, s52, s54')
    sdiv(a, 's55', 's54', 6, 35); a.I('s_mul_i32 s61, s55, 6'); a.I('s_sub_u32 s61, s54, s61')
    a.I('s_mul_i32 s60, s55, 18'); a.I('s_add_u32 s60, s60, s53'); a.I('s_mul_i32 s60, s60, 6'); a.I('s_add_u32 s60, s60, s61'); a.I('s_lshl_b32 s60, s60, 10')
    srd(a, 56, 4, 5, WS.WOF_SZ, WS.WOF); srd(a, 64, 50, 51, 576*1152)
    a.I('v_bfe_u32 v11, v9, 2, 2')
    a.I('s_cmp_ge_u32 s53, 16'); a.I(f's_cbranch_scc1 {L}_O2')
    a.I('v_lshrrev_b32 v12, 1, v11'); a.I('v_mul_u32_u24 v12, 18, v12'); a.I('v_and_b32 v11, 1, v11'); a.I('v_lshl_add_u32 v12, v11, 2, v12')
    a.I('v_lshrrev_b32 v11, 4, v9'); a.I('v_lshl_add_u32 v12, v11, 3, v12'); a.I('v_and_b32 v11, 3, v9'); a.I('v_add_u32 v9, v12, v11')
    a.I('s_mul_i32 s61, s53, 36'); a.I(f's_branch {L}_O3')
    a.label(f'{L}_O2')
    a.I('v_mul_u32_u24 v12, 72, v11'); a.I('v_lshrrev_b32 v11, 4, v9'); a.I('v_lshlrev_b32 v11, 1, v11'); a.I('v_bfe_u32 v13, v9, 1, 1'); a.I('v_add_u32 v11, v11, v13')
    a.I('v_mul_u32_u24 v11, 18, v11'); a.I('v_add_u32 v12, v12, v11'); a.I('v_and_b32 v11, 1, v9'); a.I('v_add_u32 v12, v12, v11'); a.I('v_add_u32 v9, 16, v12')
    a.I('s_sub_u32 s61, s53, 16'); a.I('s_mul_i32 s61, s61, 288')
    a.label(f'{L}_O3')
    a.I('v_mul_u32_u24 v9, 1152, v9'); a.I('s_mul_i32 s61, s61, 1152'); a.I('s_lshl_b32 s62, s54, 5'); a.I('s_add_u32 s61, s61, s62')
    a.label(f'{L}_G')
    a.I('v_add_u32 v9, v9, v10')
    a.I('s_lshl_b32 s62, s20, 10'); a.I(f's_add_u32 m0, s62, {SPARE}')
    a.I('buffer_load_dwordx4 v9, s[64:67], s61 offen lds')
    a.label(f'{L}_E')

def prep_consume(a, L):
    a.I('s_cmp_eq_u32 s60, -1'); a.I(f's_cbranch_scc1 {L}_E')
    a.I('s_waitcnt vmcnt(0)')
    a.I('v_lshrrev_b32 v9, 2, v1'); a.I('v_lshlrev_b32 v9, 5, v9'); a.I('v_and_b32 v10, 3, v1'); a.I('v_lshl_add_u32 v9, v10, 3, v9')
    a.I('s_lshl_b32 s62, s20, 10'); a.I(f's_add_u32 s62, s62, {SPARE}'); a.I('v_add_u32 v9, s62, v9')
    a.I('ds_read_b64_tr_b16 v[12:13], v9'); a.I('ds_read_b64_tr_b16 v[14:15], v9 offset:512')
    a.I('s_waitcnt lgkmcnt(0)')
    a.I('buffer_store_dwordx4 v[12:15], v5, s[56:59], s60 offen ' + os.environ.get('PREPFLAG', 'sc1'))
    a.label(f'{L}_E')

def k2():
    a = Asm()
    a.I('s_cmp_ge_u32 s2, 256'); a.I('s_cbranch_scc1 K2_END')
    a.I(f's_load_dwordx2 s[4:5], s[0:1], {A_WS}')
    a.I(f's_load_dwordx2 s[46:47], s[0:1], {A_W1}')
    a.I(f's_load_dwordx2 s[48:49], s[0:1], {A_W2}')
    a.I(f's_load_dwordx2 s[50:51], s[0:1], {A_WO}')
    a.I('v_lshrrev_b32 v1, 6, v0'); a.I('v_readfirstlane_b32 s20, v1')
    a.I('v_and_b32 v1, 63, v0')
    a.I('s_and_b32 s21, s2, 7'); a.I('s_lshl_b32 s21, s21, 2'); a.I('s_bfe_u32 s22, s2, 0x20003'); a.I('s_add_u32 s21, s21, s22')
    a.I('s_lshr_b32 s22, s2, 5')
    a.I('s_and_b32 s23, s20, 7')
    a.I('s_lshr_b32 s24, s20, 3')
    a.I('s_lshl_b32 s25, s22, 3'); a.I('s_add_u32 s25, s25, s23')
    a.I('s_mov_b32 s40, 0')
    a.I('v_lshlrev_b32 v5, 4, v1')
    a.I('v_and_b32 v6, 31, v1'); a.I('v_lshlrev_b32 v7, 2, v6'); a.I('v_lshlrev_b32 v8, 2, v1')
    a.I('s_mul_i32 s44, s24, 72'); a.I('s_add_u32 s44, s44, s23'); a.I('s_lshl_b32 s44, s44, 10')
    a.I('s_waitcnt lgkmcnt(0)')
    a.I(f's_mul_i32 s26, s21, {IMG}')
    a.I('s_add_u32 s8, s4, s26'); a.I('s_addc_u32 s9, s5, 0')
    a.I(f's_add_u32 s8, s8, {WS.KVIMG}'); a.I('s_addc_u32 s9, s9, 0')
    a.I(f's_mov_b32 s10, {IMG}'); a.I('s_mov_b32 s11, 0x00020000')
    def dma(j):
        a.I(f's_add_u32 s26, s44, {j*8192}')
        a.I('s_mov_b32 m0, s26')
        a.vmem('buffer_load_dwordx4 v5, s[8:11], s26 offen lds')
    srd(a, 12, 4, 5, WS.QIMG_SZ, WS.QIMG)
    srd(a, 16, 4, 5, WS.KMAX_SZ, WS.KMAX)
    a.I('s_lshl_b32 s26, s21, 6'); a.I('s_add_u32 s26, s26, s25'); a.I(f's_mul_i32 s26, s26, {QT_BYTES}')
    a.vmem(f'buffer_load_dwordx4 {r(QLO,4)}, v5, s[12:15], s26 offen')
    a.vmem(f'buffer_load_dword v{QHI}, v7, s[12:15], s26 offen offset:1024')
    a.I('s_lshl_b32 s26, s21, 8')
    a.vmem('buffer_load_dword v9, v8, s[16:19], s26 offen')
    a.label('K2_RESTART')
    dma(0); dma(1)
    a.label('K2_SKIPQ0')
    stamp(a, 0)
    a.I(f's_mul_i32 s27, s24, {32*KV_TILE}')
    a.I('v_add_u32 v2, s27, v5'); a.I('v_add_u32 v3, s27, v7')
    a.I('v_min_u32 v4, 17, v6'); a.I('v_lshrrev_b32 v10, 5, v1'); a.I('v_mul_u32_u24 v11, 18, v10')
    a.I('v_add_u32 v4, v4, v11'); a.I('v_lshlrev_b32 v4, 4, v4'); a.I('v_add_u32 v4, s27, v4')
    for j in range(16): a.I(f'v_mov_b32 v{O+j}, 0')
    a.I('v_cmp_eq_u32 vcc, 18, v6'); a.I('v_mov_b32 v12, 0x3f803f80'); a.I('v_cndmask_b32 v12, 0, v12, vcc')
    for j in range(16): a.I(f'v_mov_b32 v{VF[0]+j}, v12')
    a.I('s_mov_b32 s42, 0x3ffff'); a.I('s_mov_b32 s43, 0x3ffff')
    a.I('s_cmp_lg_u32 s40, 0'); a.I('s_cbranch_scc1 K2_SKIPQ')
    for j in range(1, 4): a.I(f'v_mov_b32 v{QHI+j}, 0')
    for b in KHI:
        for j in range(1, 4): a.I(f'v_mov_b32 v{b+j}, 0')
    a.I('s_waitcnt vmcnt(2)')
    a.I('v_cmp_eq_u32 vcc, 0, v10')
    a.I(f'v_cndmask_b32 v{QHI}, 0, v{QHI}, vcc')
    a.I('v_mov_b32 v12, 0')
    for q in [QLO, QLO+1, QLO+2, QLO+3, QHI]:
        a.I(f'v_lshlrev_b32 v13, 16, v{q}'); a.I('v_fmac_f32 v12, v13, v13')
        a.I(f'v_and_b32 v13, 0xffff0000, v{q}'); a.I('v_fmac_f32 v12, v13, v13')
    a.I('v_mov_b32 v13, v12'); a.I('v_permlane32_swap_b32 v12, v13'); a.I('v_add_f32 v12, v12, v13')
    for dpp in ('quad_perm:[1,0,3,2]', 'quad_perm:[2,3,0,1]', 'row_half_mirror', 'row_mirror'):
        a.I(f'v_max_f32_dpp v9, v9, v9 {dpp} row_mask:0xf bank_mask:0xf')
    a.I('v_mov_b32 v13, v9'); a.I('v_permlane16_swap_b32 v9, v13'); a.I('v_max_f32 v9, v9, v13')
    a.I('v_mov_b32 v13, v9'); a.I('v_permlane32_swap_b32 v9, v13'); a.I('v_max_f32 v9, v9, v13')
    a.I('v_mul_f32 v12, v12, v9'); a.I('v_sqrt_f32 v12, v12')
    a.I(f'v_mul_f32 v12, {hexf(-1.015625)}, v12')
    for j in range(16): a.I(f'v_mov_b32 v{CI+j}, v12')
    a.label('K2_SKIPQ')
    stamp(a, 1)
    a.I('s_cmp_eq_u32 s40, 0'); a.I('s_cbranch_scc1 K2_MAIN')
    for j in range(2, 9): dma(j)
    a.I('s_waitcnt vmcnt(0) lgkmcnt(0)'); a.I('s_barrier')
    a.I('v_mov_b32 v12, 0xff800000')
    a.I('v_mov_b32 v14, v2'); a.I('v_mov_b32 v15, v3')
    a.I('s_mov_b32 s28, 32')
    a.label('K2_MAXLOOP')
    a.I(f'ds_read_b128 {r(KLO[0],4)}, v14'); a.I(f'ds_read_b32 v{KHI[0]}, v15 offset:1024')
    a.I('s_waitcnt lgkmcnt(0)')
    a.I(mf(S0, KLO[0], QLO, '0')); a.I(mfh(S0, KHI[0], QHI, r(S0,16)))
    for j in range(0, 16, 2): a.I(f'v_max3_f32 v12, v12, v{S0+j}, v{S0+j+1}')
    a.I(f'v_add_u32 v14, {KV_TILE}, v14'); a.I(f'v_add_u32 v15, {KV_TILE}, v15')
    a.I('s_sub_u32 s28, s28, 1'); a.I('s_cmp_lg_u32 s28, 0'); a.I('s_cbranch_scc1 K2_MAXLOOP')
    a.I('v_mov_b32 v13, v12'); a.I('v_permlane32_swap_b32 v12, v13'); a.I('v_max_f32 v12, v12, v13')
    a.I('s_lshl_b32 s28, s20, 8'); a.I(f's_add_u32 s28, s28, {SPARE}'); a.I('v_add_u32 v14, s28, v8')
    a.I('ds_write_b32 v14, v12')
    a.I('s_waitcnt lgkmcnt(0)'); a.I('s_barrier')
    a.I('s_xor_b32 s28, s20, 8'); a.I('s_lshl_b32 s28, s28, 8'); a.I(f's_add_u32 s28, s28, {SPARE}'); a.I('v_add_u32 v14, s28, v8')
    a.I('ds_read_b32 v13, v14'); a.I('s_waitcnt lgkmcnt(0)')
    a.I('v_max_f32 v12, v12, v13'); a.I('v_sub_f32 v12, 0, v12')
    for j in range(16): a.I(f'v_mov_b32 v{CI+j}, v12')
    a.label('K2_MAIN')
    a.I('s_waitcnt vmcnt(0) lgkmcnt(0)'); a.I('s_barrier')
    stamp(a, 2)
    def rdK(t, buf):
        a.I(f'ds_read_b128 {r(KLO[buf],4)}, v2 offset:{t*KV_TILE}')
        a.I(f'ds_read_b32 v{KHI[buf]}, v3 offset:{t*KV_TILE+1024}')
    def rdV(t, buf):
        a.I('s_mov_b64 exec, s[42:43]')
        a.I(f'ds_read_b128 {r(VF[buf],4)}, v4 offset:{t*KV_TILE+VT_OFF}')
        a.I(f'ds_read_b128 {r(VF[buf]+4,4)}, v4 offset:{t*KV_TILE+VT_OFF+576}')
        a.I('s_mov_b64 exec, -1')
    rdK(0, 0); rdK(1, 1); rdV(0, 0)
    for j in range(4): a.I(f'v_mov_b32 v{P+4+j}, 0')
    a.I('s_waitcnt lgkmcnt(0)')
    a.I(mf(S0, KLO[0], QLO, r(CI,16))); a.I(mfh(S0, KHI[0], QHI, r(S0,16)))
    U = 8
    def tile(t, extra=None):
        cur = (S0, S1)[t & 1]; nxt = (S0, S1)[(t+1) & 1]
        kb = (t+1) & 1
        a.I('s_waitcnt lgkmcnt(0)')
        a.I(mf(nxt, KLO[kb], QLO, r(CI,16)))
        a.I(mf(O, VF[(t+1) & 1]+4, P+4, r(O,16)))
        for j in range(8): a.I(f'v_exp_f32 v{cur+j}, v{cur+j}')
        a.I(mfh(nxt, KHI[kb], QHI, r(nxt,16)))
        if 'nold' not in os.environ.get('K2A', '') or (t % 2 == 0 and 'half' in os.environ.get('K2A', '')): rdK(t+2, t & 1); rdV(t+1, (t+1) & 1)
        if extra: extra()
        for j in range(4): a.I(f'v_cvt_pk_bf16_f32 v{P+j}, v{cur+2*j}, v{cur+2*j+1}')
        for j in range(8): a.I(f'v_exp_f32 v{cur+8+j}, v{cur+8+j}')
        a.I(mf(O, VF[t & 1], P, r(O,16)))
        for j in range(4): a.I(f'v_cvt_pk_bf16_f32 v{P+4+j}, v{cur+8+2*j}, v{cur+8+2*j+1}')
    PF = 81
    a.I('s_setprio 3' if os.environ.get('K2PRIO', '1') == '1' else 's_nop 0')
    dl = [[2, 3], [4, 5], [6, 7], [8]]
    for t in range(U):
        if t == 5:
            a.I('s_waitcnt vmcnt(0)'); a.I('s_barrier')
        if t == 5 and os.environ.get('NOCPF', '0') != '1':
            a.I('s_cmp_ge_u32 s2, 8'); a.I('s_cbranch_scc1 K2_NCP')
            code_prefetch(a, 'k3_kernel', 16384, 's20', 'K2', vtmp=(12, 13, 14))
            a.label('K2_NCP')
        if t == 6:
            a.I('s_mul_i32 s52, s2, 48'); a.I('s_add_u32 s52, s52, s20'); a.I('s_mov_b32 s68, s52')
            prep_issue(a, 'K2_PI0')
        tile(t, (lambda t=t: [dma(j) for j in dl[t]]) if t < 4 else None)
    for v in (2, 3, 4): a.I(f'v_add_u32 v{v}, {U*KV_TILE}, v{v}')
    a.I('s_mov_b32 s28, 3')
    a.label('K2_LOOP')
    a.I('s_cmp_eq_u32 s28, 3'); a.I('s_cbranch_scc1 K2_P2')
    a.I('s_cmp_eq_u32 s28, 2'); a.I('s_cbranch_scc1 K2_P1')
    a.I('s_setprio 0' if os.environ.get('K2PRIO', '1') == '1' else 's_nop 0'); a.I('s_branch K2_PD')
    a.label('K2_P1'); a.I('s_setprio 1' if os.environ.get('K2PRIO', '1') == '1' else 's_nop 0'); a.I('s_branch K2_PD')
    a.label('K2_P2'); a.I('s_setprio 2' if os.environ.get('K2PRIO', '1') == '1' else 's_nop 0')
    a.label('K2_PD')
    prep_consume(a, 'K2_PC')
    a.I('s_add_u32 s68, s68, 16'); a.I('s_mov_b32 s52, s68'); a.I('s_mov_b32 s60, -1')
    a.I('s_cmp_eq_u32 s28, 1'); a.I('s_cbranch_scc1 K2_PI1_E')
    prep_issue(a, 'K2_PI1')
    for t in range(U): tile(t)
    for v in (2, 3, 4): a.I(f'v_add_u32 v{v}, {U*KV_TILE}, v{v}')
    a.I('s_sub_u32 s28, s28, 1'); a.I('s_cmp_lg_u32 s28, 0'); a.I('s_cbranch_scc1 K2_LOOP')
    a.I(mf(O, VF[1]+4, P+4, r(O,16)))
    stamp(a, 3)
    a.I('v_mov_b32 v12, 0'); a.I(f'v_mov_b32 v13, {SPARE}')
    a.I('s_cmp_lg_u32 s20, 0'); a.I('s_cbranch_scc1 K2_NZ'); a.I('ds_write_b32 v13, v12'); a.label('K2_NZ')
    a.I('s_waitcnt lgkmcnt(0)')
    a.I('s_barrier')
    a.I('s_mul_i32 s28, s23, 3072'); a.I('v_add_u32 v14, s28, v5')
    a.I('s_cmp_eq_u32 s24, 0'); a.I('s_cbranch_scc1 K2_M0')
    for j in range(3): a.I(f'ds_write_b128 v14, {r(O+4*j,4)} offset:{j*1024}')
    a.I('s_waitcnt lgkmcnt(0)')
    a.I('s_barrier')
    a.I('s_branch K2_M1')
    a.label('K2_M0')
    a.I('s_barrier')
    for j in range(3): a.I(f'ds_read_b128 {r(S0+4*j,4)}, v14 offset:{j*1024}')
    a.I('s_waitcnt lgkmcnt(0)')
    for j in range(12): a.I(f'v_add_f32 v{O+j}, v{O+j}, v{S0+j}')
    a.I(f'v_mov_b32 v12, v{O+10}'); a.I(f'v_permlane32_swap_b32 v{O+10}, v12')
    a.I(f's_mov_b32 s29, {hexf(2.0**-90)}')
    a.I(f'v_cmp_nle_f32 vcc, s29, v{O+10}')
    a.I('s_cmp_eq_u64 vcc, 0'); a.I('s_cbranch_scc1 K2_M1')
    a.I('v_mov_b32 v12, 1'); a.I(f'v_mov_b32 v13, {SPARE}'); a.I('ds_write_b32 v13, v12')
    a.I('s_waitcnt lgkmcnt(0)')
    a.label('K2_M1')
    a.I('s_barrier')
    a.I(f'v_mov_b32 v13, {SPARE}'); a.I('ds_read_b32 v12, v13'); a.I('s_waitcnt lgkmcnt(0)')
    a.I('v_readfirstlane_b32 s29, v12')
    a.I('s_cmp_eq_u32 s29, 0'); a.I('s_cbranch_scc1 K2_FIN')
    a.I('s_cmp_lg_u32 s40, 0'); a.I('s_cbranch_scc1 K2_FIN')
    a.I('s_mov_b32 s40, 1')
    a.I('s_barrier')
    a.I('s_branch K2_RESTART')
    a.label('K2_FIN')
    stamp(a, 4)
    a.I('s_cmp_lg_u32 s24, 0'); a.I('s_cbranch_scc1 K2_END')
    a.I(f'v_rcp_f32 v12, v{O+10}')
    for j in range(10): a.I(f'v_mul_f32 v{O+j}, v{O+j}, v12')
    for j in range(5): a.I(f'v_cvt_pk_bf16_f32 v{S0+j}, v{O+2*j}, v{O+2*j+1}')
    srd(a, 12, 4, 5, WS.OF_SZ, WS.OF)
    a.I('v_bfe_u32 v12, v1, 4, 1'); a.I('s_lshl_b32 s28, s25, 1'); a.I('v_add_u32 v12, s28, v12')
    a.I('v_mul_u32_u24 v12, 18, v12'); a.I('v_lshlrev_b32 v12, 10, v12')
    a.I('v_and_b32 v13, 15, v1'); a.I('v_lshl_add_u32 v12, v13, 4, v12')
    a.I('v_lshrrev_b32 v14, 5, v1'); a.I('v_lshl_add_u32 v14, v14, 8, v12')
    a.I('s_lshr_b32 s28, s21, 1'); a.I('s_lshl_b32 s28, s28, 10'); a.I('s_and_b32 s29, s21, 1'); a.I('s_lshl_b32 s29, s29, 9'); a.I('s_add_u32 s28, s28, s29')
    a.vmem(f'buffer_store_dwordx4 {r(S0,4)}, v14, s[12:15], s28 offen ' + os.environ.get('OFLAG', ''))
    a.I('s_lshr_b32 s28, s21, 4'); a.I('s_add_u32 s28, s28, 16'); a.I('s_lshl_b32 s28, s28, 10')
    a.I('s_bfe_u32 s29, s21, 0x20002'); a.I('s_lshl_b32 s29, s29, 8'); a.I('s_add_u32 s28, s28, s29')
    a.I('s_and_b32 s29, s21, 3'); a.I('s_lshl_b32 s29, s29, 2'); a.I('s_add_u32 s28, s28, s29')
    a.I('s_mov_b32 exec_hi, 0')
    a.vmem(f'buffer_store_dword v{S0+4}, v12, s[12:15], s28 offen')
    a.label('K2_END')
    a.I('s_endpgm')
    return kernel_text('k2_kernel', a, 128), (256, 1024, 163840)
```

```python
from common import *
import os

def wave_setup(a):
    a.I('v_lshrrev_b32 v1, 6, v0')
    a.I('v_readfirstlane_b32 s20, v1')
    a.I('v_and_b32 v1, 63, v0')
    a.I('v_lshlrev_b32 v2, 4, v1')

def apply_gs(a, raw, dst, T, G, Sx, emit=None):
    L = []
    for q in range(4):
        L.append(f'v_lshlrev_b32 v{T+2*q}, 16, {raw(q)}')
        L.append(f'v_and_b32 v{T+2*q+1}, 0xffff0000, {raw(q)}')
    for q in range(8):
        L.append(f'v_fma_f32 v{T+q}, v{T+q}, v{G+q}, v{Sx+q}')
    for q in range(4):
        L.append(f'v_cvt_pk_bf16_f32 {dst(q)}, v{T+2*q}, v{T+2*q+1}')
    return L

ACC = 16
WF, NWF = 88, 12
XB = 136
XR, XRING, XD = 16, 8, 7
GV, TT, XO, MT = 80, 112, 120, 136
NSLOT, STAGE = 5, 18432
XOFF1 = NSLOT*STAGE
GTOFF = XOFF1 + 6*8192
K1_LDS = GTOFF + 4608
def acc(nb, tb): return ACC + (nb*2 + tb)*4

def k1_consumer(a, swap):
    nks = 18
    ltok, xtok = {}, {}
    def wreg(z): return WF + (z % NWF)*4
    def wread(z):
        ks, nb = divmod(z, 9)
        st = ks // 2; slot = st % NSLOT
        base = 6 + slot // 3
        off = (slot % 3)*STAGE + ((ks & 1)*9 + nb)*1024
        ltok[z] = a.lds(f'ds_read_b128 {r4(wreg(z))}, v{base} offset:{off}')
    def xread(ks):
        for tb in range(2):
            xtok[ks] = a.lds(f'ds_read_b128 {r4(XB+(ks & 1)*8+tb*4)}, v{9+tb} offset:{(ks % 6)*8192}')
    a.I('s_barrier')
    stamp(a, 1)
    xread(0)
    for z in range(9): wread(z)
    nz = 9
    for ks in range(nks):
        if ks == 6: stamp(a, 4)
        if ks & 1 and ks + 1 < nks: a.I('s_barrier')
        if ks + 1 < nks: xread(ks + 1)
        xb = XB + (ks & 1)*8
        for nb in range(9):
            z = ks*9 + nb
            if nb == 0: a.wait(lg=max(ltok[z+2], xtok[ks]))
            elif nb % 3 == 0: a.wait(lg=ltok[z+2])
            wf = wreg(z)
            for tb in range(2):
                c = '0' if ks == 0 else r4(acc(nb, tb))
                if swap: a.I(f'v_mfma_f32_16x16x32_bf16 {r4(acc(nb,tb))}, {r4(xb+tb*4)}, {r4(wf)}, {c}')
                else:    a.I(f'v_mfma_f32_16x16x32_bf16 {r4(acc(nb,tb))}, {r4(wf)}, {r4(xb+tb*4)}, {c}')
            if nz < nks*9: wread(nz); nz += 1
    stamp(a, 2)
    a.I('s_barrier')
    stamp(a, 3)

def k1_loader(a):
    nst = 9
    wtok = {}
    def W(st):
        slot = st % NSLOT
        a.I(f's_add_u32 m0, s23, {slot*STAGE}'); a.I(f's_mov_b32 s24, {st*STAGE}')
        a.I('s_mov_b32 exec_hi, 0'); a.vmem('buffer_load_dwordx4 v3, s[8:11], s24 offen lds'); a.I('s_mov_b32 exec_hi, -1')
        for o in (512, 1536, 2560, 3584): a.vmem(f'buffer_load_dwordx4 v3, s[8:11], s24 offen offset:{o} lds')
        wtok[st] = a.vm
    W(0); W(1); W(2)
    a.I('s_barrier')
    a.wait(vm=wtok[0]); a.I('s_barrier')
    for s in range(1, nst):
        if s + 2 < nst: W(s+2)
        a.wait(vm=wtok[s]); a.I('s_barrier')
    a.I('s_barrier')
    a.I('s_endpgm')

def k1_producer(a):
    nst = 9
    XR4, NRING = 16, 4
    xtok, gtok = {}, {}
    def xload_items(s):
        sl = s % NRING
        L = []
        for t in range(4):
            def f(t=t):
                a.I(f's_mov_b32 s25, {s*2048 + t*KS*1024}')
                a.vmem(f'buffer_load_dwordx4 {r4(XR4+sl*16+4*t)}, v4, s[12:15], s25 offen')
                if t == 3: xtok[s] = a.vm
            L.append(f)
        return L
    def gread(s):
        for q in range(4): a.lds(f'ds_read_b128 {r4(GV+(s & 1)*16+4*q)}, v8 offset:{s*512+q*16}')
        gtok[s] = a.lg
    def produce(s):
        vm_items = xload_items(s + 3) if s + 3 < nst else []
        sl = s % NRING; G = GV + (s & 1)*16
        a.wait(vm=xtok[s], lg=gtok[s])
        for t in range(4):
            raw = XR4+sl*16+4*t; dst = XO+(t & 1)*4
            for q in range(4):
                a.I(f'v_lshlrev_b32 v{TT+2*q}, 16, v{raw+q}'); a.I(f'v_and_b32 v{TT+2*q+1}, 0xffff0000, v{raw+q}')
            for q in range(8): a.I(f'v_fma_f32 v{TT+q}, v{TT+q}, v{G+q}, v{G+8+q}')
            for q in range(4): a.I(f'v_cvt_pk_bf16_f32 v{dst+q}, v{TT+2*q}, v{TT+2*q+1}')
            a.lds(f'ds_write_b128 v9, {r4(dst)} offset:{((2*s) % 6)*8192 + t*1024}')
            if vm_items: vm_items.pop(0)()
        if s + 2 < nst: gread(s + 2)
    srd(a, 16, 4, 5, WS.MODP_SZ, WS.MODP)
    a.I('v_lshlrev_b32 v11, 2, v10')
    for i in range(3):
        for z, idx in enumerate((0, 3456, 576, 3456+576)):
            a.I(f's_mov_b32 s26, {(idx+256*i)*4}'); a.vmem(f'buffer_load_dword v{MT+4*i+z}, v11, s[16:19], s26 offen')
    mtok = a.vm
    for s in range(3):
        for f in xload_items(s): f()
    a.wait(vm=mtok)
    for i in range(3):
        b = MT + 4*i
        a.I(f'v_add_f32 v{b}, v{b}, v{b+1}'); bf16_round_f32(a, f'v{b}', f'v{b}')
        a.I(f'v_add_f32 v{b+2}, v{b+2}, v{b+3}'); bf16_round_f32(a, f'v{b+2}', f'v{b+2}')
        a.I(f'v_add_f32 v{b+2}, 1.0, v{b+2}'); bf16_round_f32(a, f'v{b+2}', f'v{b+2}')
        a.I(f'v_mul_f32 v{b}, s31, v{b}'); a.I(f'v_mul_f32 v{b+2}, s31, v{b+2}')
        a.I(f'v_add_u32 v12, {256*i}, v10')
        a.I('v_lshrrev_b32 v13, 5, v12'); a.I('v_lshlrev_b32 v13, 2, v13'); a.I('v_bfe_u32 v14, v12, 2, 2'); a.I('v_add_u32 v13, v13, v14')
        a.I('v_bfe_u32 v14, v12, 4, 1'); a.I('v_lshlrev_b32 v14, 2, v14'); a.I('v_and_b32 v15, 3, v12'); a.I('v_add_u32 v14, v14, v15')
        a.I('v_lshlrev_b32 v15, 6, v13'); a.I('v_lshl_add_u32 v15, v14, 2, v15'); a.I(f'v_add_u32 v15, {GTOFF}, v15')
        if i == 2:
            a.I('v_cmp_gt_u32 vcc, 64, v10'); a.I('s_and_saveexec_b64 s[36:37], vcc')
        a.lds(f'ds_write_b32 v15, v{b+2}'); a.lds(f'ds_write_b32 v15, v{b} offset:32')
        if i == 2: a.I('s_mov_b64 exec, s[36:37]')
    a.I('s_waitcnt lgkmcnt(0)'); a.I('s_barrier')
    gread(0); gread(1)
    for s in range(nst):
        produce(s)
        a.wait(lg=a.lg - (4 if s + 2 < nst else 0)); a.I('s_barrier')
    a.I('s_barrier')
    a.I('s_endpgm')

def k1():
    import k0 as K0
    a = Asm()
    a.I(f's_cmp_ge_u32 s2, {192+K0.NPREP}'); a.I('s_cbranch_scc1 K1_END')
    a.I(f's_load_dwordx2 s[4:5], s[0:1], {A_WS}')
    a.I('s_cmp_ge_u32 s2, 192'); a.I('s_cbranch_scc1 K1_PREP')
    wave_setup(a)
    a.I('s_and_b32 s33, s20, 3')
    a.I('s_mul_i32 s23, s33, 4608'); a.I('v_add_u32 v3, s23, v2')
    a.I('v_mov_b32 v6, v2'); a.I(f'v_add_u32 v7, {3*STAGE}, v2')
    a.I('v_lshrrev_b32 v8, 4, v1'); a.I('v_lshlrev_b32 v8, 6, v8'); a.I(f'v_add_u32 v8, {GTOFF}, v8')
    a.I('s_lshl_b32 s26, s33, 11'); a.I(f's_add_u32 s26, s26, {XOFF1}'); a.I('v_add_u32 v9, s26, v2'); a.I('v_add_u32 v10, 1024, v9')
    a.I('s_and_b32 s26, s2, 7'); a.I('s_lshr_b32 s27, s2, 3')
    a.I('s_lshr_b32 s21, s26, 1'); a.I('s_lshl_b32 s21, s21, 2'); a.I('s_and_b32 s28, s27, 3'); a.I('s_add_u32 s21, s21, s28')
    a.I('s_and_b32 s22, s26, 1'); a.I('s_mul_i32 s22, s22, 6'); a.I('s_lshr_b32 s28, s27, 2'); a.I('s_add_u32 s22, s22, s28')
    a.I('s_lshl_b32 s26, s21, 3'); a.I('s_lshl_b32 s27, s33, 1'); a.I('s_add_u32 s29, s26, s27')
    a.I('s_lshl_b32 s34, s21, 2'); a.I('s_add_u32 s34, s34, s33')
    a.I('s_cmp_lt_u32 s20, 4'); a.I('s_cbranch_scc1 K1_CONS')
    a.I('s_waitcnt lgkmcnt(0)')
    a.I('s_cmp_lt_u32 s20, 8'); a.I('s_cbranch_scc1 K1_PROD')
    a.I(f's_mul_i32 s26, s22, {18*9*1024}')
    a.I('s_add_u32 s8, s4, s26'); a.I('s_addc_u32 s9, s5, 0')
    a.I(f's_add_u32 s8, s8, {WS.WQKVF}'); a.I('s_addc_u32 s9, s9, 0')
    a.I(f's_mov_b32 s10, {18*9*1024}'); a.I('s_mov_b32 s11, 0x00020000')
    k1_loader(a)
    a.label('K1_PROD')
    srd(a, 12, 4, 5, WS.NF_SZ, WS.NF)
    a.I('s_and_b32 s36, s20, 1'); a.I('s_bfe_u32 s37, s20, 0x10001')
    a.I('s_lshl_b32 s26, s21, 3'); a.I('s_lshl_b32 s27, s37, 2'); a.I('s_add_u32 s26, s26, s27')
    a.I(f's_mul_i32 s27, s26, {KS*1024}'); a.I('s_lshl_b32 s28, s36, 10'); a.I('s_add_u32 s27, s27, s28'); a.I('v_add_u32 v4, s27, v2')
    a.I('s_lshl_b32 s28, s36, 8'); a.I('v_add_u32 v8, s28, v8')
    a.I('s_lshl_b32 s27, s37, 12'); a.I('s_lshl_b32 s28, s36, 13'); a.I('s_add_u32 s27, s27, s28'); a.I(f's_add_u32 s27, s27, {XOFF1}'); a.I('v_add_u32 v9, s27, v2')
    a.I('s_mov_b32 s31, 1.0'); a.I('s_cmp_lt_u32 s22, 4'); a.I(f's_cselect_b32 s31, {hexf(QSCALE)}, s31')
    a.I('v_subrev_u32 v10, 256, v0')
    k1_producer(a)
    a.label('K1_CONS')
    a.I('s_waitcnt lgkmcnt(0)')
    a.I('s_barrier')
    a.I('s_cmp_ge_u32 s22, 8'); a.I('s_cbranch_scc1 K1_V')
    k1_consumer(a, False)
    a.I('v_and_b32 v10, 15, v1'); a.I('v_lshrrev_b32 v13, 4, v1')
    a.I('s_mov_b32 s26, s34')
    a.I('s_and_b32 s30, s22, 3'); a.I('s_lshl_b32 s30, s30, 3')
    ST = 88
    def qk_store(img_off, img_sz, tilebytes, hi_off):
        srd(a, 16, 4, 5, img_sz, img_off)
        a.I('v_lshrrev_b32 v14, 1, v13'); a.I('v_add_u32 v14, s30, v14'); a.I('v_lshlrev_b32 v14, 6, v14'); a.I('v_add_u32 v14, s26, v14')
        a.I(f's_movk_i32 s31, {tilebytes}'); a.I('v_mul_lo_u32 v14, v14, s31')
        a.I('v_and_b32 v15, 1, v13'); a.I('v_lshl_add_u32 v14, v15, 9, v14'); a.I('v_lshl_add_u32 v14, v10, 4, v14')
        for tb in range(2):
            for p in range(4):
                d = ST + (tb*4+p)*4
                b0, b1 = acc(2*p, tb), acc(2*p+1, tb)
                a.I(f'v_cvt_pk_bf16_f32 v{d}, v{b0}, v{b0+1}'); a.I(f'v_cvt_pk_bf16_f32 v{d+1}, v{b0+2}, v{b0+3}')
                a.I(f'v_cvt_pk_bf16_f32 v{d+2}, v{b1}, v{b1+1}'); a.I(f'v_cvt_pk_bf16_f32 v{d+3}, v{b1+2}, v{b1+3}')
                a.I(f's_mov_b32 s31, {p*2*64*tilebytes}')
                a.vmem(f'buffer_store_dwordx4 {r4(d)}, v14, s[16:19], s31 offen offset:{tb*256} ' + os.environ.get('K1FLAG', 'sc1'))
        a.I('v_lshlrev_b32 v14, 1, v13'); a.I('v_add_u32 v14, s30, v14'); a.I('v_lshlrev_b32 v14, 6, v14'); a.I('v_add_u32 v14, s26, v14')
        a.I(f's_movk_i32 s31, {tilebytes}'); a.I('v_mul_lo_u32 v14, v14, s31'); a.I('v_lshl_add_u32 v14, v10, 2, v14')
        a.I(f's_mov_b32 s31, {64*tilebytes}')
        for tb in range(2):
            b = acc(8, tb); d = ST + 32 + tb*2
            a.I(f'v_cvt_pk_bf16_f32 v{d}, v{b}, v{b+1}'); a.I(f'v_cvt_pk_bf16_f32 v{d+1}, v{b+2}, v{b+3}')
            a.vmem(f'buffer_store_dword v{d}, v14, s[16:19], 0 offen offset:{hi_off+tb*64}')
            a.vmem(f'buffer_store_dword v{d+1}, v14, s[16:19], s31 offen offset:{hi_off+tb*64}')
    a.I('s_cmp_ge_u32 s22, 4'); a.I('s_cbranch_scc1 K1_K')
    qk_store(WS.QIMG, WS.QIMG_SZ, QT_BYTES, 1024)
    a.I('s_endpgm')
    a.label('K1_K')
    qk_store(WS.KVIMG, WS.KVIMG_SZ, KV_TILE, 1024)
    N0 = 88
    for p in range(4):
        for tb in range(2):
            b0, b1 = acc(2*p, tb), acc(2*p+1, tb)
            d = N0 + p*2 + tb
            a.I(f'v_mul_f32 v{d}, v{b0}, v{b0}')
            for v in [b0+1, b0+2, b0+3, b1, b1+1, b1+2, b1+3]: a.I(f'v_fmac_f32 v{d}, v{v}, v{v}')
    for p in range(4):
        for tb in range(2):
            d = N0 + p*2 + tb
            a.I(f'v_mov_b32 v9, v{d}'); a.I(f'v_permlane16_swap_b32 v{d}, v9'); a.I(f'v_add_f32 v{d}, v{d}, v9')
        a.I(f'v_max_f32 v{N0+16+p}, v{N0+p*2}, v{N0+p*2+1}')
    for e in range(2):
        for tb in range(2):
            b = acc(8, tb); d = N0 + 24 + e*2 + tb
            a.I(f'v_mul_f32 v{d}, v{b+2*e}, v{b+2*e}'); a.I(f'v_fmac_f32 v{d}, v{b+2*e+1}, v{b+2*e+1}')
        a.I(f'v_max_f32 v{N0+20+e}, v{N0+24+e*2}, v{N0+25+e*2}')
    for q in range(6):
        d = N0 + 16 + q
        for dpp in ('quad_perm:[1,0,3,2]', 'quad_perm:[2,3,0,1]', 'row_half_mirror', 'row_mirror'):
            a.I(f'v_max_f32_dpp v{d}, v{d}, v{d} {dpp} row_mask:0xf bank_mask:0xf')
    a.I('s_lshl_b32 s28, s20, 6')
    a.I('v_lshrrev_b32 v9, 5, v1'); a.I('v_lshlrev_b32 v9, 3, v9'); a.I('v_add_u32 v9, s28, v9')
    a.I('v_lshlrev_b32 v11, 4, v13'); a.I('v_add_u32 v11, s28, v11')
    for p in range(4): a.I(f'ds_write_b32 v9, v{N0+16+p} offset:{p*16}')
    for e in range(2): a.I(f'ds_write_b32 v11, v{N0+20+e} offset:{e*8+4}')
    a.I('v_and_b32 v12, 7, v1'); a.I('v_lshlrev_b32 v12, 3, v12'); a.I('v_add_u32 v12, s28, v12')
    a.I(f'ds_read_b64 {r2(N0+30)}, v12'); a.I('s_waitcnt lgkmcnt(0)')
    a.I(f'v_add_f32 v9, v{N0+30}, v{N0+31}')
    srd(a, 16, 4, 5, WS.KMAX_SZ, WS.KMAX)
    a.I('v_and_b32 v14, 7, v1'); a.I('v_add_u32 v14, s30, v14'); a.I('v_lshlrev_b32 v14, 6, v14'); a.I('v_add_u32 v14, s26, v14'); a.I('v_lshlrev_b32 v14, 2, v14')
    a.I('s_mov_b64 exec, 0xff')
    a.I('buffer_store_dword v9, v14, s[16:19], 0 offen')
    a.I('s_endpgm')
    a.label('K1_V')
    a.I('v_bfe_u32 v11, v1, 3, 1'); a.I('v_lshlrev_b32 v11, 10, v11')
    a.I('v_and_b32 v12, 0x30, v1'); a.I('v_and_b32 v13, 7, v1'); a.I('v_add_u32 v12, v12, v13'); a.I('v_lshl_add_u32 v11, v12, 4, v11')
    a.I('s_lshl_b32 s26, s33, 11'); a.I(f's_add_u32 s26, s26, {XOFF1}'); a.I('v_add_u32 v9, s26, v11'); a.I('v_add_u32 v10, 128, v9')
    k1_consumer(a, True)
    a.I('v_and_b32 v10, 15, v1'); a.I('v_lshrrev_b32 v13, 4, v1')
    a.I('s_mov_b32 s26, s34')
    srd(a, 16, 4, 5, WS.KVIMG_SZ, WS.KVIMG)
    a.I('s_and_b32 s30, s22, 3'); a.I('s_lshl_b32 s30, s30, 3')
    a.I('s_lshl_b32 s31, s30, 6'); a.I('s_add_u32 s31, s31, s26'); a.I(f's_mul_i32 s31, s31, {KV_TILE}')
    a.I(f'v_mul_u32_u24 v14, {DV}, v13'); a.I('v_add_u32 v15, v14, v10'); a.I('v_lshlrev_b32 v15, 4, v15')
    for nb in range(9):
        d = 88 + (nb % 6)*4
        b0, b1 = acc(nb, 0), acc(nb, 1)
        a.I(f'v_cvt_pk_bf16_f32 v{d}, v{b0}, v{b0+1}'); a.I(f'v_cvt_pk_bf16_f32 v{d+1}, v{b0+2}, v{b0+3}')
        a.I(f'v_cvt_pk_bf16_f32 v{d+2}, v{b1}, v{b1+1}'); a.I(f'v_cvt_pk_bf16_f32 v{d+3}, v{b1+2}, v{b1+3}')
        if nb < 8:
            a.I(f's_add_u32 s32, s31, {nb*64*KV_TILE}')
            a.vmem(f'buffer_store_dwordx4 {r4(d)}, v15, s[16:19], s32 offen offset:{VT_OFF} ' + os.environ.get('K1FLAG', 'sc1'))
        else:
            a.I('v_lshrrev_b32 v9, 1, v10'); a.I(f's_mov_b32 s32, {64*KV_TILE}'); a.I('v_mul_lo_u32 v9, v9, s32')
            a.I('v_and_b32 v11, 1, v10'); a.I('v_add_u32 v11, v11, v14'); a.I('v_add_u32 v11, 16, v11'); a.I('v_lshl_add_u32 v9, v11, 4, v9')
            a.vmem(f'buffer_store_dwordx4 {r4(d)}, v9, s[16:19], s31 offen offset:{VT_OFF}')
    a.I('s_endpgm')
    a.label('K1_PREP')
    a.I('s_sub_u32 s3, s2, 192')
    K0.prep_body(a, 's3', 'K1P')
    a.label('K1_END')
    a.I('s_endpgm')
    return kernel_text('k1_kernel', a, 160), (192+K0.NPREP, 768, K1_LDS)

def k3():
    a = Asm()
    A3 = 16
    def ac(nb, tb): return A3 + (nb*4+tb)*4
    NG3, NU3 = 192, 64
    a.I(f's_cmp_ge_u32 s2, {NG3+NU3}'); a.I('s_cbranch_scc1 K3_END')
    a.I(f's_load_dwordx2 s[4:5], s[0:1], {A_WS}')
    wave_setup(a)
    a.I(f's_cmp_ge_u32 s2, {NG3}'); a.I('s_cbranch_scc1 K3_UT')
    a.I('s_and_b32 s21, s2, 7'); a.I('s_lshl_b32 s21, s21, 2'); a.I('s_bfe_u32 s26, s2, 0x20003'); a.I('s_add_u32 s21, s21, s26')
    a.I('s_lshr_b32 s22, s2, 5')
    a.I(f's_mul_i32 s27, s21, {4*KS*1024}'); a.I('s_lshl_b32 s28, s20, 10'); a.I('s_add_u32 s27, s27, s28')
    a.I('s_mul_i32 s29, s20, 6144')
    a.I('s_waitcnt lgkmcnt(0)')
    a.I(f's_mul_i32 s26, s22, {18*6*1024}')
    a.I('s_add_u32 s8, s4, s26'); a.I('s_addc_u32 s9, s5, 0')
    a.I(f's_add_u32 s8, s8, {WS.WOF}'); a.I('s_addc_u32 s9, s9, 0')
    a.I(f's_mov_b32 s10, {18*6*1024}'); a.I('s_mov_b32 s11, 0x00020000')
    srd(a, 12, 4, 5, WS.OF_SZ, WS.OF)
    toks = {}
    FR = 112
    def wreg(i, nb): return FR + (i % 3)*40 + nb*4
    def xreg(i, tb): return FR + (i % 3)*40 + 24 + tb*4
    def kload(i):
        for tb in range(4):
            a.I(f's_add_u32 s30, s27, {i*4096 + tb*KS*1024}')
            a.vmem(f'buffer_load_dwordx4 {r4(xreg(i, tb))}, v2, s[12:15], s30 offen')
        for nb in range(6):
            if nb % 4 == 0: a.I(f's_add_u32 s30, s29, {i*24576 + nb*1024}')
            a.vmem(f'buffer_load_dwordx4 {r4(wreg(i, nb))}, v2, s[8:11], s30 offen offset:{(nb % 4)*1024}')
            toks[(i, nb)] = a.vm
    for i in range(3): kload(i)
    stamp(a, 0)
    GA, G2R, XRS = 192, 216, 240
    for i in range(5):
        for nb in range(6):
            if nb % 3 == 0: a.wait(vm=toks[(i, nb+2)])
            for tb in range(4):
                c = '0' if i == 0 else r4(ac(nb, tb))
                a.I(f'v_mfma_f32_16x16x32_bf16 {r4(ac(nb,tb))}, {r4(wreg(i, nb))}, {r4(xreg(i, tb))}, {c}')
        if i == 0: kload(3)
        if i == 1: kload(4)
        if i == 2:
            srd(a, 16, 4, 5, WS.MOD_SZ, WS.MOD); srd(a, 24, 4, 5, WS.XF_SZ, WS.XF); srd(a, 48, 4, 5, WS.G2_SZ, WS.G2)
            a.I('s_mul_i32 s32, s22, 6')
            a.I('v_lshrrev_b32 v9, 4, v1'); a.I('v_lshlrev_b32 v9, 4, v9')
            a.I('s_lshl_b32 s52, s32, 6'); a.I(f's_add_u32 s33, s52, {2*576*4}')
            for q in range(6): a.vmem(f'buffer_load_dwordx4 {r4(GA+4*q)}, v9, s[16:19], s33 offen offset:{q*64}')
            for q in range(6): a.vmem(f'buffer_load_dwordx4 {r4(G2R+4*q)}, v9, s[48:51], s52 offen offset:{q*64}')
            a.I('s_lshl_b32 s34, s21, 2'); a.I('s_add_u32 s34, s34, s20')
            a.I(f's_mul_i32 s35, s34, {KS*1024}'); a.I('s_mul_i32 s36, s22, 3072'); a.I('s_add_u32 s35, s35, s36'); a.I('v_add_u32 v10, s35, v2')
            for q in range(3): a.vmem(f'buffer_load_dwordx4 {r4(XRS+4*q)}, v10, s[24:27], 0 offen offset:{q*1024}')
    stamp(a, 2)
    a.I('s_mul_i32 s38, s20, 24576'); a.I('v_add_u32 v11, s38, v2')
    for nb in range(6):
        for tb in range(4): a.I(f'ds_write_b128 v11, {r4(ac(nb,tb))} offset:{(nb*4+tb)*1024}')
    a.I('s_waitcnt lgkmcnt(0)'); a.I('s_barrier')
    stamp(a, 3)
    a.I('s_lshl_b32 s38, s20, 10'); a.I('v_add_u32 v11, s38, v2'); a.I('v_add_u32 v12, 49152, v11')
    for nb in range(6):
        for wv in range(4):
            a.I(f'ds_read_b128 {r4(A3+nb*16+wv*4)}, v{11 + wv//2} offset:{(wv % 2)*24576 + nb*4096}')
    srd(a, 8, 4, 5, WS.X1F_SZ, WS.X1F); srd(a, 12, 4, 5, WS.X1G_SZ, WS.X1G)
    a.I('v_mov_b32 v13, 0'); a.I('v_mov_b32 v14, 0')
    a.I('s_waitcnt vmcnt(0) lgkmcnt(0)')
    for q in range(3):
        for e in range(2):
            nb = 2*q + e
            b = A3 + nb*16
            for r in range(4):
                a.I(f'v_add_f32 v{b+r}, v{b+r}, v{b+4+r}'); a.I(f'v_add_f32 v{b+8+r}, v{b+8+r}, v{b+12+r}')
            for r in range(4):
                a.I(f'v_add_f32 v{b+r}, v{b+r}, v{b+8+r}')
                x = XRS + 4*q + 2*e + r//2
                if r % 2 == 0: a.I(f'v_lshlrev_b32 v{b+4+r}, 16, v{x}')
                else: a.I(f'v_and_b32 v{b+4+r}, 0xffff0000, v{x}')
            for r in range(4): a.I(f'v_fma_f32 v{b+r}, v{b+r}, v{GA+4*nb+r}, v{b+4+r}')
            d = 112 + q*8 + 2*e
            a.I(f'v_cvt_pk_bf16_f32 v{d}, v{b}, v{b+1}'); a.I(f'v_cvt_pk_bf16_f32 v{d+1}, v{b+2}, v{b+3}')
            for z in range(2):
                a.I(f'v_lshlrev_b32 v{b+4+2*z}, 16, v{d+z}'); a.I(f'v_and_b32 v{b+5+2*z}, 0xffff0000, v{d+z}')
            for r in range(4):
                a.I(f'v_add_f32 v13, v13, v{b+4+r}'); a.I(f'v_fmac_f32 v14, v{b+4+r}, v{b+4+r}')
                a.I(f'v_mul_f32 v{b+8+r}, v{b+4+r}, v{G2R+4*nb+r}')
            a.I(f'v_cvt_pk_bf16_f32 v{d+4}, v{b+8}, v{b+9}'); a.I(f'v_cvt_pk_bf16_f32 v{d+5}, v{b+10}, v{b+11}')
        a.vmem(f'buffer_store_dwordx4 {r4(112+q*8)}, v10, s[8:11], 0 offen offset:{q*1024}')
        a.vmem(f'buffer_store_dwordx4 {r4(116+q*8)}, v10, s[12:15], 0 offen offset:{q*1024}')
    for r in ('v13', 'v14'):
        a.I(f'v_mov_b32 v15, {r}'); a.I(f'v_permlane16_swap_b32 {r}, v15'); a.I(f'v_add_f32 {r}, {r}, v15')
        a.I(f'v_mov_b32 v15, {r}'); a.I(f'v_permlane32_swap_b32 {r}, v15'); a.I(f'v_add_f32 {r}, {r}, v15')
    a.I('v_mov_b32 v140, v13'); a.I('v_mov_b32 v141, v14')
    srd(a, 8, 4, 5, WS.STAT2_SZ, WS.STAT2)
    a.I(f's_mul_i32 s36, s34, {16*48}'); a.I('s_lshl_b32 s37, s22, 3'); a.I('s_add_u32 s36, s36, s37')
    a.I('v_and_b32 v15, 15, v1'); a.I('v_mul_u32_u24 v15, 48, v15')
    a.I('v_cmp_gt_u32 vcc, 16, v1'); a.I('s_and_saveexec_b64 s[46:47], vcc')
    a.vmem('buffer_store_dwordx2 v[140:141], v15, s[8:11], s36 offen')
    a.I('s_endpgm')
    a.label('K3_UT')
    a.I(f's_sub_u32 s21, s2, {NG3}'); a.I('s_lshl_b32 s21, s21, 2'); a.I('s_add_u32 s21, s21, s20')
    a.I('v_and_b32 v3, 15, v1'); a.I('v_lshrrev_b32 v4, 4, v1')
    a.I('s_waitcnt lgkmcnt(0)')
    srd(a, 8, 4, 5, WS.W1S_SZ, WS.W1S); srd(a, 12, 4, 5, WS.MOD_SZ, WS.MOD); srd(a, 16, 4, 5, WS.UT1_SZ, WS.UT1); srd(a, 28, 4, 5, WS.G2_SZ, WS.G2)
    a.I('v_lshlrev_b32 v5, 4, v4')
    def fload(fbg_s):
        sdiv(a, 's22', fbg_s, 3, 287); a.I('s_mul_i32 s23, s22, 3'); a.I(f's_sub_u32 s23, {fbg_s}, s23')
        a.I('s_mul_i32 s24, s22, 54'); a.I('s_add_u32 s24, s24, s23'); a.I('s_lshl_b32 s24, s24, 10')
        for ks in range(18):
            a.I(f's_add_u32 s25, s24, {ks*3072}')
            a.vmem(f'buffer_load_dwordx4 {r4(160+4*ks)}, v2, s[8:11], s25 offen')
    for z in range(144): a.I(f'v_mov_b32 v{16+z}, 0')
    a.I('s_mov_b32 s40, 0x00010001'); a.I('s_mov_b32 s41, 0x00010001'); a.I('s_mov_b32 s42, 0x00020002'); a.I('s_mov_b32 s43, 0x00020002')
    a.I('s_mov_b64 exec, s[40:41]')
    for ks in range(18):
        a.I(f's_mov_b32 s25, {ks*128}')
        a.vmem(f'buffer_load_dwordx4 {r4(16+8*ks)}, v5, s[28:31], s25 offen'); a.vmem(f'buffer_load_dwordx4 {r4(20+8*ks)}, v5, s[28:31], s25 offen offset:64')
    a.I('s_mov_b64 exec, s[42:43]')
    a.I('s_waitcnt vmcnt(30)')
    for ks in range(18):
        a.I(f's_mov_b32 s25, {ks*128 + 1728*4}')
        a.vmem(f'buffer_load_dwordx4 {r4(16+8*ks)}, v5, s[12:15], s25 offen'); a.vmem(f'buffer_load_dwordx4 {r4(20+8*ks)}, v5, s[12:15], s25 offen offset:64')
        if ks == 8: a.I('s_waitcnt vmcnt(30)')
    a.I('s_mov_b64 exec, -1')
    a.I('s_waitcnt vmcnt(20)')
    fload('s21')
    a.I('s_waitcnt vmcnt(18)')
    for ks in range(18):
        b = 16 + 8*ks
        for q in range(4): a.I(f'v_cvt_pk_bf16_f32 v{b+q}, v{b+2*q}, v{b+2*q+1}')
    a.I(f's_mov_b32 s27, {F*4}'); a.I('v_mul_lo_u32 v7, v3, s27'); a.I('v_lshl_add_u32 v7, v4, 4, v7')
    a.label('K3_UTL')
    a.I('s_waitcnt vmcnt(0)')
    for ks in range(18):
        a.I(f'v_mfma_f32_16x16x32_bf16 v[8:11], {r4(160+4*ks)}, {r4(16+8*ks)}, {"0" if ks == 0 else "v[8:11]"}')
    a.I('s_lshl_b32 s25, s21, 6')
    a.I('v_cmp_gt_u32 vcc, 2, v3'); a.I('s_and_saveexec_b64 s[46:47], vcc')
    a.I('buffer_store_dwordx4 v[8:11], v7, s[16:19], s25 offen')
    a.I('s_mov_b64 exec, s[46:47]')
    a.I('s_add_u32 s21, s21, 256'); a.I('s_cmp_ge_u32 s21, 288'); a.I('s_cbranch_scc1 K3_END')
    fload('s21')
    a.I('s_branch K3_UTL')
    a.label('K3_END')
    a.I('s_endpgm')
    return kernel_text('k3_kernel', a, 252), (NG3+NU3, 256, 4*24576)

AC4 = 16
RING = 64
NR = 18
BF4 = 136
XOFF, HOFF, UTL, STL, CNT = 0, 73728, 147456, 152064, 152576
def k4():
    a = Asm()
    a.I('s_cmp_ge_u32 s2, 256'); a.I('s_cbranch_scc1 K4_END')
    a.I(f's_load_dwordx2 s[4:5], s[0:1], {A_WS}')
    wave_setup(a)
    a.I('s_and_b32 s26, s2, 7'); a.I('s_lshr_b32 s27, s2, 3')
    a.I('s_and_b32 s22, s26, 3'); a.I('s_lshl_b32 s22, s22, 1'); a.I('s_and_b32 s28, s27, 1'); a.I('s_add_u32 s22, s22, s28')
    a.I('s_lshr_b32 s21, s26, 2'); a.I('s_lshl_b32 s21, s21, 4'); a.I('s_lshr_b32 s28, s27, 1'); a.I('s_add_u32 s21, s21, s28')
    a.I('s_and_b32 s28, s20, 3'); a.I('s_lshl_b32 s29, s21, 2'); a.I('s_add_u32 s29, s29, s28'); a.I('s_mul_i32 s29, s29, 18')
    a.I('s_lshr_b32 s38, s20, 2'); a.I('s_add_u32 s29, s29, s38'); a.I('s_lshl_b32 s29, s29, 10')
    a.I('s_lshl_b32 s30, s20, 10')
    a.I('s_mul_i32 s31, s22, 12'); a.I('s_add_u32 s31, s31, s20'); a.I(f's_mul_i32 s31, s31, {54*1024}')
    a.I('v_and_b32 v8, 15, v1'); a.I('v_mul_u32_u24 v9, 48, v8')
    a.I(f'v_mov_b32 v10, {CNT}'); a.I('v_mov_b32 v11, 0'); a.I('ds_write_b32 v10, v11'); a.I('ds_write_b32 v10, v11 offset:4'); a.I('ds_write_b32 v10, v11 offset:8'); a.I('ds_write_b32 v10, v11 offset:12'); a.I('ds_write_b32 v10, v11 offset:16'); a.I('ds_write_b32 v10, v11 offset:20')
    a.I('s_waitcnt lgkmcnt(0)')
    srd(a, 40, 4, 5, WS.STAT2_SZ, WS.STAT2)
    a.I('s_cmp_ge_u32 s20, 4'); a.I('s_cbranch_scc1 K4_NS0')
    a.I('s_lshl_b32 s35, s21, 2'); a.I('s_add_u32 s35, s35, s20'); a.I(f's_mul_i32 s35, s35, {16*48}')
    for q in range(3): a.I(f'buffer_load_dwordx4 {r4(AC4+4*q)}, v9, s[40:43], s35 offen offset:{q*16}')
    a.vm -= 3
    a.label('K4_NS0')
    srd(a, 16, 4, 5, WS.X1G_SZ, WS.X1G); srd(a, 8, 4, 5, WS.W1S_SZ, WS.W1S)
    xt = []
    def xdma(i):
        a.I(f's_add_u32 m0, s30, {i*12*1024}'); a.I(f's_add_u32 s34, s29, {i*3*1024}')
        xt.append(a.vmem('buffer_load_dwordx4 v2, s[16:19], s34 offen lds'))
    wt = {}; wstate = {}
    def wissue(q):
        if q >= 108 or q in wt: return
        sl = q % NR
        off = (q % 54)*1024; srdn = 8 if q < 54 else 12
        key = (srdn, off & ~4095)
        if wstate.get('k') != key:
            a.I(f's_add_u32 s33, s31, {off & ~4095}'); wstate['k'] = key
        if 'now' in os.environ.get('K4A', '') and q >= 18:
            wt[q] = a.vm; return
        wt[q] = a.vmem(f'buffer_load_dwordx4 {r4(RING+4*sl)}, v2, s[{srdn}:{srdn+3}], s33 offen offset:{off & 4095}')
    xdma(0); xdma(1)
    for q in range(6): wissue(q)
    srd(a, 12, 4, 5, WS.W2S_SZ, WS.W2S); srd(a, 24, 4, 5, WS.UT1_SZ, WS.UT1)
    a.I('s_cmp_lt_u32 s20, 4'); a.I('s_cbranch_scc1 K4_PA'); a.I('s_cmp_lt_u32 s20, 8'); a.I('s_cbranch_scc1 K4_PB')
    a.I('s_setprio 1' if 'noprio' not in os.environ.get('K4V', '') else 's_nop 0'); a.I('s_branch K4_PD')
    a.label('K4_PB'); a.I('s_setprio 2' if 'noprio' not in os.environ.get('K4V', '') else 's_nop 0'); a.I('s_branch K4_PD')
    a.label('K4_PA'); a.I('s_setprio 3' if 'noprio' not in os.environ.get('K4V', '') else 's_nop 0')
    a.label('K4_PD')
    tok = {}
    def late_loads():
        for i in range(2, 6): xdma(i)
        a.I('s_mul_i32 s34, s20, 384'); a.I(f's_add_u32 m0, s34, {UTL}')
        a.I('s_cmp_ge_u32 s20, 6'); a.I(f's_cselect_b32 s35, {F*4 - 2304}, 0'); a.I('s_add_u32 s35, s35, s34')
        a.I('s_mul_i32 s36, s22, 2304'); a.I('s_add_u32 s35, s35, s36')
        a.I('s_mov_b64 exec, 0xffffff'); a.vmem('buffer_load_dwordx4 v2, s[24:27], s35 offen lds'); a.I('s_mov_b64 exec, -1')
        tok['ut'] = a.vm
    stamp(a, 0)
    a.I('v_mov_b32 v3, v2'); a.I('v_add_u32 v4, 36864, v2'); a.I(f'v_add_u32 v5, {HOFF}, v2'); a.I(f'v_add_u32 v6, {HOFF+36864}, v2')
    btok = {}
    def bread(kind, ks, st):
        base = (3 if kind == 'x' else 5) + (ks // 9)
        for tb in range(4):
            if 'nold' in os.environ.get('K4A', '') and ks > 1:
                btok[(kind, ks, tb)] = a.lg; continue
            btok[(kind, ks, tb)] = a.lds(f'ds_read_b128 {r4(BF4+st*16+tb*4)}, v{base} offset:{((ks % 9)*4+tb)*1024}')
    nxt_w = [6]
    st8 = {'q': 0}
    def pump():
        nis = 0
        while nxt_w[0] < min(st8['q'] + NR, 108) and nis < 2:
            wissue(nxt_w[0]); nxt_w[0] += 1; nis += 1
    def gemm(kind, hooks={}):
        for ks in range(18):
            cur = ks % 2
            if ks in hooks:
                lg0 = a.lg
                hooks[ks]()
                a.lg = lg0
            if ks + 1 < 18: bread(kind, ks+1, 1-cur)
            q = st8['q']
            a.wait(vm=wt[q+2], lg=btok[(kind, ks, 3)])
            for fb in range(3):
                for tb in range(4):
                    d = r4(AC4+(fb*4+tb)*4)
                    a.I(f'v_mfma_f32_16x16x32_bf16 {d}, {r4(RING+4*(st8["q"] % NR))}, {r4(BF4+cur*16+tb*4)}, {"0" if ks == 0 else d}')
                st8['q'] += 1
                pump()
    a.wait(vm=xt[1])
    a.I('s_cmp_ge_u32 s20, 4'); a.I('s_cbranch_scc1 K4_NS1')
    b = AC4
    for z in range(1, 6):
        a.I(f'v_add_f32 v{b}, v{b}, v{b+2*z}'); a.I(f'v_add_f32 v{b+1}, v{b+1}, v{b+2*z+1}')
    a.I(f'v_mul_f32 v{b}, {hexf(1.0/576)}, v{b}'); a.I(f'v_mul_f32 v{b+1}, {hexf(1.0/576)}, v{b+1}')
    a.I(f'v_fma_f32 v{b+1}, -v{b}, v{b}, v{b+1}'); a.I(f'v_max_f32 v{b+1}, 0, v{b+1}'); a.I(f'v_add_f32 v{b+1}, {hexf(1e-5)}, v{b+1}')
    a.I(f'v_rsq_f32 v{b+1}, v{b+1}')
    a.I(f'v_mul_f32 v{b+2}, {hexf(LOG2E)}, v{b+1}'); a.I(f'v_mul_f32 v{b+3}, v{b+2}, v{b}')
    a.I('v_lshlrev_b32 v8, 3, v8'); a.I('s_lshl_b32 s35, s20, 7'); a.I(f's_add_u32 s35, s35, {STL}'); a.I('v_add_u32 v8, s35, v8')
    a.I(f'ds_write_b64 v8, {r2(b+2)}')
    a.label('K4_NS1')
    a.I('s_waitcnt lgkmcnt(0)'); a.I('s_barrier')
    stamp(a, 1)
    bread('x', 0, 0)
    def hx():
        for i in range(2, 6): pass
    def gate():
        L = a.newlabel('K4_GATE')
        a.I('s_cmp_eq_u32 s38, 0'); a.I(f's_cbranch_scc1 {L}_D')
        a.I('s_lshl_b32 s36, s38, 2'); a.I(f's_add_u32 s36, s36, {CNT+8}'); a.I('v_mov_b32 v10, s36')
        a.label(L)
        a.I('ds_read_b32 v11, v10'); a.I('s_waitcnt lgkmcnt(0)'); a.I('v_readfirstlane_b32 s36, v11')
        a.I('s_cmp_ge_u32 s36, 4'); a.I(f's_cbranch_scc1 {L}_D'); a.I('s_sleep 4'); a.I(f's_branch {L}')
        a.label(f'{L}_D')
    def sig_g1():
        L = a.newlabel('K4_SIG')
        a.I('s_cmp_ge_u32 s38, 2'); a.I(f's_cbranch_scc1 {L}')
        a.I('s_lshl_b32 s36, s38, 2'); a.I(f's_add_u32 s36, s36, {CNT+12}'); a.I('v_mov_b32 v10, s36'); a.I('v_mov_b32 v11, 1')
        a.I('s_mov_b64 exec, 1'); a.I('ds_add_u32 v10, v11'); a.I('s_mov_b64 exec, -1')
        a.label(L)
    def sig_x():
        a.wait(vm=tok['ut'])
        a.I(f'v_mov_b32 v10, {CNT+20}'); a.I('v_mov_b32 v11, 1')
        a.I('s_mov_b64 exec, 1'); a.I('ds_add_u32 v10, v11'); a.I('s_mov_b64 exec, -1')
    def h1():
        L = a.newlabel('K4_H1')
        a.I('s_cmp_eq_u32 s38, 0'); a.I(f's_cbranch_scc1 {L}')
        lg0 = a.lg
        sig_x(); gate()
        a.label(L)
    def h4():
        L = a.newlabel('K4_H4')
        a.I('s_cmp_lg_u32 s38, 0'); a.I(f's_cbranch_scc1 {L}')
        sig_x()
        a.label(L)
    def h5():
        L = a.newlabel('K4_H5')
        a.I(f'v_mov_b32 v10, {CNT+20}')
        a.label(L)
        a.I('ds_read_b32 v11, v10'); a.I('s_waitcnt lgkmcnt(0)'); a.I('v_readfirstlane_b32 s36, v11')
        a.I('s_cmp_ge_u32 s36, 12'); a.I(f's_cbranch_scc1 {L}_D'); a.I('s_sleep 2'); a.I(f's_branch {L}')
        a.label(f'{L}_D')
    K4V = os.environ.get('K4V', 'nogate')
    if 'nogate' in K4V:
        def h1n():
            L = a.newlabel('K4_H1')
            a.I('s_cmp_eq_u32 s38, 0'); a.I(f's_cbranch_scc1 {L}')
            sig_x()
            a.label(L)
        gemm('x', hooks={0: late_loads, 1: h1n, 4: h4, 5: h5})
    else:
        gemm('x', hooks={0: late_loads, 1: h1, 4: h4, 5: h5, int(os.environ.get('K4SIG', '13')): sig_g1})
    stamp(a, 2)
    a.I('s_mul_i32 s35, s20, 3')
    a.I('v_lshrrev_b32 v14, 4, v1'); a.I('v_lshlrev_b32 v14, 4, v14'); a.I('s_mul_i32 s36, s20, 192'); a.I(f's_add_u32 s36, s36, {UTL}'); a.I('v_add_u32 v7, s36, v14')
    a.I('v_and_b32 v14, 15, v1'); a.I('v_lshlrev_b32 v14, 3, v14'); a.I(f'v_add_u32 v14, {STL}, v14')
    T0 = BF4
    for tb in range(4): a.I(f'ds_read_b64 {r2(T0+2*tb)}, v14 offset:{tb*128}')
    for fb in range(3):
        a.I(f'ds_read_b128 {r4(T0+8+fb*8)}, v7 offset:{fb*64}'); a.I(f'ds_read_b128 {r4(T0+12+fb*8)}, v7 offset:{fb*64+2304}')
    for fb in range(3):
        a.I(f's_add_u32 s36, s35, {fb}'); a.I('s_and_b32 s37, s36, 1'); a.I('s_lshr_b32 s36, s36, 1')
        a.I('s_lshl_b32 s36, s36, 12'); a.I('s_lshl_b32 s37, s37, 3'); a.I('s_add_u32 s36, s36, s37'); a.I(f'v_add_u32 v{7+fb}, s36, v5')
    a.I('s_waitcnt lgkmcnt(0)')
    for fb in range(3):
        U_, T_ = T0+8+fb*8, T0+12+fb*8
        for r in range(4): a.I(f'v_mul_f32 v{T_+r}, {hexf(LOG2E)}, v{T_+r}')
        for tb in range(4):
            b = AC4 + (fb*4+tb)*4
            if 'nosilu' not in os.environ.get('K4A', ''):
                for r in range(4): a.I(f'v_fma_f32 v{10+r}, -v{T0+2*tb+1}, v{U_+r}, v{T_+r}')
                for r in range(4): a.I(f'v_fma_f32 v{b+r}, v{b+r}, v{T0+2*tb}, v{10+r}')
                for r in range(4): a.I(f'v_exp_f32 v{10+r}, -v{b+r}')
                for r in range(4): a.I(f'v_add_f32 v{10+r}, 1.0, v{10+r}')
                for r in range(4): a.I(f'v_rcp_f32 v{10+r}, v{10+r}')
                for r in range(4): a.I(f'v_mul_f32 v{b+r}, v{b+r}, v{10+r}')
            a.I(f'v_cvt_pk_bf16_f32 v14, v{b}, v{b+1}'); a.I(f'v_cvt_pk_bf16_f32 v15, v{b+2}, v{b+3}')
            a.lds(f'ds_write_b64 v{7+fb}, v[14:15] offset:{tb*1024}')
    a.I('s_waitcnt lgkmcnt(0)')
    a.I('s_lshl_b32 s36, s38, 2'); a.I(f's_add_u32 s36, s36, {CNT}'); a.I('v_mov_b32 v10, s36'); a.I('v_mov_b32 v11, 1')
    a.I('s_mov_b64 exec, 1'); a.I('ds_add_u32 v10, v11'); a.I('s_mov_b64 exec, -1')
    a.I('s_setprio 0')
    stamp(a, 3)
    def poll(g):
        def f():
            L = a.newlabel('K4_POLL')
            a.I(f'v_mov_b32 v10, {CNT+4*g}')
            a.label(L)
            a.I('ds_read_b32 v11, v10'); a.I('s_waitcnt lgkmcnt(0)'); a.I('v_readfirstlane_b32 s36, v11')
            a.I('s_cmp_ge_u32 s36, 4'); a.I(f's_cbranch_scc1 {L}_D'); a.I('s_sleep 2'); a.I(f's_branch {L}')
            a.label(f'{L}_D')
        return f
    poll(0)()
    bread('h', 0, 0)
    gemm('h', hooks={5: poll(1), 11: poll(2)})
    stamp(a, 4)
    srd(a, 16, 4, 5, WS.PART_SZ, WS.PART)
    a.I('s_lshl_b32 s28, s22, 6'); a.I('s_lshl_b32 s29, s21, 1'); a.I('s_add_u32 s28, s28, s29'); a.I('s_mul_i32 s28, s28, 36')
    a.I('s_mul_i32 s29, s20, 3'); a.I('s_add_u32 s28, s28, s29'); a.I('s_lshl_b32 s28, s28, 10')
    for nb in range(3):
        for pr in range(2):
            b0, b1 = AC4+(nb*4+2*pr)*4, AC4+(nb*4+2*pr+1)*4
            d = RING + (nb*2+pr)*4
            a.I(f'v_cvt_pk_bf16_f32 v{d}, v{b0}, v{b0+1}'); a.I(f'v_cvt_pk_bf16_f32 v{d+1}, v{b0+2}, v{b0+3}')
            a.I(f'v_cvt_pk_bf16_f32 v{d+2}, v{b1}, v{b1+1}'); a.I(f'v_cvt_pk_bf16_f32 v{d+3}, v{b1+2}, v{b1+3}')
            a.I(f's_add_u32 s29, s28, {(pr*36+nb)*1024}')
            a.vmem(f'buffer_store_dwordx4 {r4(d)}, v2, s[16:19], s29 offen ' + os.environ.get('PARTFLAG', 'sc1'))
    a.label('K4_END')
    a.I('s_endpgm')
    return kernel_text('k4_kernel', a, 168), (256, 768, CNT + 64)

def k5():
    a = Asm()
    NWG = 64*18//4
    a.I(f's_cmp_ge_u32 s2, {NWG}'); a.I('s_cbranch_scc1 K5_END')
    a.I(f's_load_dwordx2 s[4:5], s[0:1], {A_WS}'); a.I(f's_load_dwordx2 s[6:7], s[0:1], {A_OUT}')
    wave_setup(a)
    a.I('s_lshl_b32 s21, s2, 2'); a.I('s_add_u32 s21, s21, s20')
    sdiv(a, 's22', 's21', 18, 1151)
    a.I('s_mul_i32 s23, s22, 18'); a.I('s_sub_u32 s23, s21, s23')
    a.I('s_mul_i32 s28, s22, 36'); a.I('s_lshl_b32 s29, s23, 1'); a.I('s_add_u32 s28, s28, s29'); a.I('s_lshl_b32 s28, s28, 10')
    a.I('v_lshrrev_b32 v3, 4, v1'); a.I('v_lshlrev_b32 v4, 4, v3')
    a.I('s_waitcnt lgkmcnt(0)')
    srd(a, 8, 4, 5, WS.PART_SZ, WS.PART)
    for j in range(8):
        a.vmem(f'buffer_load_dwordx4 {r4(16+8*j)}, v2, s[8:11], s28 offen')
        a.vmem(f'buffer_load_dwordx4 {r4(20+8*j)}, v2, s[8:11], s28 offen offset:1024')
        if j < 7: a.I(f's_add_u32 s28, s28, {64*36*1024}')
    srd(a, 12, 4, 5, WS.X1F_SZ, WS.X1F); srd(a, 16, 4, 5, WS.MOD_SZ, WS.MOD); srd(a, 24, 6, 7, S*D*2)
    a.I('s_mul_i32 s28, s22, 36'); a.I('s_add_u32 s28, s28, s23'); a.I('s_lshl_b32 s28, s28, 10')
    a.vmem('buffer_load_dwordx4 v[80:83], v2, s[12:15], s28 offen')
    a.I(f's_add_u32 s28, s28, {18*1024}')
    a.vmem('buffer_load_dwordx4 v[84:87], v2, s[12:15], s28 offen')
    a.I('s_lshl_b32 s28, s23, 7'); a.I(f's_add_u32 s28, s28, {5*576*4}')
    a.vmem('buffer_load_dwordx4 v[88:91], v4, s[16:19], s28 offen')
    a.vmem('buffer_load_dwordx4 v[92:95], v4, s[16:19], s28 offen offset:64')
    a.I('v_and_b32 v5, 15, v1'); a.I('v_mul_u32_u24 v5, 1152, v5')
    a.I('v_and_b32 v6, 1, v3'); a.I('v_lshl_add_u32 v5, v6, 5, v5'); a.I('v_lshrrev_b32 v6, 1, v3'); a.I('v_lshl_add_u32 v5, v6, 4, v5')
    a.I(f's_mul_i32 s28, s22, {32*1152}'); a.I('s_lshl_b32 s29, s23, 6'); a.I('s_add_u32 s28, s28, s29')
    for r in range(16): a.I(f'v_mov_b32 v{96+r}, 0')
    for j in range(8):
        a.I(f's_waitcnt vmcnt({18 - 2*j - 2 + 0})' if False else f's_waitcnt vmcnt({max(0, 20 - 2*(j+1))})')
        for e in range(2):
            for z in range(4):
                w = 16 + 8*j + 4*e + z
                a.I(f'v_lshlrev_b32 v6, 16, v{w}'); a.I(f'v_and_b32 v7, 0xffff0000, v{w}')
                a.I(f'v_add_f32 v{96+e*8+2*z}, v{96+e*8+2*z}, v6'); a.I(f'v_add_f32 v{97+e*8+2*z}, v{97+e*8+2*z}, v7')
    a.I('s_waitcnt vmcnt(0)')
    LN2 = math.log(2.0)
    for r in range(8): a.I(f'v_mul_f32 v{88+r}, {hexf(LN2)}, v{88+r}')
    for h in range(2):
        for e in range(2):
            for r in range(4):
                x = 80 + 4*h + 2*e + r//2
                if r % 2 == 0: a.I(f'v_lshlrev_b32 v6, 16, v{x}')
                else: a.I(f'v_and_b32 v6, 0xffff0000, v{x}')
                a.I(f'v_fma_f32 v{96+e*8+h*4+r}, v{96+e*8+h*4+r}, v{88+4*e+r}, v6')
        d = 112 + 4*h
        a.I(f'v_cvt_pk_bf16_f32 v{d}, v{96+h*4}, v{97+h*4}'); a.I(f'v_cvt_pk_bf16_f32 v{d+1}, v{98+h*4}, v{99+h*4}')
        a.I(f'v_cvt_pk_bf16_f32 v{d+2}, v{104+h*4}, v{105+h*4}'); a.I(f'v_cvt_pk_bf16_f32 v{d+3}, v{106+h*4}, v{107+h*4}')
        a.I(f'v_permlane16_swap_b32 v{d}, v{d+2}'); a.I(f'v_permlane16_swap_b32 v{d+1}, v{d+3}')
        a.vmem(f'buffer_store_dwordx4 {r4(d)}, v5, s[24:27], s28 offen')
        if h == 0: a.I(f's_add_u32 s28, s28, {16*1152}')
    a.label('K5_END')
    a.I('s_endpgm')
    return kernel_text('k5_kernel', a, 120), (NWG, 256, 0)
```

```python
from common import *
import os

NG, NL, NW = 216, 128, 144
PERM_ROWS = lambda g4, i: 16*(i >> 2) + 4*g4 + (i & 3)

def qkv_dest(a):
    vdiv(a, 'v3', 'v1', 576, 1727)
    a.I('v_mul_u32_u24 v4, 576, v3'); a.I('v_sub_u32 v4, v1, v4')
    vdiv(a, 'v5', 'v4', 18, 575)
    a.I('v_mul_u32_u24 v6, 18, v5'); a.I('v_sub_u32 v6, v4, v6')
    a.I('v_lshrrev_b32 v7, 3, v5'); a.I('v_lshl_add_u32 v7, v3, 2, v7'); a.I('v_and_b32 v8, 7, v5')
    a.I('v_and_b32 v9, 6, v8'); a.I('v_bfe_u32 v10, v6, 2, 1'); a.I('v_add_u32 v9, v9, v10')
    a.I('v_and_b32 v10, 1, v8'); a.I('v_lshlrev_b32 v10, 3, v10')
    a.I('v_bfe_u32 v11, v6, 3, 1'); a.I('v_lshl_add_u32 v10, v11, 2, v10')
    a.I('v_and_b32 v11, 3, v6'); a.I('v_add_u32 v10, v10, v11')
    a.I('v_cmp_eq_u32 vcc, 2, v3')
    a.I('v_cndmask_b32 v9, v9, v8, vcc'); a.I('v_cndmask_b32 v10, v10, v6, vcc')
    a.I('v_lshlrev_b32 v11, 1, v8'); a.I('v_add_u32 v11, v11, v6'); a.I('v_subrev_u32 v11, 16, v11')
    a.I('v_cmp_le_u32 vcc, 16, v6')
    a.I('v_mov_b32 v12, 8'); a.I('v_cndmask_b32 v9, v9, v12, vcc')
    a.I('v_cndmask_b32 v10, v10, v11, vcc')
    a.I('v_mul_u32_u24 v7, 162, v7'); a.I('v_add_u32 v7, v7, v9'); a.I('v_lshlrev_b32 v2, 10, v7')
    a.I('v_lshl_add_u32 v2, v10, 4, v2')

def k0():
    a = Asm()
    a.I(f's_cmp_ge_u32 s2, {NG+NL+NW}')
    a.I('s_cbranch_scc1 K0_END')
    a.I(f's_load_dwordx2 s[4:5], s[0:1], {A_WS}')
    a.I('s_mov_b32 s32, s2')
    a.I('s_cmp_lt_u32 s2, 72'); a.I('s_cbranch_scc1 K0_G')
    a.I(f's_cmp_lt_u32 s2, {72+NL}'); a.I('s_cbranch_scc1 K0_LN')
    a.I(f's_cmp_lt_u32 s2, {72+NL+NW}'); a.I('s_cbranch_scc1 K0_W')
    a.I(f's_sub_u32 s32, s2, {NL+NW}')
    a.label('K0_G')
    a.I(f's_load_dwordx2 s[8:9], s[0:1], {A_C}')
    a.I(f's_load_dwordx2 s[10:11], s[0:1], {A_WMOD}')
    a.I('s_lshr_b32 s33, s32, 1'); a.I('s_and_b32 s34, s32, 1')
    a.I('v_and_b32 v1, 3, v0'); a.I('v_lshrrev_b32 v2, 2, v0')
    a.I('s_movk_i32 s24, 6912'); a.I('v_mul_lo_u32 v3, v2, s24'); a.I('v_lshl_add_u32 v3, v1, 4, v3')
    a.I('v_lshlrev_b32 v4, 1, v2')
    a.I('s_lshl_b32 s35, s33, 6'); a.I(f's_mul_i32 s36, s34, {288*6912}'); a.I('s_add_u32 s35, s35, s36')
    a.I('s_mul_i32 s37, s34, 576')
    a.I('v_cmp_gt_u32 vcc, 32, v2'); a.I('v_mov_b32 v5, 0x7f000000'); a.I('v_cndmask_b32 v8, v5, v3, vcc'); a.I('v_cndmask_b32 v9, v5, v4, vcc')
    a.I('s_waitcnt lgkmcnt(0)')
    srd(a, 12, 10, 11, 576*6912); srd(a, 16, 8, 9, 576*2)
    for p in range(5): a.vmem(f'buffer_load_ushort v{10+p}, {"v4" if p < 4 else "v9"}, s[16:19], s37 offen offset:{p*128}')
    for p in range(5):
        a.vmem(f'buffer_load_dwordx4 {r4(20+4*p)}, {"v3" if p < 4 else "v8"}, s[12:15], s35 offen')
        if p < 4: a.I(f's_add_u32 s35, s35, {64*6912}')
    a.I('s_waitcnt vmcnt(5)')
    for p in range(5):
        c = f'v{10+p}'
        a.I(f'v_lshlrev_b32 {c}, 16, {c}'); a.I(f'v_mul_f32 v5, {hexf(-LOG2E)}, {c}')
        a.I('v_exp_f32 v5, v5'); a.I('v_add_f32 v5, 1.0, v5'); a.I('v_rcp_f32 v5, v5'); a.I(f'v_mul_f32 {c}, {c}, v5')
        bf16_round_f32(a, c, c)
    for j in range(8): a.I(f'v_mov_b32 v{40+j}, 0')
    for p in range(5):
        a.I(f's_waitcnt vmcnt({4-p})')
        for j in range(4):
            w = f'v{20+4*p+j}'
            a.I(f'v_lshlrev_b32 v5, 16, {w}'); a.I(f'v_and_b32 v6, 0xffff0000, {w}')
            a.I(f'v_fmac_f32 v{40+2*j}, v{10+p}, v5'); a.I(f'v_fmac_f32 v{41+2*j}, v{10+p}, v6')
    for j in range(8):
        r = f'v{40+j}'
        a.I(f'v_add_f32_dpp {r}, {r}, {r} row_ror:4 row_mask:0xf bank_mask:0xf')
    for j in range(8):
        r = f'v{40+j}'
        a.I(f'v_add_f32_dpp {r}, {r}, {r} row_ror:8 row_mask:0xf bank_mask:0xf')
    for j in range(8):
        r = f'v{40+j}'
        a.I(f'v_mov_b32 v{50+j}, {r}')
    for j in range(8): a.I(f'v_permlane16_swap_b32 v{40+j}, v{50+j}')
    for j in range(8): a.I(f'v_add_f32 v{40+j}, v{40+j}, v{50+j}')
    for j in range(8): a.I(f'v_mov_b32 v{50+j}, v{40+j}')
    for j in range(8): a.I(f'v_permlane32_swap_b32 v{40+j}, v{50+j}')
    for j in range(8): a.I(f'v_add_f32 v{40+j}, v{40+j}, v{50+j}')
    a.I('v_lshrrev_b32 v7, 6, v0'); a.I('v_lshlrev_b32 v7, 7, v7'); a.I('v_lshl_add_u32 v7, v1, 5, v7')
    a.I('v_and_b32 v8, 63, v0'); a.I('v_cmp_gt_u32 vcc, 4, v8'); a.I('s_and_saveexec_b64 s[28:29], vcc')
    a.I('ds_write_b128 v7, v[40:43]'); a.I('ds_write_b128 v7, v[44:47] offset:16')
    a.I('s_mov_b64 exec, s[28:29]')
    a.I('s_waitcnt lgkmcnt(0)'); a.I('s_barrier')
    a.I('v_cmp_gt_u32 vcc, 32, v0'); a.I('s_and_saveexec_b64 s[28:29], vcc'); a.I('s_cbranch_execz K0_END')
    a.I('v_lshlrev_b32 v8, 2, v0')
    for i in range(4): a.I(f'ds_read_b32 v{20+i}, v8 offset:{i*128}')
    a.I('s_waitcnt lgkmcnt(0)')
    a.I('v_add_f32 v20, v20, v21'); a.I('v_add_f32 v22, v22, v23'); a.I('v_add_f32 v20, v20, v22')
    srd(a, 12, 4, 5, WS.MODP_SZ, WS.MODP)
    a.I('s_lshl_b32 s25, s33, 7'); a.I(f's_mul_i32 s26, s34, {3456*4}'); a.I('s_add_u32 s25, s25, s26')
    a.I('buffer_store_dword v20, v8, s[12:15], s25 offen')
    a.I('s_endpgm')
    a.label('K0_LN')
    a.I(f's_load_dwordx2 s[6:7], s[0:1], {A_X}')
    a.I('s_sub_u32 s24, s2, 72'); a.I('s_lshl_b32 s24, s24, 4')
    a.I('v_lshrrev_b32 v1, 4, v0'); a.I('v_add_u32 v1, s24, v1')
    a.I('v_and_b32 v2, 15, v0')
    a.I('s_movk_i32 s25, 1152'); a.I('v_mul_lo_u32 v3, v1, s25'); a.I('v_lshl_add_u32 v3, v2, 4, v3')
    a.I('v_cmp_gt_u32 vcc, 8, v2'); a.I('v_mov_b32 v5, 0x7f000000'); a.I('v_cndmask_b32 v10, v5, v3, vcc')
    a.I('s_waitcnt lgkmcnt(0)')
    srd(a, 12, 6, 7, S*1152)
    toks = [a.vmem(f'buffer_load_dwordx4 {r4(20+4*i)}, {"v3" if i < 4 else "v10"}, s[12:15], 0 offen offset:{i*256}') for i in range(5)]
    srd(a, 16, 4, 5, WS.NF_SZ, WS.NF); srd(a, 20, 4, 5, WS.XF_SZ, WS.XF)
    a.I('v_lshrrev_b32 v4, 4, v1'); a.I('v_mul_u32_u24 v4, 18, v4')
    a.I('v_lshrrev_b32 v5, 2, v2'); a.I('v_add_u32 v4, v4, v5'); a.I('v_lshlrev_b32 v4, 6, v4')
    a.I('v_and_b32 v5, 1, v2'); a.I('v_lshl_add_u32 v4, v5, 5, v4')
    a.I('v_and_b32 v5, 15, v1'); a.I('v_add_u32 v4, v4, v5'); a.I('v_lshlrev_b32 v4, 4, v4')
    a.I('v_bfe_u32 v5, v2, 1, 1'); a.I('v_lshl_add_u32 v4, v5, 3, v4')
    a.I('v_cmp_gt_u32 vcc, 8, v2'); a.I('v_mov_b32 v5, 0x7f000000'); a.I('v_cndmask_b32 v11, v5, v4, vcc')
    a.I('v_mov_b32 v6, 0'); a.I('v_mov_b32 v7, 0'); a.I('s_mov_b32 s26, 0')
    U = 44
    for i in range(5):
        a.wait(vm=toks[i])
        ad = 'v4' if i < 4 else 'v11'
        a.vmem(f'buffer_store_dwordx2 {r2(20+4*i)}, {ad}, s[20:23], s26 offen')
        a.vmem(f'buffer_store_dwordx2 {r2(22+4*i)}, {ad}, s[20:23], s26 offen offset:256')
        if i < 4: a.I('s_add_u32 s26, s26, 4096')
        for j in range(4):
            w = f'v{20+4*i+j}'; lo, hi = U+8*i+2*j, U+8*i+2*j+1
            a.I(f'v_lshlrev_b32 v{lo}, 16, {w}'); a.I(f'v_and_b32 v{hi}, 0xffff0000, {w}')
            a.I(f'v_add_f32 v6, v6, v{lo}'); a.I(f'v_fmac_f32 v7, v{lo}, v{lo}'); a.I(f'v_add_f32 v6, v6, v{hi}'); a.I(f'v_fmac_f32 v7, v{hi}, v{hi}')
    for dpp in ('quad_perm:[1,0,3,2]', 'quad_perm:[2,3,0,1]', 'row_half_mirror', 'row_mirror'):
        a.I(f'v_add_f32_dpp v6, v6, v6 {dpp} row_mask:0xf bank_mask:0xf')
        a.I(f'v_add_f32_dpp v7, v7, v7 {dpp} row_mask:0xf bank_mask:0xf')
    a.I(f'v_mul_f32 v6, {hexf(1.0/576)}, v6'); a.I(f'v_mul_f32 v7, {hexf(1.0/576)}, v7')
    a.I('v_fma_f32 v7, -v6, v6, v7'); a.I('v_max_f32 v7, 0, v7'); a.I(f'v_add_f32 v7, {hexf(1e-5)}, v7'); a.I('v_rsq_f32 v7, v7')
    a.I('v_mul_f32 v6, v6, v7'); a.I('v_sub_f32 v6, 0, v6')
    for i in range(5):
        for j in range(8): a.I(f'v_fma_f32 v{U+8*i+j}, v{U+8*i+j}, v7, v6')
    a.I('s_mov_b32 s26, 0')
    for i in range(5):
        d = 84 + (i % 2)*4
        for j in range(4): a.I(f'v_cvt_pk_bf16_f32 v{d+j}, v{U+8*i+2*j}, v{U+8*i+2*j+1}')
        ad = 'v4' if i < 4 else 'v11'
        a.vmem(f'buffer_store_dwordx2 {r2(d)}, {ad}, s[16:19], s26 offen')
        a.vmem(f'buffer_store_dwordx2 {r2(d+2)}, {ad}, s[16:19], s26 offen offset:256')
        if i < 4: a.I('s_add_u32 s26, s26, 4096')
    a.I('s_endpgm')
    a.label('K0_W')
    a.I(f's_load_dwordx2 s[30:31], s[0:1], {A_WQKV}')
    if os.environ.get('NOCPF', '0') != '1':
        a.I(f's_cmp_ge_u32 s2, {72+NL+8}'); a.I('s_cbranch_scc1 K0_NCP')
        a.I('v_readfirstlane_b32 s75, v0'); a.I('s_lshr_b32 s75, s75, 6')
        code_prefetch(a, 'k1_kernel', 28672, 's75', 'K0')
        a.label('K0_NCP')
    a.I(f's_sub_u32 s33, s2, {72+NL}'); a.I('s_and_b32 s37, s33, 1'); a.I('s_bfe_u32 s35, s33, 0x20001'); a.I('s_lshr_b32 s36, s33, 3')
    a.I('s_mul_i32 s25, s35, 216'); a.I('v_add_u32 v1, s25, v0'); a.I('v_lshlrev_b32 v1, 1, v1'); a.I('v_min_u32 v1, 1726, v1')
    a.I('v_lshlrev_b32 v13, 1, v1')
    a.I(f's_mul_i32 s27, s36, {32*3456}'); a.I(f's_mul_i32 s28, s37, {8*3456}'); a.I('s_add_u32 s27, s27, s28')
    a.I('s_waitcnt lgkmcnt(0)')
    srd(a, 12, 30, 31, 576*3456)
    a.I('s_movk_i32 s61, 216'); a.I('v_cmp_gt_u32 vcc, s61, v0'); a.I('s_and_saveexec_b64 s[62:63], vcc'); a.I('s_cbranch_execz K0_END')
    toks = []
    for g in range(2):
        for i in range(8):
            a.I(f's_add_u32 s38, s27, {PERM_ROWS(g, i)*3456}')
            a.vmem(f'buffer_load_dword v{20+g*8+i}, v13, s[12:15], s38 offen')
        toks.append(a.vm)
    qkv_dest(a)
    srd(a, 16, 4, 5, WS.WQKVF_SZ, WS.WQKVF)
    a.I(f's_mul_i32 s28, s36, {9*1024}'); a.I('s_lshl_b32 s29, s37, 9'); a.I('s_add_u32 s28, s28, s29')
    a.I('s_mov_b32 s65, 0x05040100'); a.I('s_mov_b32 s66, 0x07060302')
    for g in range(2):
        a.wait(vm=toks[g])
        b = 20 + g*8; d = 40 + g*8
        for q in range(4):
            a.I(f'v_perm_b32 v{d+q}, v{b+2*q+1}, v{b+2*q}, s65'); a.I(f'v_perm_b32 v{d+4+q}, v{b+2*q+1}, v{b+2*q}, s66')
        a.vmem(f'buffer_store_dwordx4 {r4(d)}, v2, s[16:19], s28 offen offset:{g*256} ' + os.environ.get('K0FLAG', ''))
        a.vmem(f'buffer_store_dwordx4 {r4(d+4)}, v2, s[16:19], s28 offen offset:{g*256+16} ' + os.environ.get('K0FLAG', ''))
    a.label('K0_END')
    a.I('s_endpgm')
    return kernel_text('k0_kernel', a, 96), (NG+NL+NW, 256, 6144)

NP_W1, NP_W2, NP_WO = 90, 144, 18
NPREP = 1

def relayout4(a, src_srd, dst_srd, rowstride, rows_fn, vsrc, vdst, s_src, s_dst, nvalid, lab):
    a.I(f's_movk_i32 s61, {nvalid}'); a.I('v_cmp_gt_u32 vcc, s61, v0'); a.I('s_and_saveexec_b64 s[62:63], vcc'); a.I(f's_cbranch_execz {lab}')
    toks = []
    for g4 in range(4):
        for i in range(8):
            a.I(f's_add_u32 s64, {s_src}, {rows_fn(g4, i)*rowstride}')
            a.vmem(f'buffer_load_dwordx2 {r2(20+g4*16+2*i)}, {vsrc}, s[{src_srd}:{src_srd+3}], s64 offen')
        toks.append(a.vm)
    a.I('s_mov_b32 s65, 0x05040100'); a.I('s_mov_b32 s66, 0x07060302')
    for g4 in range(4):
        a.wait(vm=toks[g4])
        b = 20 + g4*16; d = 90 + (g4 % 2)*16
        for cpair in range(2):
            for q in range(4):
                a.I(f'v_perm_b32 v{d+cpair*8+q}, v{b+2*(2*q+1)+cpair}, v{b+2*(2*q)+cpair}, s65')
                a.I(f'v_perm_b32 v{d+cpair*8+4+q}, v{b+2*(2*q+1)+cpair}, v{b+2*(2*q)+cpair}, s66')
        for z in range(4):
            a.vmem(f'buffer_store_dwordx4 {r4(d+4*z)}, {vdst}, s[{dst_srd}:{dst_srd+3}], {s_dst} offen offset:{g4*256+16*z}')
    a.label(lab)

def prep_body(a, su, L):
    a.label(f'{L}_FIN')
    a.I('v_readfirstlane_b32 s70, v0'); a.I('s_cmp_ge_u32 s70, 256'); a.I(f's_cbranch_scc1 {L}_X')
    a.I('s_waitcnt lgkmcnt(0)')
    srd(a, 12, 4, 5, WS.MODP_SZ, WS.MODP); srd(a, 16, 4, 5, WS.MOD_SZ, WS.MOD)
    srd(a, 24, 4, 5, WS.G2_SZ, WS.G2)
    a.I('v_lshlrev_b32 v1, 2, v0')
    for i in range(14):
        a.I(f's_mov_b32 s70, {i*1024}'); a.vmem(f'buffer_load_dword v{20+i}, v1, s[12:15], s70 offen')
        a.I(f's_mov_b32 s71, {i*1024 + 3456*4}'); a.vmem(f'buffer_load_dword v{40+i}, v1, s[12:15], s71 offen')
    a.I('s_waitcnt vmcnt(0)')
    for i in range(14):
        a.I(f'v_add_f32 v{20+i}, v{20+i}, v{40+i}'); bf16_round_f32(a, f'v{20+i}', f'v{20+i}')
        a.I(f's_mov_b32 s70, {i*1024}'); a.vmem(f'buffer_store_dword v{20+i}, v1, s[16:19], s70 offen')
    for i in range(3):
        a.I(f's_mov_b32 s70, {(2304+256*i)*4}'); a.vmem(f'buffer_load_dword v62, v1, s[12:15], s70 offen')
        a.I(f's_mov_b32 s70, {(2304+256*i+3456)*4}'); a.vmem(f'buffer_load_dword v63, v1, s[12:15], s70 offen')
        a.I('s_waitcnt vmcnt(0)')
        a.I('v_add_f32 v62, v62, v63'); bf16_round_f32(a, 'v62', 'v62'); a.I('v_add_f32 v62, 1.0, v62'); bf16_round_f32(a, 'v62', 'v62')
        a.I(f's_mov_b32 s70, {256*i*4}'); a.vmem('buffer_store_dword v62, v1, s[24:27], s70 offen')
    a.I('s_endpgm')

    a.label(f'{L}_X')
```

```python
from common import *
import os

NG, NL, NW = 216, 128, 144
PERM_ROWS = lambda g4, i: 16*(i >> 2) + 4*g4 + (i & 3)

def qkv_dest(a):
    vdiv(a, 'v3', 'v1', 576, 1727)
    a.I('v_mul_u32_u24 v4, 576, v3'); a.I('v_sub_u32 v4, v1, v4')
    vdiv(a, 'v5', 'v4', 18, 575)
    a.I('v_mul_u32_u24 v6, 18, v5'); a.I('v_sub_u32 v6, v4, v6')
    a.I('v_lshrrev_b32 v7, 3, v5'); a.I('v_lshl_add_u32 v7, v3, 2, v7'); a.I('v_and_b32 v8, 7, v5')
    a.I('v_and_b32 v9, 6, v8'); a.I('v_bfe_u32 v10, v6, 2, 1'); a.I('v_add_u32 v9, v9, v10')
    a.I('v_and_b32 v10, 1, v8'); a.I('v_lshlrev_b32 v10, 3, v10')
    a.I('v_bfe_u32 v11, v6, 3, 1'); a.I('v_lshl_add_u32 v10, v11, 2, v10')
    a.I('v_and_b32 v11, 3, v6'); a.I('v_add_u32 v10, v10, v11')
    a.I('v_cmp_eq_u32 vcc, 2, v3')
    a.I('v_cndmask_b32 v9, v9, v8, vcc'); a.I('v_cndmask_b32 v10, v10, v6, vcc')
    a.I('v_lshlrev_b32 v11, 1, v8'); a.I('v_add_u32 v11, v11, v6'); a.I('v_subrev_u32 v11, 16, v11')
    a.I('v_cmp_le_u32 vcc, 16, v6')
    a.I('v_mov_b32 v12, 8'); a.I('v_cndmask_b32 v9, v9, v12, vcc')
    a.I('v_cndmask_b32 v10, v10, v11, vcc')
    a.I('v_mul_u32_u24 v7, 162, v7'); a.I('v_add_u32 v7, v7, v9'); a.I('v_lshlrev_b32 v2, 10, v7')
    a.I('v_lshl_add_u32 v2, v10, 4, v2')

def k0():
    a = Asm()
    a.I(f's_cmp_ge_u32 s2, {NG+NL+NW}')
    a.I('s_cbranch_scc1 K0_END')
    a.I(f's_load_dwordx2 s[4:5], s[0:1], {A_WS}')
    a.I('s_mov_b32 s32, s2')
    a.I('s_cmp_lt_u32 s2, 72'); a.I('s_cbranch_scc1 K0_G')
    a.I(f's_cmp_lt_u32 s2, {72+NL}'); a.I('s_cbranch_scc1 K0_LN')
    a.I(f's_cmp_lt_u32 s2, {72+NL+NW}'); a.I('s_cbranch_scc1 K0_W')
    a.I(f's_sub_u32 s32, s2, {NL+NW}')
    a.label('K0_G')
    a.I(f's_load_dwordx2 s[8:9], s[0:1], {A_C}')
    a.I(f's_load_dwordx2 s[10:11], s[0:1], {A_WMOD}')
    a.I('s_lshr_b32 s33, s32, 1'); a.I('s_and_b32 s34, s32, 1')
    a.I('v_and_b32 v1, 3, v0'); a.I('v_lshrrev_b32 v2, 2, v0')
    a.I('s_movk_i32 s24, 6912'); a.I('v_mul_lo_u32 v3, v2, s24'); a.I('v_lshl_add_u32 v3, v1, 4, v3')
    a.I('v_lshlrev_b32 v4, 1, v2')
    a.I('s_lshl_b32 s35, s33, 6'); a.I(f's_mul_i32 s36, s34, {288*6912}'); a.I('s_add_u32 s35, s35, s36')
    a.I('s_mul_i32 s37, s34, 576')
    a.I('v_cmp_gt_u32 vcc, 32, v2'); a.I('v_mov_b32 v5, 0x7f000000'); a.I('v_cndmask_b32 v8, v5, v3, vcc'); a.I('v_cndmask_b32 v9, v5, v4, vcc')
    a.I('s_waitcnt lgkmcnt(0)')
    srd(a, 12, 10, 11, 576*6912); srd(a, 16, 8, 9, 576*2)
    for p in range(5): a.vmem(f'buffer_load_ushort v{10+p}, {"v4" if p < 4 else "v9"}, s[16:19], s37 offen offset:{p*128}')
    for p in range(5):
        a.vmem(f'buffer_load_dwordx4 {r4(20+4*p)}, {"v3" if p < 4 else "v8"}, s[12:15], s35 offen')
        if p < 4: a.I(f's_add_u32 s35, s35, {64*6912}')
    a.I('s_waitcnt vmcnt(5)')
    for p in range(5):
        c = f'v{10+p}'
        a.I(f'v_lshlrev_b32 {c}, 16, {c}'); a.I(f'v_mul_f32 v5, {hexf(-LOG2E)}, {c}')
        a.I('v_exp_f32 v5, v5'); a.I('v_add_f32 v5, 1.0, v5'); a.I('v_rcp_f32 v5, v5'); a.I(f'v_mul_f32 {c}, {c}, v5')
        bf16_round_f32(a, c, c)
    for j in range(8): a.I(f'v_mov_b32 v{40+j}, 0')
    for p in range(5):
        a.I(f's_waitcnt vmcnt({4-p})')
        for j in range(4):
            w = f'v{20+4*p+j}'
            a.I(f'v_lshlrev_b32 v5, 16, {w}'); a.I(f'v_and_b32 v6, 0xffff0000, {w}')
            a.I(f'v_fmac_f32 v{40+2*j}, v{10+p}, v5'); a.I(f'v_fmac_f32 v{41+2*j}, v{10+p}, v6')
    for j in range(8):
        r = f'v{40+j}'
        a.I(f'v_add_f32_dpp {r}, {r}, {r} row_ror:4 row_mask:0xf bank_mask:0xf')
    for j in range(8):
        r = f'v{40+j}'
        a.I(f'v_add_f32_dpp {r}, {r}, {r} row_ror:8 row_mask:0xf bank_mask:0xf')
    for j in range(8):
        r = f'v{40+j}'
        a.I(f'v_mov_b32 v{50+j}, {r}')
    for j in range(8): a.I(f'v_permlane16_swap_b32 v{40+j}, v{50+j}')
    for j in range(8): a.I(f'v_add_f32 v{40+j}, v{40+j}, v{50+j}')
    for j in range(8): a.I(f'v_mov_b32 v{50+j}, v{40+j}')
    for j in range(8): a.I(f'v_permlane32_swap_b32 v{40+j}, v{50+j}')
    for j in range(8): a.I(f'v_add_f32 v{40+j}, v{40+j}, v{50+j}')
    a.I('v_lshrrev_b32 v7, 6, v0'); a.I('v_lshlrev_b32 v7, 7, v7'); a.I('v_lshl_add_u32 v7, v1, 5, v7')
    a.I('v_and_b32 v8, 63, v0'); a.I('v_cmp_gt_u32 vcc, 4, v8'); a.I('s_and_saveexec_b64 s[28:29], vcc')
    a.I('ds_write_b128 v7, v[40:43]'); a.I('ds_write_b128 v7, v[44:47] offset:16')
    a.I('s_mov_b64 exec, s[28:29]')
    a.I('s_waitcnt lgkmcnt(0)'); a.I('s_barrier')
    a.I('v_cmp_gt_u32 vcc, 32, v0'); a.I('s_and_saveexec_b64 s[28:29], vcc'); a.I('s_cbranch_execz K0_END')
    a.I('v_lshlrev_b32 v8, 2, v0')
    for i in range(4): a.I(f'ds_read_b32 v{20+i}, v8 offset:{i*128}')
    a.I('s_waitcnt lgkmcnt(0)')
    a.I('v_add_f32 v20, v20, v21'); a.I('v_add_f32 v22, v22, v23'); a.I('v_add_f32 v20, v20, v22')
    srd(a, 12, 4, 5, WS.MODP_SZ, WS.MODP)
    a.I('s_lshl_b32 s25, s33, 7'); a.I(f's_mul_i32 s26, s34, {3456*4}'); a.I('s_add_u32 s25, s25, s26')
    a.I('buffer_store_dword v20, v8, s[12:15], s25 offen')
    a.I('s_endpgm')
    a.label('K0_LN')
    a.I(f's_load_dwordx2 s[6:7], s[0:1], {A_X}')
    a.I('s_sub_u32 s24, s2, 72'); a.I('s_lshl_b32 s24, s24, 4')
    a.I('v_lshrrev_b32 v1, 4, v0'); a.I('v_add_u32 v1, s24, v1')
    a.I('v_and_b32 v2, 15, v0')
    a.I('s_movk_i32 s25, 1152'); a.I('v_mul_lo_u32 v3, v1, s25'); a.I('v_lshl_add_u32 v3, v2, 4, v3')
    a.I('v_cmp_gt_u32 vcc, 8, v2'); a.I('v_mov_b32 v5, 0x7f000000'); a.I('v_cndmask_b32 v10, v5, v3, vcc')
    a.I('s_waitcnt lgkmcnt(0)')
    srd(a, 12, 6, 7, S*1152)
    toks = [a.vmem(f'buffer_load_dwordx4 {r4(20+4*i)}, {"v3" if i < 4 else "v10"}, s[12:15], 0 offen offset:{i*256}') for i in range(5)]
    srd(a, 16, 4, 5, WS.NF_SZ, WS.NF); srd(a, 20, 4, 5, WS.XF_SZ, WS.XF)
    a.I('v_lshrrev_b32 v4, 4, v1'); a.I('v_mul_u32_u24 v4, 18, v4')
    a.I('v_lshrrev_b32 v5, 2, v2'); a.I('v_add_u32 v4, v4, v5'); a.I('v_lshlrev_b32 v4, 6, v4')
    a.I('v_and_b32 v5, 1, v2'); a.I('v_lshl_add_u32 v4, v5, 5, v4')
    a.I('v_and_b32 v5, 15, v1'); a.I('v_add_u32 v4, v4, v5'); a.I('v_lshlrev_b32 v4, 4, v4')
    a.I('v_bfe_u32 v5, v2, 1, 1'); a.I('v_lshl_add_u32 v4, v5, 3, v4')
    a.I('v_cmp_gt_u32 vcc, 8, v2'); a.I('v_mov_b32 v5, 0x7f000000'); a.I('v_cndmask_b32 v11, v5, v4, vcc')
    a.I('v_mov_b32 v6, 0'); a.I('v_mov_b32 v7, 0'); a.I('s_mov_b32 s26, 0')
    U = 44
    for i in range(5):
        a.wait(vm=toks[i])
        ad = 'v4' if i < 4 else 'v11'
        a.vmem(f'buffer_store_dwordx2 {r2(20+4*i)}, {ad}, s[20:23], s26 offen')
        a.vmem(f'buffer_store_dwordx2 {r2(22+4*i)}, {ad}, s[20:23], s26 offen offset:256')
        if i < 4: a.I('s_add_u32 s26, s26, 4096')
        for j in range(4):
            w = f'v{20+4*i+j}'; lo, hi = U+8*i+2*j, U+8*i+2*j+1
            a.I(f'v_lshlrev_b32 v{lo}, 16, {w}'); a.I(f'v_and_b32 v{hi}, 0xffff0000, {w}')
            a.I(f'v_add_f32 v6, v6, v{lo}'); a.I(f'v_fmac_f32 v7, v{lo}, v{lo}'); a.I(f'v_add_f32 v6, v6, v{hi}'); a.I(f'v_fmac_f32 v7, v{hi}, v{hi}')
    for dpp in ('quad_perm:[1,0,3,2]', 'quad_perm:[2,3,0,1]', 'row_half_mirror', 'row_mirror'):
        a.I(f'v_add_f32_dpp v6, v6, v6 {dpp} row_mask:0xf bank_mask:0xf')
        a.I(f'v_add_f32_dpp v7, v7, v7 {dpp} row_mask:0xf bank_mask:0xf')
    a.I(f'v_mul_f32 v6, {hexf(1.0/576)}, v6'); a.I(f'v_mul_f32 v7, {hexf(1.0/576)}, v7')
    a.I('v_fma_f32 v7, -v6, v6, v7'); a.I('v_max_f32 v7, 0, v7'); a.I(f'v_add_f32 v7, {hexf(1e-5)}, v7'); a.I('v_rsq_f32 v7, v7')
    a.I('v_mul_f32 v6, v6, v7'); a.I('v_sub_f32 v6, 0, v6')
    for i in range(5):
        for j in range(8): a.I(f'v_fma_f32 v{U+8*i+j}, v{U+8*i+j}, v7, v6')
    a.I('s_mov_b32 s26, 0')
    for i in range(5):
        d = 84 + (i % 2)*4
        for j in range(4): a.I(f'v_cvt_pk_bf16_f32 v{d+j}, v{U+8*i+2*j}, v{U+8*i+2*j+1}')
        ad = 'v4' if i < 4 else 'v11'
        a.vmem(f'buffer_store_dwordx2 {r2(d)}, {ad}, s[16:19], s26 offen')
        a.vmem(f'buffer_store_dwordx2 {r2(d+2)}, {ad}, s[16:19], s26 offen offset:256')
        if i < 4: a.I('s_add_u32 s26, s26, 4096')
    a.I('s_endpgm')
    a.label('K0_W')
    a.I(f's_load_dwordx2 s[30:31], s[0:1], {A_WQKV}')
    if os.environ.get('NOCPF', '0') != '1':
        a.I(f's_cmp_ge_u32 s2, {72+NL+8}'); a.I('s_cbranch_scc1 K0_NCP')
        a.I('v_readfirstlane_b32 s75, v0'); a.I('s_lshr_b32 s75, s75, 6')
        code_prefetch(a, 'k1_kernel', 28672, 's75', 'K0')
        if os.environ.get('TLB', '0') == '1':
            a.I('s_waitcnt lgkmcnt(0)')
            a.I('s_cmp_lg_u32 s75, 3'); a.I('s_cbranch_scc1 K0_NCP')
            srd(a, 64, 4, 5, 56 << 20)
            a.I('v_and_b32 v60, 63, v0'); a.I('v_lshlrev_b32 v60, 20, v60')
            a.I('buffer_load_dword v63, v60, s[64:67], 0 offen'); a.vm -= 1
        a.label('K0_NCP')
    a.I(f's_sub_u32 s33, s2, {72+NL}'); a.I('s_and_b32 s37, s33, 1'); a.I('s_bfe_u32 s35, s33, 0x20001'); a.I('s_lshr_b32 s36, s33, 3')
    a.I('s_mul_i32 s25, s35, 216'); a.I('v_add_u32 v1, s25, v0'); a.I('v_lshlrev_b32 v1, 1, v1'); a.I('v_min_u32 v1, 1726, v1')
    a.I('v_lshlrev_b32 v13, 1, v1')
    a.I(f's_mul_i32 s27, s36, {32*3456}'); a.I(f's_mul_i32 s28, s37, {8*3456}'); a.I('s_add_u32 s27, s27, s28')
    a.I('s_waitcnt lgkmcnt(0)')
    srd(a, 12, 30, 31, 576*3456)
    a.I('s_movk_i32 s61, 216'); a.I('v_cmp_gt_u32 vcc, s61, v0'); a.I('s_and_saveexec_b64 s[62:63], vcc'); a.I('s_cbranch_execz K0_END')
    toks = []
    for g in range(2):
        for i in range(8):
            a.I(f's_add_u32 s38, s27, {PERM_ROWS(g, i)*3456}')
            a.vmem(f'buffer_load_dword v{20+g*8+i}, v13, s[12:15], s38 offen')
        toks.append(a.vm)
    qkv_dest(a)
    srd(a, 16, 4, 5, WS.WQKVF_SZ, WS.WQKVF)
    a.I(f's_mul_i32 s28, s36, {9*1024}'); a.I('s_lshl_b32 s29, s37, 9'); a.I('s_add_u32 s28, s28, s29')
    a.I('s_mov_b32 s65, 0x05040100'); a.I('s_mov_b32 s66, 0x07060302')
    for g in range(2):
        a.wait(vm=toks[g])
        b = 20 + g*8; d = 40 + g*8
        for q in range(4):
            a.I(f'v_perm_b32 v{d+q}, v{b+2*q+1}, v{b+2*q}, s65'); a.I(f'v_perm_b32 v{d+4+q}, v{b+2*q+1}, v{b+2*q}, s66')
        a.vmem(f'buffer_store_dwordx4 {r4(d)}, v2, s[16:19], s28 offen offset:{g*256} ' + os.environ.get('K0FLAG', ''))
        a.vmem(f'buffer_store_dwordx4 {r4(d+4)}, v2, s[16:19], s28 offen offset:{g*256+16} ' + os.environ.get('K0FLAG', ''))
    a.label('K0_END')
    a.I('s_endpgm')
    return kernel_text('k0_kernel', a, 96), (NG+NL+NW, 256, 6144)

NP_W1, NP_W2, NP_WO = 90, 144, 18
NPREP = 1

def relayout4(a, src_srd, dst_srd, rowstride, rows_fn, vsrc, vdst, s_src, s_dst, nvalid, lab):
    a.I(f's_movk_i32 s61, {nvalid}'); a.I('v_cmp_gt_u32 vcc, s61, v0'); a.I('s_and_saveexec_b64 s[62:63], vcc'); a.I(f's_cbranch_execz {lab}')
    toks = []
    for g4 in range(4):
        for i in range(8):
            a.I(f's_add_u32 s64, {s_src}, {rows_fn(g4, i)*rowstride}')
            a.vmem(f'buffer_load_dwordx2 {r2(20+g4*16+2*i)}, {vsrc}, s[{src_srd}:{src_srd+3}], s64 offen')
        toks.append(a.vm)
    a.I('s_mov_b32 s65, 0x05040100'); a.I('s_mov_b32 s66, 0x07060302')
    for g4 in range(4):
        a.wait(vm=toks[g4])
        b = 20 + g4*16; d = 90 + (g4 % 2)*16
        for cpair in range(2):
            for q in range(4):
                a.I(f'v_perm_b32 v{d+cpair*8+q}, v{b+2*(2*q+1)+cpair}, v{b+2*(2*q)+cpair}, s65')
                a.I(f'v_perm_b32 v{d+cpair*8+4+q}, v{b+2*(2*q+1)+cpair}, v{b+2*(2*q)+cpair}, s66')
        for z in range(4):
            a.vmem(f'buffer_store_dwordx4 {r4(d+4*z)}, {vdst}, s[{dst_srd}:{dst_srd+3}], {s_dst} offen offset:{g4*256+16*z}')
    a.label(lab)

def prep_body(a, su, L):
    a.label(f'{L}_FIN')
    a.I('v_readfirstlane_b32 s70, v0'); a.I('s_cmp_ge_u32 s70, 256'); a.I(f's_cbranch_scc1 {L}_X')
    a.I('s_waitcnt lgkmcnt(0)')
    srd(a, 12, 4, 5, WS.MODP_SZ, WS.MODP); srd(a, 16, 4, 5, WS.MOD_SZ, WS.MOD)
    srd(a, 24, 4, 5, WS.G2_SZ, WS.G2)
    a.I('v_lshlrev_b32 v1, 2, v0')
    for i in range(14):
        a.I(f's_mov_b32 s70, {i*1024}'); a.vmem(f'buffer_load_dword v{20+i}, v1, s[12:15], s70 offen')
        a.I(f's_mov_b32 s71, {i*1024 + 3456*4}'); a.vmem(f'buffer_load_dword v{40+i}, v1, s[12:15], s71 offen')
    a.I('s_waitcnt vmcnt(0)')
    for i in range(14):
        a.I(f'v_add_f32 v{20+i}, v{20+i}, v{40+i}'); bf16_round_f32(a, f'v{20+i}', f'v{20+i}')
        a.I(f's_mov_b32 s70, {i*1024}'); a.vmem(f'buffer_store_dword v{20+i}, v1, s[16:19], s70 offen')
    for i in range(3):
        a.I(f's_mov_b32 s70, {(2304+256*i)*4}'); a.vmem(f'buffer_load_dword v62, v1, s[12:15], s70 offen')
        a.I(f's_mov_b32 s70, {(2304+256*i+3456)*4}'); a.vmem(f'buffer_load_dword v63, v1, s[12:15], s70 offen')
        a.I('s_waitcnt vmcnt(0)')
        a.I('v_add_f32 v62, v62, v63'); bf16_round_f32(a, 'v62', 'v62'); a.I('v_add_f32 v62, 1.0, v62'); bf16_round_f32(a, 'v62', 'v62')
        a.I(f's_mov_b32 s70, {256*i*4}'); a.vmem('buffer_store_dword v62, v1, s[24:27], s70 offen')
    a.I('s_endpgm')

    a.label(f'{L}_X')
```

```python
from asmlib import Asm, Inst
import math

S, D, H, DH, F = 2048, 576, 32, 18, 4608
KS = 18
LOG2E = 1.4426950408889634
QSCALE = LOG2E / math.sqrt(18.0)

A_X, A_WQKV, A_WO, A_BX, A_W1, A_W2, A_C, A_WMOD, A_OUT, A_DBG, A_WS = [8*i for i in range(11)]

def align(x, a): return (x + a - 1) // a * a
class WS: pass
_off = 0
def region(name, size):
    global _off
    _off = align(_off, 4096)
    setattr(WS, name, _off); setattr(WS, name + '_SZ', size)
    _off += size
region('MODP', 2*3456*4)
region('MOD', 3456*4)
region('G2', 576*4)
region('TAB2', 4608)
region('NF', 128*KS*1024)
region('XF', 128*KS*1024)
region('WQKVF', 12*KS*9*1024)
region('WOF', 6*KS*6*1024)
region('W1S', 8*3*4*KS*3*1024)
region('W2S', 8*4*KS*9*1024)
region('UT1', 2*F*4)
QT_BYTES = 1152
KV_TILE = 2304
VT_OFF = 1152
DV = 18
region('QIMG', H*64*QT_BYTES)
region('KVIMG', H*64*KV_TILE)
region('KMAX', H*64*4)
region('OF', 128*KS*1024)
region('X1F', 128*KS*1024)
region('X1G', 128*KS*1024)
region('STAT2', S*6*8 + 4096)
region('PART', 8*64*36*1024)
WS_TOTAL = _off

def f32bits(x):
    import struct
    return struct.unpack('<I', struct.pack('<f', x))[0]

def srd(a, sreg, base_lo, base_hi, size, off=0):
    if off:
        a.I(f's_add_u32 s{sreg}, s{base_lo}, {off}')
        a.I(f's_addc_u32 s{sreg+1}, s{base_hi}, 0')
    else:
        a.I(f's_mov_b32 s{sreg}, s{base_lo}')
        a.I(f's_mov_b32 s{sreg+1}, s{base_hi}')
    a.I(f's_mov_b32 s{sreg+2}, {size}')
    a.I(f's_mov_b32 s{sreg+3}, 0x00020000')

import os
STAMP = os.environ.get('STAMP', '0') == '1'
STAMP_OFF = 240 << 20
KIDX = {}
def stamp(a, i):
    if STAMP:
        a.I(f's_memtime s[{80+2*i}:{81+2*i}]')

def add_stamps(a, name):
    from asmlib import Inst
    kidx = KIDX.setdefault(name, len(KIDX))
    items = a.items
    pre = f"""s_memrealtime s[96:97]
s_memtime s[78:79]
s_load_dwordx2 s[98:99], s[0:1], {A_WS}
v_readfirstlane_b32 s93, v0
s_lshr_b32 s93, s93, 6
s_lshl_b32 s92, s2, 4
s_add_u32 s93, s93, s92
s_lshl_b32 s93, s93, 5
s_add_u32 s93, s93, {STAMP_OFF + (kidx << 20)}
"""
    pre += "".join(f"s_mov_b32 s{80+2*i}, 0\n" for i in range(6))
    pre += "s_waitcnt lgkmcnt(0)\n" + "".join(f"s_mov_b32 s{80+2*i}, s78\n" for i in range(6))
    new = [('i', Inst(l)) for l in pre.strip().split('\n')]
    for it in items:
        if it[0] == 'i' and it[1].base == 's_endpgm':
            seq = """s_mov_b64 exec, 1
s_waitcnt vmcnt(0) lgkmcnt(0)
s_memrealtime s[94:95]
s_memtime s[90:91]
s_waitcnt lgkmcnt(0)
v_mov_b32 v0, s93
v_mov_b32 v2, s96
v_mov_b32 v3, s94
""" + "".join(f"s_sub_u32 s{80+2*i}, s{80+2*i}, s78\nv_mov_b32 v{4+i}, s{80+2*i}\n" for i in range(6)) + """global_store_dwordx4 v0, v[2:5], s[98:99]
global_store_dwordx4 v0, v[6:9], s[98:99] offset:16
"""
            for l in seq.strip().split('\n'): new.append(('i', Inst(l)))
        new.append(it)
    a.items = new

def add_dbg_stamps(a, name):
    from asmlib import Inst
    kidx = KIDX.setdefault(name, len(KIDX))
    pre = f"""s_memrealtime s[96:97]
s_load_dwordx2 s[98:99], s[0:1], {A_DBG}
"""
    new = [('i', Inst(l)) for l in pre.strip().split('\\n')]
    for it in a.items:
        if it[0] == 'i' and it[1].base == 's_endpgm':
            seq = f"""s_and_b32 s95, s2, 31
s_cmp_lg_u32 s95, 0
s_cbranch_scc1 DBGX_{kidx}_{len(new)}
s_mov_b64 exec, 1
s_waitcnt vmcnt(0) lgkmcnt(0)
s_memrealtime s[94:95]
s_sub_u32 s98, s98, {kidx*512 - kidx*8}
s_subb_u32 s99, s99, 0
s_waitcnt lgkmcnt(0)
s_not_b32 s96, s96
v_mov_b32 v0, 0
v_mov_b32 v1, s96
v_mov_b32 v2, s94
global_atomic_umax v0, v1, s[98:99]
global_atomic_umax v0, v2, s[98:99] offset:4
"""
            lab = f'DBGX_{kidx}_{len(new)}'
            for l in seq.strip().split('\\n'): new.append(('i', Inst(l)))
            new.append(('l', lab))
        new.append(it)
    a.items = new

def kernel_text(name, a, vgprs, sgprs=100, accum=None, extra_desc=''):
    if os.environ.get('DBGSTAMP', '0') == '1': add_dbg_stamps(a, name)
    if STAMP: add_stamps(a, name)
    body, nn = a.finalize()
    if accum is None: accum = (vgprs + 3)//4*4
    txt = f""".text
.globl {name}
.p2align 8
.type {name},@function
{name}:
{body}"""
    desc = f""".amdhsa_kernel {name}
  .amdhsa_next_free_vgpr {vgprs}
  .amdhsa_next_free_sgpr {sgprs}
  .amdhsa_accum_offset {accum}
  .amdhsa_group_segment_fixed_size 0
  .amdhsa_kernarg_size 88
  .amdhsa_user_sgpr_count 2
  .amdhsa_user_sgpr_kernarg_segment_ptr 1
  .amdhsa_system_sgpr_workgroup_id_x 1
  .amdhsa_float_denorm_mode_32 3
  .amdhsa_float_denorm_mode_16_64 3
{extra_desc}.end_amdhsa_kernel
"""
    return txt, desc

def magic(d, xmax):
    for sh in range(8, 32):
        M = -(-(1 << sh) // d)
        if M >= (1 << 24) or xmax * M >= (1 << 32): continue
        if all((x * M) >> sh == x // d for x in range(xmax + 1)): return M, sh
    raise ValueError((d, xmax))

def vdiv(a, dst, src, d, xmax, stmp='s60'):
    M, sh = magic(d, xmax)
    a.I(f's_mov_b32 {stmp}, {M}')
    a.I(f'v_mul_u32_u24 {dst}, {stmp}, {src}')
    a.I(f'v_lshrrev_b32 {dst}, {sh}, {dst}')
def sdiv(a, dst, src, d, xmax):
    M, sh = magic(d, xmax)
    a.I(f's_mul_i32 {dst}, {src}, {M}')
    a.I(f's_lshr_b32 {dst}, {dst}, {sh}')
def r4(b, p='v'): return f'{p}[{b}:{b+3}]'
def r2(b, p='v'): return f'{p}[{b}:{b+1}]'
def hexf(x): return hex(f32bits(x))
def bf16_round_f32(a, dst, src):
    a.I(f'v_cvt_pk_bf16_f32 {dst}, {src}, {src}')
    a.I(f'v_lshlrev_b32 {dst}, 16, {dst}')

def code_prefetch(a, first_label, nbytes, wave_sgpr, tag, vtmp=(60, 61, 62)):
    nw = -(-nbytes // 8192)
    L = f'CPF_{tag}'
    a.I(f's_cmp_ge_u32 {wave_sgpr}, {nw}'); a.I(f's_cbranch_scc1 {L}_E')
    a.I('s_getpc_b64 s[72:73]')
    a.label(f'{L}_PC')
    a.I(f's_add_u32 s72, s72, {first_label}-{L}_PC'); a.I('s_addc_u32 s73, s73, 0')
    a.I(f's_lshl_b32 s74, {wave_sgpr}, 13'); a.I('s_add_u32 s72, s72, s74'); a.I('s_addc_u32 s73, s73, 0')
    a.I(f'v_and_b32 v{vtmp[0]}, 63, v0'); a.I(f'v_lshlrev_b32 v{vtmp[0]}, 7, v{vtmp[0]}')
    a.I(f'v_mov_b32 v{vtmp[1]}, s73'); a.I(f'v_add_co_u32 v{vtmp[0]}, vcc, s72, v{vtmp[0]}'); a.I(f'v_addc_co_u32 v{vtmp[1]}, vcc, 0, v{vtmp[1]}, vcc')
    a.I(f'global_load_dword v{vtmp[2]}, v[{vtmp[0]}:{vtmp[1]}], off')
    a.vm -= 1
    a.label(f'{L}_E')
```

```python
from common import *
import os

S0, S1, O, CI, P, QLO, QHI = 16, 32, 48, 64, 80, 88, 92
KLO = (96, 100); KHI = (104, 108); VF = (112, 120)
IMG = 64*KV_TILE
SPARE = IMG
def r(b, n): return f'v[{b}:{b+n-1}]'
def mf(d, a_, b_, c): return f'v_mfma_f32_32x32x16_bf16 {r(d,16)}, {r(a_,4)}, {r(b_,4)}, {c}'
def mfh(d, a_, b_, c):
    if os.environ.get('QK8', '1') == '1': return f'v_mfma_f32_32x32x8_bf16 {r(d,16)}, {r(a_,2)}, {r(b_,2)}, {c}'
    return mf(d, a_, b_, c)

NFR1, NFR2, NFRO = 288*18, 36*144, 36*18
NFR = NFR1 + NFR2 + NFRO
def prep_issue(a, L):
    a.I('s_mov_b32 s60, -1')
    a.I(f's_cmp_ge_u32 s52, {NFR}'); a.I(f's_cbranch_scc1 {L}_E')
    a.I('v_lshrrev_b32 v9, 1, v1')
    a.I('v_and_b32 v10, 1, v1'); a.I('v_lshlrev_b32 v10, 4, v10')
    a.I(f's_cmp_ge_u32 s52, {NFR1+NFR2}'); a.I(f's_cbranch_scc1 {L}_O')
    a.I(f's_cmp_ge_u32 s52, {NFR1}'); a.I(f's_cbranch_scc1 {L}_2')
    sdiv(a, 's53', 's52', 288, NFR1-1); a.I('s_mul_i32 s54, s53, 288'); a.I('s_sub_u32 s54, s52, s54')
    sdiv(a, 's55', 's54', 3, 287); a.I('s_mul_i32 s61, s55, 3'); a.I('s_sub_u32 s61, s54, s61')
    a.I('s_mul_i32 s60, s55, 54'); a.I('s_mul_i32 s62, s53, 3'); a.I('s_add_u32 s60, s60, s62'); a.I('s_add_u32 s60, s60, s61'); a.I('s_lshl_b32 s60, s60, 10')
    srd(a, 56, 4, 5, WS.W1S_SZ, WS.W1S); srd(a, 64, 46, 47, 576*9216)
    a.I('v_mul_u32_u24 v9, 9216, v9'); a.I(f's_mul_i32 s61, s53, {32*9216}'); a.I('s_lshl_b32 s62, s54, 5'); a.I('s_add_u32 s61, s61, s62')
    a.I(f's_branch {L}_G')
    a.label(f'{L}_2')
    a.I(f's_sub_u32 s52, s52, {NFR1}')
    sdiv(a, 's53', 's52', 36, NFR2-1); a.I('s_mul_i32 s54, s53, 36'); a.I('s_sub_u32 s54, s52, s54')
    sdiv(a, 's55', 's54', 3, 35); a.I('s_mul_i32 s61, s55, 3'); a.I('s_sub_u32 s61, s54, s61')
    sdiv(a, 's62', 's53', 18, 143); a.I('s_mul_i32 s63, s62, 18'); a.I('s_sub_u32 s63, s53, s63')
    a.I('s_mul_i32 s60, s62, 12'); a.I('s_add_u32 s60, s60, s55'); a.I('s_mul_i32 s60, s60, 18'); a.I('s_add_u32 s60, s60, s63'); a.I('s_mul_i32 s60, s60, 3')
    a.I('s_add_u32 s60, s60, s61'); a.I('s_lshl_b32 s60, s60, 10')
    srd(a, 56, 4, 5, WS.W2S_SZ, WS.W2S); srd(a, 64, 48, 49, F*1152)
    a.I('v_mul_u32_u24 v9, 1152, v9'); a.I(f's_mul_i32 s61, s53, {32*1152}'); a.I('s_lshl_b32 s62, s54, 5'); a.I('s_add_u32 s61, s61, s62')
    a.I(f's_branch {L}_G')
    a.label(f'{L}_O')
    a.I(f's_sub_u32 s52, s52, {NFR1+NFR2}')
    sdiv(a, 's53', 's52', 36, NFRO-1); a.I('s_mul_i32 s54, s53, 36'); a.I('s_sub_u32 s54, s52, s54')
    sdiv(a, 's55', 's54', 6, 35); a.I('s_mul_i32 s61, s55, 6'); a.I('s_sub_u32 s61, s54, s61')
    a.I('s_mul_i32 s60, s55, 18'); a.I('s_add_u32 s60, s60, s53'); a.I('s_mul_i32 s60, s60, 6'); a.I('s_add_u32 s60, s60, s61'); a.I('s_lshl_b32 s60, s60, 10')
    srd(a, 56, 4, 5, WS.WOF_SZ, WS.WOF); srd(a, 64, 50, 51, 576*1152)
    a.I('v_bfe_u32 v11, v9, 2, 2')
    a.I('s_cmp_ge_u32 s53, 16'); a.I(f's_cbranch_scc1 {L}_O2')
    a.I('v_lshrrev_b32 v12, 1, v11'); a.I('v_mul_u32_u24 v12, 18, v12'); a.I('v_and_b32 v11, 1, v11'); a.I('v_lshl_add_u32 v12, v11, 2, v12')
    a.I('v_lshrrev_b32 v11, 4, v9'); a.I('v_lshl_add_u32 v12, v11, 3, v12'); a.I('v_and_b32 v11, 3, v9'); a.I('v_add_u32 v9, v12, v11')
    a.I('s_mul_i32 s61, s53, 36'); a.I(f's_branch {L}_O3')
    a.label(f'{L}_O2')
    a.I('v_mul_u32_u24 v12, 72, v11'); a.I('v_lshrrev_b32 v11, 4, v9'); a.I('v_lshlrev_b32 v11, 1, v11'); a.I('v_bfe_u32 v13, v9, 1, 1'); a.I('v_add_u32 v11, v11, v13')
    a.I('v_mul_u32_u24 v11, 18, v11'); a.I('v_add_u32 v12, v12, v11'); a.I('v_and_b32 v11, 1, v9'); a.I('v_add_u32 v12, v12, v11'); a.I('v_add_u32 v9, 16, v12')
    a.I('s_sub_u32 s61, s53, 16'); a.I('s_mul_i32 s61, s61, 288')
    a.label(f'{L}_O3')
    a.I('v_mul_u32_u24 v9, 1152, v9'); a.I('s_mul_i32 s61, s61, 1152'); a.I('s_lshl_b32 s62, s54, 5'); a.I('s_add_u32 s61, s61, s62')
    a.label(f'{L}_G')
    a.I('v_add_u32 v9, v9, v10')
    a.I('s_lshl_b32 s62, s20, 10'); a.I(f's_add_u32 m0, s62, {SPARE}')
    a.I('buffer_load_dwordx4 v9, s[64:67], s61 offen lds')
    a.label(f'{L}_E')

def prep_consume(a, L):
    a.I('s_cmp_eq_u32 s60, -1'); a.I(f's_cbranch_scc1 {L}_E')
    a.I('s_waitcnt vmcnt(0)')
    a.I('v_lshrrev_b32 v9, 2, v1'); a.I('v_lshlrev_b32 v9, 5, v9'); a.I('v_and_b32 v10, 3, v1'); a.I('v_lshl_add_u32 v9, v10, 3, v9')
    a.I('s_lshl_b32 s62, s20, 10'); a.I(f's_add_u32 s62, s62, {SPARE}'); a.I('v_add_u32 v9, s62, v9')
    a.I('ds_read_b64_tr_b16 v[12:13], v9'); a.I('ds_read_b64_tr_b16 v[14:15], v9 offset:512')
    a.I('s_waitcnt lgkmcnt(0)')
    a.I('buffer_store_dwordx4 v[12:15], v5, s[56:59], s60 offen ' + os.environ.get('PREPFLAG', 'sc1'))
    a.label(f'{L}_E')

def k2():
    a = Asm()
    a.I('s_cmp_ge_u32 s2, 256'); a.I('s_cbranch_scc1 K2_END')
    a.I(f's_load_dwordx2 s[4:5], s[0:1], {A_WS}')
    a.I(f's_load_dwordx2 s[46:47], s[0:1], {A_W1}')
    a.I(f's_load_dwordx2 s[48:49], s[0:1], {A_W2}')
    a.I(f's_load_dwordx2 s[50:51], s[0:1], {A_WO}')
    a.I('v_lshrrev_b32 v1, 6, v0'); a.I('v_readfirstlane_b32 s20, v1')
    a.I('v_and_b32 v1, 63, v0')
    a.I('s_and_b32 s21, s2, 7'); a.I('s_lshl_b32 s21, s21, 2'); a.I('s_bfe_u32 s22, s2, 0x20003'); a.I('s_add_u32 s21, s21, s22')
    a.I('s_lshr_b32 s22, s2, 5')
    a.I('s_and_b32 s23, s20, 7')
    a.I('s_lshr_b32 s24, s20, 3')
    a.I('s_lshl_b32 s25, s22, 3'); a.I('s_add_u32 s25, s25, s23')
    a.I('s_mov_b32 s40, 0')
    a.I('v_lshlrev_b32 v5, 4, v1')
    a.I('v_and_b32 v6, 31, v1'); a.I('v_lshlrev_b32 v7, 2, v6'); a.I('v_lshlrev_b32 v8, 2, v1')
    a.I('s_mul_i32 s44, s24, 72'); a.I('s_add_u32 s44, s44, s23'); a.I('s_lshl_b32 s44, s44, 10')
    a.I('s_waitcnt lgkmcnt(0)')
    a.I(f's_mul_i32 s26, s21, {IMG}')
    a.I('s_add_u32 s8, s4, s26'); a.I('s_addc_u32 s9, s5, 0')
    a.I(f's_add_u32 s8, s8, {WS.KVIMG}'); a.I('s_addc_u32 s9, s9, 0')
    a.I(f's_mov_b32 s10, {IMG}'); a.I('s_mov_b32 s11, 0x00020000')
    def dma(j):
        a.I(f's_add_u32 s26, s44, {j*8192}')
        a.I('s_mov_b32 m0, s26')
        a.vmem('buffer_load_dwordx4 v5, s[8:11], s26 offen lds')
    srd(a, 12, 4, 5, WS.QIMG_SZ, WS.QIMG)
    srd(a, 16, 4, 5, WS.KMAX_SZ, WS.KMAX)
    a.I('s_lshl_b32 s26, s21, 6'); a.I('s_add_u32 s26, s26, s25'); a.I(f's_mul_i32 s26, s26, {QT_BYTES}')
    a.vmem(f'buffer_load_dwordx4 {r(QLO,4)}, v5, s[12:15], s26 offen')
    a.vmem(f'buffer_load_dword v{QHI}, v7, s[12:15], s26 offen offset:1024')
    a.I('s_lshl_b32 s26, s21, 8')
    a.vmem('buffer_load_dword v9, v8, s[16:19], s26 offen')
    a.label('K2_RESTART')
    dma(0); dma(1)
    a.label('K2_SKIPQ0')
    stamp(a, 0)
    a.I(f's_mul_i32 s27, s24, {32*KV_TILE}')
    a.I('v_add_u32 v2, s27, v5'); a.I('v_add_u32 v3, s27, v7')
    a.I('v_min_u32 v4, 17, v6'); a.I('v_lshrrev_b32 v10, 5, v1'); a.I('v_mul_u32_u24 v11, 18, v10')
    a.I('v_add_u32 v4, v4, v11'); a.I('v_lshlrev_b32 v4, 4, v4'); a.I('v_add_u32 v4, s27, v4')
    for j in range(16): a.I(f'v_mov_b32 v{O+j}, 0')
    a.I('v_cmp_eq_u32 vcc, 18, v6'); a.I('v_mov_b32 v12, 0x3f803f80'); a.I('v_cndmask_b32 v12, 0, v12, vcc')
    for j in range(16): a.I(f'v_mov_b32 v{VF[0]+j}, v12')
    a.I('s_mov_b32 s42, 0x3ffff'); a.I('s_mov_b32 s43, 0x3ffff'); a.I('s_mov_b32 s69, 0x07060302')
    a.I('s_cmp_lg_u32 s40, 0'); a.I('s_cbranch_scc1 K2_SKIPQ')
    for j in range(1, 4): a.I(f'v_mov_b32 v{QHI+j}, 0')
    for b in KHI:
        for j in range(1, 4): a.I(f'v_mov_b32 v{b+j}, 0')
    a.I('s_waitcnt vmcnt(2)')
    a.I('v_cmp_eq_u32 vcc, 0, v10')
    a.I(f'v_cndmask_b32 v{QHI}, 0, v{QHI}, vcc')
    a.I('v_mov_b32 v12, 0')
    for q in [QLO, QLO+1, QLO+2, QLO+3, QHI]:
        a.I(f'v_lshlrev_b32 v13, 16, v{q}'); a.I('v_fmac_f32 v12, v13, v13')
        a.I(f'v_and_b32 v13, 0xffff0000, v{q}'); a.I('v_fmac_f32 v12, v13, v13')
    a.I('v_mov_b32 v13, v12'); a.I('v_permlane32_swap_b32 v12, v13'); a.I('v_add_f32 v12, v12, v13')
    for dpp in ('quad_perm:[1,0,3,2]', 'quad_perm:[2,3,0,1]', 'row_half_mirror', 'row_mirror'):
        a.I(f'v_max_f32_dpp v9, v9, v9 {dpp} row_mask:0xf bank_mask:0xf')
    a.I('v_mov_b32 v13, v9'); a.I('v_permlane16_swap_b32 v9, v13'); a.I('v_max_f32 v9, v9, v13')
    a.I('v_mov_b32 v13, v9'); a.I('v_permlane32_swap_b32 v9, v13'); a.I('v_max_f32 v9, v9, v13')
    a.I('v_mul_f32 v12, v12, v9'); a.I('v_sqrt_f32 v12, v12')
    a.I(f'v_mul_f32 v12, {hexf(-1.015625)}, v12')
    for j in range(16): a.I(f'v_mov_b32 v{CI+j}, v12')
    a.label('K2_SKIPQ')
    stamp(a, 1)
    a.I('s_cmp_eq_u32 s40, 0'); a.I('s_cbranch_scc1 K2_MAIN')
    for j in range(2, 9): dma(j)
    a.I('s_waitcnt vmcnt(0) lgkmcnt(0)'); a.I('s_barrier')
    a.I('v_mov_b32 v12, 0xff800000')
    a.I('v_mov_b32 v14, v2'); a.I('v_mov_b32 v15, v3')
    a.I('s_mov_b32 s28, 32')
    a.label('K2_MAXLOOP')
    a.I(f'ds_read_b128 {r(KLO[0],4)}, v14'); a.I(f'ds_read_b32 v{KHI[0]}, v15 offset:1024')
    a.I('s_waitcnt lgkmcnt(0)')
    a.I(mf(S0, KLO[0], QLO, '0')); a.I(mfh(S0, KHI[0], QHI, r(S0,16)))
    for j in range(0, 16, 2): a.I(f'v_max3_f32 v12, v12, v{S0+j}, v{S0+j+1}')
    a.I(f'v_add_u32 v14, {KV_TILE}, v14'); a.I(f'v_add_u32 v15, {KV_TILE}, v15')
    a.I('s_sub_u32 s28, s28, 1'); a.I('s_cmp_lg_u32 s28, 0'); a.I('s_cbranch_scc1 K2_MAXLOOP')
    a.I('v_mov_b32 v13, v12'); a.I('v_permlane32_swap_b32 v12, v13'); a.I('v_max_f32 v12, v12, v13')
    a.I('s_lshl_b32 s28, s20, 8'); a.I(f's_add_u32 s28, s28, {SPARE}'); a.I('v_add_u32 v14, s28, v8')
    a.I('ds_write_b32 v14, v12')
    a.I('s_waitcnt lgkmcnt(0)'); a.I('s_barrier')
    a.I('s_xor_b32 s28, s20, 8'); a.I('s_lshl_b32 s28, s28, 8'); a.I(f's_add_u32 s28, s28, {SPARE}'); a.I('v_add_u32 v14, s28, v8')
    a.I('ds_read_b32 v13, v14'); a.I('s_waitcnt lgkmcnt(0)')
    a.I('v_max_f32 v12, v12, v13'); a.I('v_sub_f32 v12, 0, v12')
    for j in range(16): a.I(f'v_mov_b32 v{CI+j}, v12')
    a.label('K2_MAIN')
    a.I('s_waitcnt vmcnt(0) lgkmcnt(0)'); a.I('s_barrier')
    stamp(a, 2)
    def rdK(t, buf):
        a.I(f'ds_read_b128 {r(KLO[buf],4)}, v2 offset:{t*KV_TILE}')
        a.I(f'ds_read_b32 v{KHI[buf]}, v3 offset:{t*KV_TILE+1024}')
    def rdV(t, buf):
        a.I('s_mov_b64 exec, s[42:43]')
        a.I(f'ds_read_b128 {r(VF[buf],4)}, v4 offset:{t*KV_TILE+VT_OFF}')
        a.I(f'ds_read_b128 {r(VF[buf]+4,4)}, v4 offset:{t*KV_TILE+VT_OFF+576}')
        a.I('s_mov_b64 exec, -1')
    rdK(0, 0); rdK(1, 1); rdV(0, 0)
    for j in range(4): a.I(f'v_mov_b32 v{P+4+j}, 0')
    a.I('s_waitcnt lgkmcnt(0)')
    a.I(mf(S0, KLO[0], QLO, r(CI,16))); a.I(mfh(S0, KHI[0], QHI, r(S0,16)))
    U = 8
    def tile(t, extra=None):
        cur = (S0, S1)[t & 1]; nxt = (S0, S1)[(t+1) & 1]
        kb = (t+1) & 1
        a.I('s_waitcnt lgkmcnt(0)')
        a.I(mf(nxt, KLO[kb], QLO, r(CI,16)))
        a.I(mf(O, VF[(t+1) & 1]+4, P+4, r(O,16)))
        for j in range(8): a.I(f'v_exp_f32 v{cur+j}, v{cur+j}')
        a.I(mfh(nxt, KHI[kb], QHI, r(nxt,16)))
        if 'nold' not in os.environ.get('K2A', '') or (t % 2 == 0 and 'half' in os.environ.get('K2A', '')): rdK(t+2, t & 1); rdV(t+1, (t+1) & 1)
        if extra: extra()
        PK = (lambda d, x, y: f'v_perm_b32 v{d}, v{y}, v{x}, s69') if os.environ.get('K2PERM', '0') == '1' else (lambda d, x, y: f'v_cvt_pk_bf16_f32 v{d}, v{x}, v{y}')
        for j in range(4): a.I(PK(P+j, cur+2*j, cur+2*j+1))
        for j in range(8): a.I(f'v_exp_f32 v{cur+8+j}, v{cur+8+j}')
        a.I(mf(O, VF[t & 1], P, r(O,16)))
        for j in range(4): a.I(PK(P+4+j, cur+8+2*j, cur+8+2*j+1))
    PF = 81
    a.I('s_setprio 3' if os.environ.get('K2PRIO', '1') == '1' else 's_nop 0')
    dl = [[2, 3], [4, 5], [6, 7], [8]]
    for t in range(U):
        if t == 5:
            a.I('s_waitcnt vmcnt(0)'); a.I('s_barrier')
        if t == 5 and os.environ.get('NOCPF', '0') != '1':
            a.I('s_cmp_ge_u32 s2, 8'); a.I('s_cbranch_scc1 K2_NCP')
            code_prefetch(a, 'k3_kernel', 16384, 's20', 'K2', vtmp=(12, 13, 14))
            a.label('K2_NCP')
        if t == 6:
            a.I('s_mul_i32 s52, s2, 48'); a.I('s_add_u32 s52, s52, s20'); a.I('s_mov_b32 s68, s52')
            prep_issue(a, 'K2_PI0')
        tile(t, (lambda t=t: [dma(j) for j in dl[t]]) if t < 4 else None)
    for v in (2, 3, 4): a.I(f'v_add_u32 v{v}, {U*KV_TILE}, v{v}')
    a.I('s_mov_b32 s28, 3')
    a.label('K2_LOOP')
    a.I('s_cmp_eq_u32 s28, 3'); a.I('s_cbranch_scc1 K2_P2')
    a.I('s_cmp_eq_u32 s28, 2'); a.I('s_cbranch_scc1 K2_P1')
    a.I('s_setprio 0' if os.environ.get('K2PRIO', '1') == '1' else 's_nop 0'); a.I('s_branch K2_PD')
    a.label('K2_P1'); a.I('s_setprio 1' if os.environ.get('K2PRIO', '1') == '1' else 's_nop 0'); a.I('s_branch K2_PD')
    a.label('K2_P2'); a.I('s_setprio 2' if os.environ.get('K2PRIO', '1') == '1' else 's_nop 0')
    a.label('K2_PD')
    prep_consume(a, 'K2_PC')
    a.I('s_add_u32 s68, s68, 16'); a.I('s_mov_b32 s52, s68'); a.I('s_mov_b32 s60, -1')
    a.I('s_cmp_eq_u32 s28, 1'); a.I('s_cbranch_scc1 K2_PI1_E')
    prep_issue(a, 'K2_PI1')
    for t in range(U): tile(t)
    for v in (2, 3, 4): a.I(f'v_add_u32 v{v}, {U*KV_TILE}, v{v}')
    a.I('s_sub_u32 s28, s28, 1'); a.I('s_cmp_lg_u32 s28, 0'); a.I('s_cbranch_scc1 K2_LOOP')
    a.I(mf(O, VF[1]+4, P+4, r(O,16)))
    stamp(a, 3)
    a.I('v_mov_b32 v12, 0'); a.I(f'v_mov_b32 v13, {SPARE}')
    a.I('s_cmp_lg_u32 s20, 0'); a.I('s_cbranch_scc1 K2_NZ'); a.I('ds_write_b32 v13, v12'); a.label('K2_NZ')
    a.I('s_waitcnt lgkmcnt(0)')
    a.I('s_barrier')
    a.I('s_mul_i32 s28, s23, 3072'); a.I('v_add_u32 v14, s28, v5')
    a.I('s_cmp_eq_u32 s24, 0'); a.I('s_cbranch_scc1 K2_M0')
    for j in range(3): a.I(f'ds_write_b128 v14, {r(O+4*j,4)} offset:{j*1024}')
    a.I('s_waitcnt lgkmcnt(0)')
    a.I('s_barrier')
    a.I('s_branch K2_M1')
    a.label('K2_M0')
    a.I('s_barrier')
    for j in range(3): a.I(f'ds_read_b128 {r(S0+4*j,4)}, v14 offset:{j*1024}')
    a.I('s_waitcnt lgkmcnt(0)')
    for j in range(12): a.I(f'v_add_f32 v{O+j}, v{O+j}, v{S0+j}')
    a.I(f'v_mov_b32 v12, v{O+10}'); a.I(f'v_permlane32_swap_b32 v{O+10}, v12')
    a.I(f's_mov_b32 s29, {hexf(2.0**-90)}')
    a.I(f'v_cmp_nle_f32 vcc, s29, v{O+10}')
    a.I('s_cmp_eq_u64 vcc, 0'); a.I('s_cbranch_scc1 K2_M1')
    a.I('v_mov_b32 v12, 1'); a.I(f'v_mov_b32 v13, {SPARE}'); a.I('ds_write_b32 v13, v12')
    a.I('s_waitcnt lgkmcnt(0)')
    a.label('K2_M1')
    a.I('s_barrier')
    a.I(f'v_mov_b32 v13, {SPARE}'); a.I('ds_read_b32 v12, v13'); a.I('s_waitcnt lgkmcnt(0)')
    a.I('v_readfirstlane_b32 s29, v12')
    a.I('s_cmp_eq_u32 s29, 0'); a.I('s_cbranch_scc1 K2_FIN')
    a.I('s_cmp_lg_u32 s40, 0'); a.I('s_cbranch_scc1 K2_FIN')
    a.I('s_mov_b32 s40, 1')
    a.I('s_barrier')
    a.I('s_branch K2_RESTART')
    a.label('K2_FIN')
    stamp(a, 4)
    a.I('s_cmp_lg_u32 s24, 0'); a.I('s_cbranch_scc1 K2_END')
    a.I(f'v_rcp_f32 v12, v{O+10}')
    for j in range(10): a.I(f'v_mul_f32 v{O+j}, v{O+j}, v12')
    for j in range(5): a.I(f'v_cvt_pk_bf16_f32 v{S0+j}, v{O+2*j}, v{O+2*j+1}')
    srd(a, 12, 4, 5, WS.OF_SZ, WS.OF)
    a.I('v_bfe_u32 v12, v1, 4, 1'); a.I('s_lshl_b32 s28, s25, 1'); a.I('v_add_u32 v12, s28, v12')
    a.I('v_mul_u32_u24 v12, 18, v12'); a.I('v_lshlrev_b32 v12, 10, v12')
    a.I('v_and_b32 v13, 15, v1'); a.I('v_lshl_add_u32 v12, v13, 4, v12')
    a.I('v_lshrrev_b32 v14, 5, v1'); a.I('v_lshl_add_u32 v14, v14, 8, v12')
    a.I('s_lshr_b32 s28, s21, 1'); a.I('s_lshl_b32 s28, s28, 10'); a.I('s_and_b32 s29, s21, 1'); a.I('s_lshl_b32 s29, s29, 9'); a.I('s_add_u32 s28, s28, s29')
    a.vmem(f'buffer_store_dwordx4 {r(S0,4)}, v14, s[12:15], s28 offen ' + os.environ.get('OFLAG', ''))
    a.I('s_lshr_b32 s28, s21, 4'); a.I('s_add_u32 s28, s28, 16'); a.I('s_lshl_b32 s28, s28, 10')
    a.I('s_bfe_u32 s29, s21, 0x20002'); a.I('s_lshl_b32 s29, s29, 8'); a.I('s_add_u32 s28, s28, s29')
    a.I('s_and_b32 s29, s21, 3'); a.I('s_lshl_b32 s29, s29, 2'); a.I('s_add_u32 s28, s28, s29')
    a.I('s_mov_b32 exec_hi, 0')
    a.vmem(f'buffer_store_dword v{S0+4}, v12, s[12:15], s28 offen')
    a.label('K2_END')
    a.I('s_endpgm')
    return kernel_text('k2_kernel', a, 128), (256, 1024, 163840)
```

```python
from common import *
import os

def wave_setup(a):
    a.I('v_lshrrev_b32 v1, 6, v0')
    a.I('v_readfirstlane_b32 s20, v1')
    a.I('v_and_b32 v1, 63, v0')
    a.I('v_lshlrev_b32 v2, 4, v1')

def apply_gs(a, raw, dst, T, G, Sx, emit=None):
    L = []
    for q in range(4):
        L.append(f'v_lshlrev_b32 v{T+2*q}, 16, {raw(q)}')
        L.append(f'v_and_b32 v{T+2*q+1}, 0xffff0000, {raw(q)}')
    for q in range(8):
        L.append(f'v_fma_f32 v{T+q}, v{T+q}, v{G+q}, v{Sx+q}')
    for q in range(4):
        L.append(f'v_cvt_pk_bf16_f32 {dst(q)}, v{T+2*q}, v{T+2*q+1}')
    return L

ACC = 16
WF, NWF = 88, 12
XB = 136
XR, XRING, XD = 16, 8, 7
GV, TT, XO, MT = 80, 112, 120, 136
NSLOT, STAGE = 5, 18432
XOFF1 = NSLOT*STAGE
GTOFF = XOFF1 + 6*8192
K1_LDS = GTOFF + 4608
def acc(nb, tb): return ACC + (nb*2 + tb)*4

def k1_consumer(a, swap):
    nks = 18
    ltok, xtok = {}, {}
    def wreg(z): return WF + (z % NWF)*4
    def wread(z):
        ks, nb = divmod(z, 9)
        st = ks // 2; slot = st % NSLOT
        base = 6 + slot // 3
        off = (slot % 3)*STAGE + ((ks & 1)*9 + nb)*1024
        ltok[z] = a.lds(f'ds_read_b128 {r4(wreg(z))}, v{base} offset:{off}')
    def xread(ks):
        for tb in range(2):
            xtok[ks] = a.lds(f'ds_read_b128 {r4(XB+(ks & 1)*8+tb*4)}, v{9+tb} offset:{(ks % 6)*8192}')
    a.I('s_barrier')
    stamp(a, 1)
    xread(0)
    for z in range(9): wread(z)
    nz = 9
    for ks in range(nks):
        if ks == 6: stamp(a, 4)
        if ks & 1 and ks + 1 < nks: a.I('s_barrier')
        if ks + 1 < nks: xread(ks + 1)
        xb = XB + (ks & 1)*8
        for nb in range(9):
            z = ks*9 + nb
            if nb == 0: a.wait(lg=max(ltok[z+2], xtok[ks]))
            elif nb % 3 == 0: a.wait(lg=ltok[z+2])
            wf = wreg(z)
            for tb in range(2):
                c = '0' if ks == 0 else r4(acc(nb, tb))
                if swap: a.I(f'v_mfma_f32_16x16x32_bf16 {r4(acc(nb,tb))}, {r4(xb+tb*4)}, {r4(wf)}, {c}')
                else:    a.I(f'v_mfma_f32_16x16x32_bf16 {r4(acc(nb,tb))}, {r4(wf)}, {r4(xb+tb*4)}, {c}')
            if nz < nks*9: wread(nz); nz += 1
    stamp(a, 2)
    a.I('s_barrier')
    stamp(a, 3)

def k1_loader(a):
    nst = 9
    wtok = {}
    def W(st):
        slot = st % NSLOT
        a.I(f's_add_u32 m0, s23, {slot*STAGE}'); a.I(f's_mov_b32 s24, {st*STAGE}')
        a.I('s_mov_b32 exec_hi, 0'); a.vmem('buffer_load_dwordx4 v3, s[8:11], s24 offen lds'); a.I('s_mov_b32 exec_hi, -1')
        for o in (512, 1536, 2560, 3584): a.vmem(f'buffer_load_dwordx4 v3, s[8:11], s24 offen offset:{o} lds')
        wtok[st] = a.vm
    W(0); W(1); W(2)
    a.I('s_barrier')
    a.wait(vm=wtok[0]); a.I('s_barrier')
    for s in range(1, nst):
        if s + 2 < nst: W(s+2)
        a.wait(vm=wtok[s]); a.I('s_barrier')
    a.I('s_barrier')
    a.I('s_endpgm')

def k1_producer(a):
    nst = 9
    XR4, NRING = 16, 4
    xtok, gtok = {}, {}
    def xload_items(s):
        sl = s % NRING
        L = []
        for t in range(4):
            def f(t=t):
                a.I(f's_mov_b32 s25, {s*2048 + t*KS*1024}')
                a.vmem(f'buffer_load_dwordx4 {r4(XR4+sl*16+4*t)}, v4, s[12:15], s25 offen')
                if t == 3: xtok[s] = a.vm
            L.append(f)
        return L
    def gread(s):
        for q in range(4): a.lds(f'ds_read_b128 {r4(GV+(s & 1)*16+4*q)}, v8 offset:{s*512+q*16}')
        gtok[s] = a.lg
    def produce(s):
        vm_items = xload_items(s + 3) if s + 3 < nst else []
        sl = s % NRING; G = GV + (s & 1)*16
        a.wait(vm=xtok[s], lg=gtok[s])
        for t in range(4):
            raw = XR4+sl*16+4*t; dst = XO+(t & 1)*4
            for q in range(4):
                a.I(f'v_lshlrev_b32 v{TT+2*q}, 16, v{raw+q}'); a.I(f'v_and_b32 v{TT+2*q+1}, 0xffff0000, v{raw+q}')
            for q in range(8): a.I(f'v_fma_f32 v{TT+q}, v{TT+q}, v{G+q}, v{G+8+q}')
            for q in range(4): a.I(f'v_cvt_pk_bf16_f32 v{dst+q}, v{TT+2*q}, v{TT+2*q+1}')
            a.lds(f'ds_write_b128 v9, {r4(dst)} offset:{((2*s) % 6)*8192 + t*1024}')
            if vm_items: vm_items.pop(0)()
        if s + 2 < nst: gread(s + 2)
    srd(a, 16, 4, 5, WS.MODP_SZ, WS.MODP)
    a.I('v_lshlrev_b32 v11, 2, v10')
    for i in range(3):
        for z, idx in enumerate((0, 3456, 576, 3456+576)):
            a.I(f's_mov_b32 s26, {(idx+256*i)*4}'); a.vmem(f'buffer_load_dword v{MT+4*i+z}, v11, s[16:19], s26 offen')
    mtok = a.vm
    for s in range(3):
        for f in xload_items(s): f()
    a.wait(vm=mtok)
    for i in range(3):
        b = MT + 4*i
        a.I(f'v_add_f32 v{b}, v{b}, v{b+1}'); bf16_round_f32(a, f'v{b}', f'v{b}')
        a.I(f'v_add_f32 v{b+2}, v{b+2}, v{b+3}'); bf16_round_f32(a, f'v{b+2}', f'v{b+2}')
        a.I(f'v_add_f32 v{b+2}, 1.0, v{b+2}'); bf16_round_f32(a, f'v{b+2}', f'v{b+2}')
        a.I(f'v_mul_f32 v{b}, s31, v{b}'); a.I(f'v_mul_f32 v{b+2}, s31, v{b+2}')
        a.I(f'v_add_u32 v12, {256*i}, v10')
        a.I('v_lshrrev_b32 v13, 5, v12'); a.I('v_lshlrev_b32 v13, 2, v13'); a.I('v_bfe_u32 v14, v12, 2, 2'); a.I('v_add_u32 v13, v13, v14')
        a.I('v_bfe_u32 v14, v12, 4, 1'); a.I('v_lshlrev_b32 v14, 2, v14'); a.I('v_and_b32 v15, 3, v12'); a.I('v_add_u32 v14, v14, v15')
        a.I('v_lshlrev_b32 v15, 6, v13'); a.I('v_lshl_add_u32 v15, v14, 2, v15'); a.I(f'v_add_u32 v15, {GTOFF}, v15')
        if i == 2:
            a.I('v_cmp_gt_u32 vcc, 64, v10'); a.I('s_and_saveexec_b64 s[36:37], vcc')
        a.lds(f'ds_write_b32 v15, v{b+2}'); a.lds(f'ds_write_b32 v15, v{b} offset:32')
        if i == 2: a.I('s_mov_b64 exec, s[36:37]')
    a.I('s_waitcnt lgkmcnt(0)'); a.I('s_barrier')
    gread(0); gread(1)
    for s in range(nst):
        produce(s)
        a.wait(lg=a.lg - (4 if s + 2 < nst else 0)); a.I('s_barrier')
    a.I('s_barrier')
    a.I('s_endpgm')

def k1():
    import k0 as K0
    a = Asm()
    a.I(f's_cmp_ge_u32 s2, {192+K0.NPREP}'); a.I('s_cbranch_scc1 K1_END')
    a.I(f's_load_dwordx2 s[4:5], s[0:1], {A_WS}')
    a.I('s_cmp_ge_u32 s2, 192'); a.I('s_cbranch_scc1 K1_PREP')
    wave_setup(a)
    a.I('s_and_b32 s33, s20, 3')
    a.I('s_mul_i32 s23, s33, 4608'); a.I('v_add_u32 v3, s23, v2')
    a.I('v_mov_b32 v6, v2'); a.I(f'v_add_u32 v7, {3*STAGE}, v2')
    a.I('v_lshrrev_b32 v8, 4, v1'); a.I('v_lshlrev_b32 v8, 6, v8'); a.I(f'v_add_u32 v8, {GTOFF}, v8')
    a.I('s_lshl_b32 s26, s33, 11'); a.I(f's_add_u32 s26, s26, {XOFF1}'); a.I('v_add_u32 v9, s26, v2'); a.I('v_add_u32 v10, 1024, v9')
    a.I('s_and_b32 s26, s2, 7'); a.I('s_lshr_b32 s27, s2, 3')
    a.I('s_lshr_b32 s21, s26, 1'); a.I('s_lshl_b32 s21, s21, 2'); a.I('s_and_b32 s28, s27, 3'); a.I('s_add_u32 s21, s21, s28')
    a.I('s_and_b32 s22, s26, 1'); a.I('s_mul_i32 s22, s22, 6'); a.I('s_lshr_b32 s28, s27, 2'); a.I('s_add_u32 s22, s22, s28')
    a.I('s_lshl_b32 s26, s21, 3'); a.I('s_lshl_b32 s27, s33, 1'); a.I('s_add_u32 s29, s26, s27')
    a.I('s_lshl_b32 s34, s21, 2'); a.I('s_add_u32 s34, s34, s33')
    a.I('s_cmp_lt_u32 s20, 4'); a.I('s_cbranch_scc1 K1_CONS')
    a.I('s_waitcnt lgkmcnt(0)')
    a.I('s_cmp_lt_u32 s20, 8'); a.I('s_cbranch_scc1 K1_PROD')
    a.I(f's_mul_i32 s26, s22, {18*9*1024}')
    a.I('s_add_u32 s8, s4, s26'); a.I('s_addc_u32 s9, s5, 0')
    a.I(f's_add_u32 s8, s8, {WS.WQKVF}'); a.I('s_addc_u32 s9, s9, 0')
    a.I(f's_mov_b32 s10, {18*9*1024}'); a.I('s_mov_b32 s11, 0x00020000')
    k1_loader(a)
    a.label('K1_PROD')
    srd(a, 12, 4, 5, WS.NF_SZ, WS.NF)
    a.I('s_and_b32 s36, s20, 1'); a.I('s_bfe_u32 s37, s20, 0x10001')
    a.I('s_lshl_b32 s26, s21, 3'); a.I('s_lshl_b32 s27, s37, 2'); a.I('s_add_u32 s26, s26, s27')
    a.I(f's_mul_i32 s27, s26, {KS*1024}'); a.I('s_lshl_b32 s28, s36, 10'); a.I('s_add_u32 s27, s27, s28'); a.I('v_add_u32 v4, s27, v2')
    a.I('s_lshl_b32 s28, s36, 8'); a.I('v_add_u32 v8, s28, v8')
    a.I('s_lshl_b32 s27, s37, 12'); a.I('s_lshl_b32 s28, s36, 13'); a.I('s_add_u32 s27, s27, s28'); a.I(f's_add_u32 s27, s27, {XOFF1}'); a.I('v_add_u32 v9, s27, v2')
    a.I('s_mov_b32 s31, 1.0'); a.I('s_cmp_lt_u32 s22, 4'); a.I(f's_cselect_b32 s31, {hexf(QSCALE)}, s31')
    a.I('v_subrev_u32 v10, 256, v0')
    k1_producer(a)
    a.label('K1_CONS')
    a.I('s_waitcnt lgkmcnt(0)')
    a.I('s_barrier')
    a.I('s_cmp_ge_u32 s22, 8'); a.I('s_cbranch_scc1 K1_V')
    k1_consumer(a, False)
    a.I('v_and_b32 v10, 15, v1'); a.I('v_lshrrev_b32 v13, 4, v1')
    a.I('s_mov_b32 s26, s34')
    a.I('s_and_b32 s30, s22, 3'); a.I('s_lshl_b32 s30, s30, 3')
    ST = 88
    def qk_store(img_off, img_sz, tilebytes, hi_off):
        srd(a, 16, 4, 5, img_sz, img_off)
        a.I('v_lshrrev_b32 v14, 1, v13'); a.I('v_add_u32 v14, s30, v14'); a.I('v_lshlrev_b32 v14, 6, v14'); a.I('v_add_u32 v14, s26, v14')
        a.I(f's_movk_i32 s31, {tilebytes}'); a.I('v_mul_lo_u32 v14, v14, s31')
        a.I('v_and_b32 v15, 1, v13'); a.I('v_lshl_add_u32 v14, v15, 9, v14'); a.I('v_lshl_add_u32 v14, v10, 4, v14')
        for tb in range(2):
            for p in range(4):
                d = ST + (tb*4+p)*4
                b0, b1 = acc(2*p, tb), acc(2*p+1, tb)
                a.I(f'v_cvt_pk_bf16_f32 v{d}, v{b0}, v{b0+1}'); a.I(f'v_cvt_pk_bf16_f32 v{d+1}, v{b0+2}, v{b0+3}')
                a.I(f'v_cvt_pk_bf16_f32 v{d+2}, v{b1}, v{b1+1}'); a.I(f'v_cvt_pk_bf16_f32 v{d+3}, v{b1+2}, v{b1+3}')
                a.I(f's_mov_b32 s31, {p*2*64*tilebytes}')
                a.vmem(f'buffer_store_dwordx4 {r4(d)}, v14, s[16:19], s31 offen offset:{tb*256} ' + os.environ.get('K1FLAG', 'sc1'))
        a.I('v_lshlrev_b32 v14, 1, v13'); a.I('v_add_u32 v14, s30, v14'); a.I('v_lshlrev_b32 v14, 6, v14'); a.I('v_add_u32 v14, s26, v14')
        a.I(f's_movk_i32 s31, {tilebytes}'); a.I('v_mul_lo_u32 v14, v14, s31'); a.I('v_lshl_add_u32 v14, v10, 2, v14')
        a.I(f's_mov_b32 s31, {64*tilebytes}')
        for tb in range(2):
            b = acc(8, tb); d = ST + 32 + tb*2
            a.I(f'v_cvt_pk_bf16_f32 v{d}, v{b}, v{b+1}'); a.I(f'v_cvt_pk_bf16_f32 v{d+1}, v{b+2}, v{b+3}')
            a.vmem(f'buffer_store_dword v{d}, v14, s[16:19], 0 offen offset:{hi_off+tb*64}')
            a.vmem(f'buffer_store_dword v{d+1}, v14, s[16:19], s31 offen offset:{hi_off+tb*64}')
    a.I('s_cmp_ge_u32 s22, 4'); a.I('s_cbranch_scc1 K1_K')
    qk_store(WS.QIMG, WS.QIMG_SZ, QT_BYTES, 1024)
    a.I('s_endpgm')
    a.label('K1_K')
    qk_store(WS.KVIMG, WS.KVIMG_SZ, KV_TILE, 1024)
    N0 = 88
    for p in range(4):
        for tb in range(2):
            b0, b1 = acc(2*p, tb), acc(2*p+1, tb)
            d = N0 + p*2 + tb
            a.I(f'v_mul_f32 v{d}, v{b0}, v{b0}')
            for v in [b0+1, b0+2, b0+3, b1, b1+1, b1+2, b1+3]: a.I(f'v_fmac_f32 v{d}, v{v}, v{v}')
    for p in range(4):
        for tb in range(2):
            d = N0 + p*2 + tb
            a.I(f'v_mov_b32 v9, v{d}'); a.I(f'v_permlane16_swap_b32 v{d}, v9'); a.I(f'v_add_f32 v{d}, v{d}, v9')
        a.I(f'v_max_f32 v{N0+16+p}, v{N0+p*2}, v{N0+p*2+1}')
    for e in range(2):
        for tb in range(2):
            b = acc(8, tb); d = N0 + 24 + e*2 + tb
            a.I(f'v_mul_f32 v{d}, v{b+2*e}, v{b+2*e}'); a.I(f'v_fmac_f32 v{d}, v{b+2*e+1}, v{b+2*e+1}')
        a.I(f'v_max_f32 v{N0+20+e}, v{N0+24+e*2}, v{N0+25+e*2}')
    for q in range(6):
        d = N0 + 16 + q
        for dpp in ('quad_perm:[1,0,3,2]', 'quad_perm:[2,3,0,1]', 'row_half_mirror', 'row_mirror'):
            a.I(f'v_max_f32_dpp v{d}, v{d}, v{d} {dpp} row_mask:0xf bank_mask:0xf')
    a.I('s_lshl_b32 s28, s20, 6')
    a.I('v_lshrrev_b32 v9, 5, v1'); a.I('v_lshlrev_b32 v9, 3, v9'); a.I('v_add_u32 v9, s28, v9')
    a.I('v_lshlrev_b32 v11, 4, v13'); a.I('v_add_u32 v11, s28, v11')
    for p in range(4): a.I(f'ds_write_b32 v9, v{N0+16+p} offset:{p*16}')
    for e in range(2): a.I(f'ds_write_b32 v11, v{N0+20+e} offset:{e*8+4}')
    a.I('v_and_b32 v12, 7, v1'); a.I('v_lshlrev_b32 v12, 3, v12'); a.I('v_add_u32 v12, s28, v12')
    a.I(f'ds_read_b64 {r2(N0+30)}, v12'); a.I('s_waitcnt lgkmcnt(0)')
    a.I(f'v_add_f32 v9, v{N0+30}, v{N0+31}')
    srd(a, 16, 4, 5, WS.KMAX_SZ, WS.KMAX)
    a.I('v_and_b32 v14, 7, v1'); a.I('v_add_u32 v14, s30, v14'); a.I('v_lshlrev_b32 v14, 6, v14'); a.I('v_add_u32 v14, s26, v14'); a.I('v_lshlrev_b32 v14, 2, v14')
    a.I('s_mov_b64 exec, 0xff')
    a.I('buffer_store_dword v9, v14, s[16:19], 0 offen')
    a.I('s_endpgm')
    a.label('K1_V')
    a.I('v_bfe_u32 v11, v1, 3, 1'); a.I('v_lshlrev_b32 v11, 10, v11')
    a.I('v_and_b32 v12, 0x30, v1'); a.I('v_and_b32 v13, 7, v1'); a.I('v_add_u32 v12, v12, v13'); a.I('v_lshl_add_u32 v11, v12, 4, v11')
    a.I('s_lshl_b32 s26, s33, 11'); a.I(f's_add_u32 s26, s26, {XOFF1}'); a.I('v_add_u32 v9, s26, v11'); a.I('v_add_u32 v10, 128, v9')
    k1_consumer(a, True)
    a.I('v_and_b32 v10, 15, v1'); a.I('v_lshrrev_b32 v13, 4, v1')
    a.I('s_mov_b32 s26, s34')
    srd(a, 16, 4, 5, WS.KVIMG_SZ, WS.KVIMG)
    a.I('s_and_b32 s30, s22, 3'); a.I('s_lshl_b32 s30, s30, 3')
    a.I('s_lshl_b32 s31, s30, 6'); a.I('s_add_u32 s31, s31, s26'); a.I(f's_mul_i32 s31, s31, {KV_TILE}')
    a.I(f'v_mul_u32_u24 v14, {DV}, v13'); a.I('v_add_u32 v15, v14, v10'); a.I('v_lshlrev_b32 v15, 4, v15')
    for nb in range(9):
        d = 88 + (nb % 6)*4
        b0, b1 = acc(nb, 0), acc(nb, 1)
        a.I(f'v_cvt_pk_bf16_f32 v{d}, v{b0}, v{b0+1}'); a.I(f'v_cvt_pk_bf16_f32 v{d+1}, v{b0+2}, v{b0+3}')
        a.I(f'v_cvt_pk_bf16_f32 v{d+2}, v{b1}, v{b1+1}'); a.I(f'v_cvt_pk_bf16_f32 v{d+3}, v{b1+2}, v{b1+3}')
        if nb < 8:
            a.I(f's_add_u32 s32, s31, {nb*64*KV_TILE}')
            a.vmem(f'buffer_store_dwordx4 {r4(d)}, v15, s[16:19], s32 offen offset:{VT_OFF} ' + os.environ.get('K1FLAG', 'sc1'))
        else:
            a.I('v_lshrrev_b32 v9, 1, v10'); a.I(f's_mov_b32 s32, {64*KV_TILE}'); a.I('v_mul_lo_u32 v9, v9, s32')
            a.I('v_and_b32 v11, 1, v10'); a.I('v_add_u32 v11, v11, v14'); a.I('v_add_u32 v11, 16, v11'); a.I('v_lshl_add_u32 v9, v11, 4, v9')
            a.vmem(f'buffer_store_dwordx4 {r4(d)}, v9, s[16:19], s31 offen offset:{VT_OFF}')
    a.I('s_endpgm')
    a.label('K1_PREP')
    a.I('s_sub_u32 s3, s2, 192')
    K0.prep_body(a, 's3', 'K1P')
    a.label('K1_END')
    a.I('s_endpgm')
    return kernel_text('k1_kernel', a, 160), (192+K0.NPREP, 768, K1_LDS)

def k3():
    a = Asm()
    A3 = 16
    def ac(nb, tb): return A3 + (nb*4+tb)*4
    NG3, NU3 = 192, 64
    a.I(f's_cmp_ge_u32 s2, {NG3+NU3}'); a.I('s_cbranch_scc1 K3_END')
    a.I(f's_load_dwordx2 s[4:5], s[0:1], {A_WS}')
    wave_setup(a)
    a.I(f's_cmp_ge_u32 s2, {NG3}'); a.I('s_cbranch_scc1 K3_UT')
    a.I('s_and_b32 s21, s2, 7'); a.I('s_lshl_b32 s21, s21, 2'); a.I('s_bfe_u32 s26, s2, 0x20003'); a.I('s_add_u32 s21, s21, s26')
    a.I('s_lshr_b32 s22, s2, 5')
    a.I(f's_mul_i32 s27, s21, {4*KS*1024}'); a.I('s_lshl_b32 s28, s20, 10'); a.I('s_add_u32 s27, s27, s28')
    a.I('s_mul_i32 s29, s20, 6144')
    a.I('s_waitcnt lgkmcnt(0)')
    a.I(f's_mul_i32 s26, s22, {18*6*1024}')
    a.I('s_add_u32 s8, s4, s26'); a.I('s_addc_u32 s9, s5, 0')
    a.I(f's_add_u32 s8, s8, {WS.WOF}'); a.I('s_addc_u32 s9, s9, 0')
    a.I(f's_mov_b32 s10, {18*6*1024}'); a.I('s_mov_b32 s11, 0x00020000')
    srd(a, 12, 4, 5, WS.OF_SZ, WS.OF)
    toks = {}
    FR = 112
    def wreg(i, nb): return FR + (i % 3)*40 + nb*4
    def xreg(i, tb): return FR + (i % 3)*40 + 24 + tb*4
    def kload(i):
        for tb in range(4):
            a.I(f's_add_u32 s30, s27, {i*4096 + tb*KS*1024}')
            a.vmem(f'buffer_load_dwordx4 {r4(xreg(i, tb))}, v2, s[12:15], s30 offen')
        for nb in range(6):
            if nb % 4 == 0: a.I(f's_add_u32 s30, s29, {i*24576 + nb*1024}')
            a.vmem(f'buffer_load_dwordx4 {r4(wreg(i, nb))}, v2, s[8:11], s30 offen offset:{(nb % 4)*1024}')
            toks[(i, nb)] = a.vm
    for i in range(3): kload(i)
    stamp(a, 0)
    GA, G2R, XRS = 192, 216, 240
    for i in range(5):
        for nb in range(6):
            if nb % 3 == 0: a.wait(vm=toks[(i, nb+2)])
            for tb in range(4):
                c = '0' if i == 0 else r4(ac(nb, tb))
                a.I(f'v_mfma_f32_16x16x32_bf16 {r4(ac(nb,tb))}, {r4(wreg(i, nb))}, {r4(xreg(i, tb))}, {c}')
        if i == 0: kload(3)
        if i == 1: kload(4)
        if i == 2:
            srd(a, 16, 4, 5, WS.MOD_SZ, WS.MOD); srd(a, 24, 4, 5, WS.XF_SZ, WS.XF); srd(a, 48, 4, 5, WS.G2_SZ, WS.G2)
            a.I('s_mul_i32 s32, s22, 6')
            a.I('v_lshrrev_b32 v9, 4, v1'); a.I('v_lshlrev_b32 v9, 4, v9')
            a.I('s_lshl_b32 s52, s32, 6'); a.I(f's_add_u32 s33, s52, {2*576*4}')
            for q in range(6): a.vmem(f'buffer_load_dwordx4 {r4(GA+4*q)}, v9, s[16:19], s33 offen offset:{q*64}')
            for q in range(6): a.vmem(f'buffer_load_dwordx4 {r4(G2R+4*q)}, v9, s[48:51], s52 offen offset:{q*64}')
            a.I('s_lshl_b32 s34, s21, 2'); a.I('s_add_u32 s34, s34, s20')
            a.I(f's_mul_i32 s35, s34, {KS*1024}'); a.I('s_mul_i32 s36, s22, 3072'); a.I('s_add_u32 s35, s35, s36'); a.I('v_add_u32 v10, s35, v2')
            for q in range(3): a.vmem(f'buffer_load_dwordx4 {r4(XRS+4*q)}, v10, s[24:27], 0 offen offset:{q*1024}')
    stamp(a, 2)
    a.I('s_mul_i32 s38, s20, 24576'); a.I('v_add_u32 v11, s38, v2')
    for nb in range(6):
        for tb in range(4): a.I(f'ds_write_b128 v11, {r4(ac(nb,tb))} offset:{(nb*4+tb)*1024}')
    a.I('s_waitcnt lgkmcnt(0)'); a.I('s_barrier')
    stamp(a, 3)
    a.I('s_lshl_b32 s38, s20, 10'); a.I('v_add_u32 v11, s38, v2'); a.I('v_add_u32 v12, 49152, v11')
    for nb in range(6):
        for wv in range(4):
            a.I(f'ds_read_b128 {r4(A3+nb*16+wv*4)}, v{11 + wv//2} offset:{(wv % 2)*24576 + nb*4096}')
    srd(a, 8, 4, 5, WS.X1F_SZ, WS.X1F); srd(a, 12, 4, 5, WS.X1G_SZ, WS.X1G)
    a.I('v_mov_b32 v13, 0'); a.I('v_mov_b32 v14, 0')
    a.I('s_waitcnt vmcnt(0) lgkmcnt(0)')
    for q in range(3):
        for e in range(2):
            nb = 2*q + e
            b = A3 + nb*16
            for r in range(4):
                a.I(f'v_add_f32 v{b+r}, v{b+r}, v{b+4+r}'); a.I(f'v_add_f32 v{b+8+r}, v{b+8+r}, v{b+12+r}')
            for r in range(4):
                a.I(f'v_add_f32 v{b+r}, v{b+r}, v{b+8+r}')
                x = XRS + 4*q + 2*e + r//2
                if r % 2 == 0: a.I(f'v_lshlrev_b32 v{b+4+r}, 16, v{x}')
                else: a.I(f'v_and_b32 v{b+4+r}, 0xffff0000, v{x}')
            for r in range(4): a.I(f'v_fma_f32 v{b+r}, v{b+r}, v{GA+4*nb+r}, v{b+4+r}')
            d = 112 + q*8 + 2*e
            a.I(f'v_cvt_pk_bf16_f32 v{d}, v{b}, v{b+1}'); a.I(f'v_cvt_pk_bf16_f32 v{d+1}, v{b+2}, v{b+3}')
            for z in range(2):
                a.I(f'v_lshlrev_b32 v{b+4+2*z}, 16, v{d+z}'); a.I(f'v_and_b32 v{b+5+2*z}, 0xffff0000, v{d+z}')
            for r in range(4):
                a.I(f'v_add_f32 v13, v13, v{b+4+r}'); a.I(f'v_fmac_f32 v14, v{b+4+r}, v{b+4+r}')
                a.I(f'v_mul_f32 v{b+8+r}, v{b+4+r}, v{G2R+4*nb+r}')
            a.I(f'v_cvt_pk_bf16_f32 v{d+4}, v{b+8}, v{b+9}'); a.I(f'v_cvt_pk_bf16_f32 v{d+5}, v{b+10}, v{b+11}')
        a.vmem(f'buffer_store_dwordx4 {r4(112+q*8)}, v10, s[8:11], 0 offen offset:{q*1024}')
        a.vmem(f'buffer_store_dwordx4 {r4(116+q*8)}, v10, s[12:15], 0 offen offset:{q*1024}')
    for r in ('v13', 'v14'):
        a.I(f'v_mov_b32 v15, {r}'); a.I(f'v_permlane16_swap_b32 {r}, v15'); a.I(f'v_add_f32 {r}, {r}, v15')
        a.I(f'v_mov_b32 v15, {r}'); a.I(f'v_permlane32_swap_b32 {r}, v15'); a.I(f'v_add_f32 {r}, {r}, v15')
    a.I('v_mov_b32 v140, v13'); a.I('v_mov_b32 v141, v14')
    srd(a, 8, 4, 5, WS.STAT2_SZ, WS.STAT2)
    a.I(f's_mul_i32 s36, s34, {16*48}'); a.I('s_lshl_b32 s37, s22, 3'); a.I('s_add_u32 s36, s36, s37')
    a.I('v_and_b32 v15, 15, v1'); a.I('v_mul_u32_u24 v15, 48, v15')
    a.I('v_cmp_gt_u32 vcc, 16, v1'); a.I('s_and_saveexec_b64 s[46:47], vcc')
    a.vmem('buffer_store_dwordx2 v[140:141], v15, s[8:11], s36 offen')
    a.I('s_endpgm')
    a.label('K3_UT')
    a.I(f's_sub_u32 s21, s2, {NG3}'); a.I('s_lshl_b32 s21, s21, 2'); a.I('s_add_u32 s21, s21, s20')
    a.I('v_and_b32 v3, 15, v1'); a.I('v_lshrrev_b32 v4, 4, v1')
    a.I('s_waitcnt lgkmcnt(0)')
    srd(a, 8, 4, 5, WS.W1S_SZ, WS.W1S); srd(a, 12, 4, 5, WS.MOD_SZ, WS.MOD); srd(a, 16, 4, 5, WS.UT1_SZ, WS.UT1); srd(a, 28, 4, 5, WS.G2_SZ, WS.G2)
    a.I('v_lshlrev_b32 v5, 4, v4')
    def fload(fbg_s):
        sdiv(a, 's22', fbg_s, 3, 287); a.I('s_mul_i32 s23, s22, 3'); a.I(f's_sub_u32 s23, {fbg_s}, s23')
        a.I('s_mul_i32 s24, s22, 54'); a.I('s_add_u32 s24, s24, s23'); a.I('s_lshl_b32 s24, s24, 10')
        for ks in range(18):
            a.I(f's_add_u32 s25, s24, {ks*3072}')
            a.vmem(f'buffer_load_dwordx4 {r4(160+4*ks)}, v2, s[8:11], s25 offen')
    for z in range(144): a.I(f'v_mov_b32 v{16+z}, 0')
    a.I('s_mov_b32 s40, 0x00010001'); a.I('s_mov_b32 s41, 0x00010001'); a.I('s_mov_b32 s42, 0x00020002'); a.I('s_mov_b32 s43, 0x00020002')
    a.I('s_mov_b64 exec, s[40:41]')
    for ks in range(18):
        a.I(f's_mov_b32 s25, {ks*128}')
        a.vmem(f'buffer_load_dwordx4 {r4(16+8*ks)}, v5, s[28:31], s25 offen'); a.vmem(f'buffer_load_dwordx4 {r4(20+8*ks)}, v5, s[28:31], s25 offen offset:64')
    a.I('s_mov_b64 exec, s[42:43]')
    a.I('s_waitcnt vmcnt(30)')
    for ks in range(18):
        a.I(f's_mov_b32 s25, {ks*128 + 1728*4}')
        a.vmem(f'buffer_load_dwordx4 {r4(16+8*ks)}, v5, s[12:15], s25 offen'); a.vmem(f'buffer_load_dwordx4 {r4(20+8*ks)}, v5, s[12:15], s25 offen offset:64')
        if ks == 8: a.I('s_waitcnt vmcnt(30)')
    a.I('s_mov_b64 exec, -1')
    a.I('s_waitcnt vmcnt(20)')
    fload('s21')
    a.I('s_waitcnt vmcnt(18)')
    for ks in range(18):
        b = 16 + 8*ks
        for q in range(4): a.I(f'v_cvt_pk_bf16_f32 v{b+q}, v{b+2*q}, v{b+2*q+1}')
    a.I(f's_mov_b32 s27, {F*4}'); a.I('v_mul_lo_u32 v7, v3, s27'); a.I('v_lshl_add_u32 v7, v4, 4, v7')
    a.label('K3_UTL')
    a.I('s_waitcnt vmcnt(0)')
    for ks in range(18):
        a.I(f'v_mfma_f32_16x16x32_bf16 v[8:11], {r4(160+4*ks)}, {r4(16+8*ks)}, {"0" if ks == 0 else "v[8:11]"}')
    a.I('s_lshl_b32 s25, s21, 6')
    a.I('v_cmp_gt_u32 vcc, 2, v3'); a.I('s_and_saveexec_b64 s[46:47], vcc')
    a.I('buffer_store_dwordx4 v[8:11], v7, s[16:19], s25 offen')
    a.I('s_mov_b64 exec, s[46:47]')
    a.I('s_add_u32 s21, s21, 256'); a.I('s_cmp_ge_u32 s21, 288'); a.I('s_cbranch_scc1 K3_END')
    fload('s21')
    a.I('s_branch K3_UTL')
    a.label('K3_END')
    a.I('s_endpgm')
    return kernel_text('k3_kernel', a, 252), (NG3+NU3, 256, 4*24576)

AC4 = 16
RING = 64
NR = 18
BF4 = 136
XOFF, HOFF, UTL, STL, CNT = 0, 73728, 147456, 152064, 152576
def k4():
    a = Asm()
    a.I('s_cmp_ge_u32 s2, 256'); a.I('s_cbranch_scc1 K4_END')
    a.I(f's_load_dwordx2 s[4:5], s[0:1], {A_WS}')
    wave_setup(a)
    a.I('s_and_b32 s26, s2, 7'); a.I('s_lshr_b32 s27, s2, 3')
    a.I('s_and_b32 s22, s26, 3'); a.I('s_lshl_b32 s22, s22, 1'); a.I('s_and_b32 s28, s27, 1'); a.I('s_add_u32 s22, s22, s28')
    a.I('s_lshr_b32 s21, s26, 2'); a.I('s_lshl_b32 s21, s21, 4'); a.I('s_lshr_b32 s28, s27, 1'); a.I('s_add_u32 s21, s21, s28')
    a.I('s_and_b32 s28, s20, 3'); a.I('s_lshl_b32 s29, s21, 2'); a.I('s_add_u32 s29, s29, s28'); a.I('s_mul_i32 s29, s29, 18')
    a.I('s_lshr_b32 s38, s20, 2'); a.I('s_add_u32 s29, s29, s38'); a.I('s_lshl_b32 s29, s29, 10')
    a.I('s_lshl_b32 s30, s20, 10')
    a.I('s_mul_i32 s31, s22, 12'); a.I('s_add_u32 s31, s31, s20'); a.I(f's_mul_i32 s31, s31, {54*1024}')
    a.I('v_and_b32 v8, 15, v1'); a.I('v_mul_u32_u24 v9, 48, v8')
    a.I(f'v_mov_b32 v10, {CNT}'); a.I('v_mov_b32 v11, 0'); a.I('ds_write_b32 v10, v11'); a.I('ds_write_b32 v10, v11 offset:4'); a.I('ds_write_b32 v10, v11 offset:8'); a.I('ds_write_b32 v10, v11 offset:12'); a.I('ds_write_b32 v10, v11 offset:16'); a.I('ds_write_b32 v10, v11 offset:20')
    a.I('s_waitcnt lgkmcnt(0)')
    srd(a, 40, 4, 5, WS.STAT2_SZ, WS.STAT2)
    a.I('s_cmp_ge_u32 s20, 4'); a.I('s_cbranch_scc1 K4_NS0')
    a.I('s_lshl_b32 s35, s21, 2'); a.I('s_add_u32 s35, s35, s20'); a.I(f's_mul_i32 s35, s35, {16*48}')
    for q in range(3): a.I(f'buffer_load_dwordx4 {r4(AC4+4*q)}, v9, s[40:43], s35 offen offset:{q*16}')
    a.vm -= 3
    a.label('K4_NS0')
    srd(a, 16, 4, 5, WS.X1G_SZ, WS.X1G); srd(a, 8, 4, 5, WS.W1S_SZ, WS.W1S)
    xt = []
    def xdma(i):
        a.I(f's_add_u32 m0, s30, {i*12*1024}'); a.I(f's_add_u32 s34, s29, {i*3*1024}')
        xt.append(a.vmem('buffer_load_dwordx4 v2, s[16:19], s34 offen lds'))
    wt = {}; wstate = {}
    TAILNB = os.environ.get('K4TAIL', '0') == '1'
    def woff(q):
        r = q % 54
        if TAILNB and q >= 54 + 36:
            z = r - 36; nb, k = divmod(z, 6)
            return ((12 + k)*3 + nb)*1024
        return r*1024
    def wissue(q):
        if q >= 108 or q in wt: return
        sl = q % NR
        off = woff(q); srdn = 8 if q < 54 else 12
        key = (srdn, off & ~4095)
        if wstate.get('k') != key:
            a.I(f's_add_u32 s33, s31, {off & ~4095}'); wstate['k'] = key
        if 'now' in os.environ.get('K4A', '') and q >= 18:
            wt[q] = a.vm; return
        wt[q] = a.vmem(f'buffer_load_dwordx4 {r4(RING+4*sl)}, v2, s[{srdn}:{srdn+3}], s33 offen offset:{off & 4095}')
    xdma(0); xdma(1)
    for q in range(6): wissue(q)
    srd(a, 12, 4, 5, WS.W2S_SZ, WS.W2S); srd(a, 24, 4, 5, WS.UT1_SZ, WS.UT1)
    a.I('s_cmp_lt_u32 s20, 4'); a.I('s_cbranch_scc1 K4_PA'); a.I('s_cmp_lt_u32 s20, 8'); a.I('s_cbranch_scc1 K4_PB')
    a.I('s_setprio 1' if 'noprio' not in os.environ.get('K4V', '') else 's_nop 0'); a.I('s_branch K4_PD')
    a.label('K4_PB'); a.I('s_setprio 2' if 'noprio' not in os.environ.get('K4V', '') else 's_nop 0'); a.I('s_branch K4_PD')
    a.label('K4_PA'); a.I('s_setprio 3' if 'noprio' not in os.environ.get('K4V', '') else 's_nop 0')
    a.label('K4_PD')
    tok = {}
    def late_loads():
        for i in range(2, 6): xdma(i)
        a.I('s_mul_i32 s34, s20, 384'); a.I(f's_add_u32 m0, s34, {UTL}')
        a.I('s_cmp_ge_u32 s20, 6'); a.I(f's_cselect_b32 s35, {F*4 - 2304}, 0'); a.I('s_add_u32 s35, s35, s34')
        a.I('s_mul_i32 s36, s22, 2304'); a.I('s_add_u32 s35, s35, s36')
        a.I('s_mov_b64 exec, 0xffffff'); a.vmem('buffer_load_dwordx4 v2, s[24:27], s35 offen lds'); a.I('s_mov_b64 exec, -1')
        tok['ut'] = a.vm
    stamp(a, 0)
    a.I('v_mov_b32 v3, v2'); a.I('v_add_u32 v4, 36864, v2'); a.I(f'v_add_u32 v5, {HOFF}, v2'); a.I(f'v_add_u32 v6, {HOFF+36864}, v2')
    btok = {}
    def bread(kind, ks, st):
        base = (3 if kind == 'x' else 5) + (ks // 9)
        for tb in range(4):
            if 'nold' in os.environ.get('K4A', '') and ks > 1:
                btok[(kind, ks, tb)] = a.lg; continue
            btok[(kind, ks, tb)] = a.lds(f'ds_read_b128 {r4(BF4+st*16+tb*4)}, v{base} offset:{((ks % 9)*4+tb)*1024}')
    nxt_w = [6]
    st8 = {'q': 0}
    def pump():
        nis = 0
        while nxt_w[0] < min(st8['q'] + NR, 108) and nis < 2:
            wissue(nxt_w[0]); nxt_w[0] += 1; nis += 1
    def gemm(kind, hooks={}):
        for ks in range(18):
            cur = ks % 2
            if ks in hooks:
                lg0 = a.lg
                hooks[ks]()
                a.lg = lg0
            if ks + 1 < 18: bread(kind, ks+1, 1-cur)
            q = st8['q']
            a.wait(vm=wt[q+2], lg=btok[(kind, ks, 3)])
            for fb in range(3):
                for tb in range(4):
                    d = r4(AC4+(fb*4+tb)*4)
                    a.I(f'v_mfma_f32_16x16x32_bf16 {d}, {r4(RING+4*(st8["q"] % NR))}, {r4(BF4+cur*16+tb*4)}, {"0" if ks == 0 else d}')
                st8['q'] += 1
                pump()
    a.wait(vm=xt[1])
    a.I('s_cmp_ge_u32 s20, 4'); a.I('s_cbranch_scc1 K4_NS1')
    b = AC4
    for z in range(1, 6):
        a.I(f'v_add_f32 v{b}, v{b}, v{b+2*z}'); a.I(f'v_add_f32 v{b+1}, v{b+1}, v{b+2*z+1}')
    a.I(f'v_mul_f32 v{b}, {hexf(1.0/576)}, v{b}'); a.I(f'v_mul_f32 v{b+1}, {hexf(1.0/576)}, v{b+1}')
    a.I(f'v_fma_f32 v{b+1}, -v{b}, v{b}, v{b+1}'); a.I(f'v_max_f32 v{b+1}, 0, v{b+1}'); a.I(f'v_add_f32 v{b+1}, {hexf(1e-5)}, v{b+1}')
    a.I(f'v_rsq_f32 v{b+1}, v{b+1}')
    a.I(f'v_mul_f32 v{b+2}, {hexf(LOG2E)}, v{b+1}'); a.I(f'v_mul_f32 v{b+3}, v{b+2}, v{b}')
    a.I('v_lshlrev_b32 v8, 3, v8'); a.I('s_lshl_b32 s35, s20, 7'); a.I(f's_add_u32 s35, s35, {STL}'); a.I('v_add_u32 v8, s35, v8')
    a.I(f'ds_write_b64 v8, {r2(b+2)}')
    a.label('K4_NS1')
    a.I('s_waitcnt lgkmcnt(0)'); a.I('s_barrier')
    stamp(a, 1)
    bread('x', 0, 0)
    def hx():
        for i in range(2, 6): pass
    def gate():
        L = a.newlabel('K4_GATE')
        a.I('s_cmp_eq_u32 s38, 0'); a.I(f's_cbranch_scc1 {L}_D')
        a.I('s_lshl_b32 s36, s38, 2'); a.I(f's_add_u32 s36, s36, {CNT+8}'); a.I('v_mov_b32 v10, s36')
        a.label(L)
        a.I('ds_read_b32 v11, v10'); a.I('s_waitcnt lgkmcnt(0)'); a.I('v_readfirstlane_b32 s36, v11')
        a.I('s_cmp_ge_u32 s36, 4'); a.I(f's_cbranch_scc1 {L}_D'); a.I('s_sleep 4'); a.I(f's_branch {L}')
        a.label(f'{L}_D')
    def sig_g1():
        L = a.newlabel('K4_SIG')
        a.I('s_cmp_ge_u32 s38, 2'); a.I(f's_cbranch_scc1 {L}')
        a.I('s_lshl_b32 s36, s38, 2'); a.I(f's_add_u32 s36, s36, {CNT+12}'); a.I('v_mov_b32 v10, s36'); a.I('v_mov_b32 v11, 1')
        a.I('s_mov_b64 exec, 1'); a.I('ds_add_u32 v10, v11'); a.I('s_mov_b64 exec, -1')
        a.label(L)
    def sig_x():
        a.wait(vm=tok['ut'])
        a.I(f'v_mov_b32 v10, {CNT+20}'); a.I('v_mov_b32 v11, 1')
        a.I('s_mov_b64 exec, 1'); a.I('ds_add_u32 v10, v11'); a.I('s_mov_b64 exec, -1')
    def h1():
        L = a.newlabel('K4_H1')
        a.I('s_cmp_eq_u32 s38, 0'); a.I(f's_cbranch_scc1 {L}')
        lg0 = a.lg
        sig_x(); gate()
        a.label(L)
    def h4():
        L = a.newlabel('K4_H4')
        a.I('s_cmp_lg_u32 s38, 0'); a.I(f's_cbranch_scc1 {L}')
        sig_x()
        a.label(L)
    def h5():
        L = a.newlabel('K4_H5')
        a.I(f'v_mov_b32 v10, {CNT+20}')
        a.label(L)
        a.I('ds_read_b32 v11, v10'); a.I('s_waitcnt lgkmcnt(0)'); a.I('v_readfirstlane_b32 s36, v11')
        a.I('s_cmp_ge_u32 s36, 12'); a.I(f's_cbranch_scc1 {L}_D'); a.I('s_sleep 2'); a.I(f's_branch {L}')
        a.label(f'{L}_D')
    K4V = os.environ.get('K4V', 'nogate')
    if 'nogate' in K4V:
        def h1n():
            L = a.newlabel('K4_H1')
            a.I('s_cmp_eq_u32 s38, 0'); a.I(f's_cbranch_scc1 {L}')
            sig_x()
            a.label(L)
        gemm('x', hooks={0: late_loads, 1: h1n, 4: h4, 5: h5})
    else:
        gemm('x', hooks={0: late_loads, 1: h1, 4: h4, 5: h5, int(os.environ.get('K4SIG', '13')): sig_g1})
    stamp(a, 2)
    a.I('s_mul_i32 s35, s20, 3')
    a.I('v_lshrrev_b32 v14, 4, v1'); a.I('v_lshlrev_b32 v14, 4, v14'); a.I('s_mul_i32 s36, s20, 192'); a.I(f's_add_u32 s36, s36, {UTL}'); a.I('v_add_u32 v7, s36, v14')
    a.I('v_and_b32 v14, 15, v1'); a.I('v_lshlrev_b32 v14, 3, v14'); a.I(f'v_add_u32 v14, {STL}, v14')
    T0 = BF4
    for tb in range(4): a.I(f'ds_read_b64 {r2(T0+2*tb)}, v14 offset:{tb*128}')
    for fb in range(3):
        a.I(f'ds_read_b128 {r4(T0+8+fb*8)}, v7 offset:{fb*64}'); a.I(f'ds_read_b128 {r4(T0+12+fb*8)}, v7 offset:{fb*64+2304}')
    for fb in range(3):
        a.I(f's_add_u32 s36, s35, {fb}'); a.I('s_and_b32 s37, s36, 1'); a.I('s_lshr_b32 s36, s36, 1')
        a.I('s_lshl_b32 s36, s36, 12'); a.I('s_lshl_b32 s37, s37, 3'); a.I('s_add_u32 s36, s36, s37'); a.I(f'v_add_u32 v{7+fb}, s36, v5')
    a.I('s_waitcnt lgkmcnt(0)')
    for fb in range(3):
        U_, T_ = T0+8+fb*8, T0+12+fb*8
        for r in range(4): a.I(f'v_mul_f32 v{T_+r}, {hexf(LOG2E)}, v{T_+r}')
        for tb in range(4):
            b = AC4 + (fb*4+tb)*4
            if 'nosilu' not in os.environ.get('K4A', ''):
                for r in range(4): a.I(f'v_fma_f32 v{10+r}, -v{T0+2*tb+1}, v{U_+r}, v{T_+r}')
                for r in range(4): a.I(f'v_fma_f32 v{b+r}, v{b+r}, v{T0+2*tb}, v{10+r}')
                for r in range(4): a.I(f'v_exp_f32 v{10+r}, -v{b+r}')
                for r in range(4): a.I(f'v_add_f32 v{10+r}, 1.0, v{10+r}')
                for r in range(4): a.I(f'v_rcp_f32 v{10+r}, v{10+r}')
                for r in range(4): a.I(f'v_mul_f32 v{b+r}, v{b+r}, v{10+r}')
            a.I(f'v_cvt_pk_bf16_f32 v14, v{b}, v{b+1}'); a.I(f'v_cvt_pk_bf16_f32 v15, v{b+2}, v{b+3}')
            a.lds(f'ds_write_b64 v{7+fb}, v[14:15] offset:{tb*1024}')
    a.I('s_waitcnt lgkmcnt(0)')
    a.I('s_lshl_b32 s36, s38, 2'); a.I(f's_add_u32 s36, s36, {CNT}'); a.I('v_mov_b32 v10, s36'); a.I('v_mov_b32 v11, 1')
    a.I('s_mov_b64 exec, 1'); a.I('ds_add_u32 v10, v11'); a.I('s_mov_b64 exec, -1')
    a.I('s_setprio 0')
    stamp(a, 3)
    def poll(g):
        def f():
            L = a.newlabel('K4_POLL')
            a.I(f'v_mov_b32 v10, {CNT+4*g}')
            a.label(L)
            a.I('ds_read_b32 v11, v10'); a.I('s_waitcnt lgkmcnt(0)'); a.I('v_readfirstlane_b32 s36, v11')
            a.I('s_cmp_ge_u32 s36, 4'); a.I(f's_cbranch_scc1 {L}_D'); a.I('s_sleep 2'); a.I(f's_branch {L}')
            a.label(f'{L}_D')
        return f
    poll(0)()
    bread('h', 0, 0)
    srd(a, 16, 4, 5, WS.PART_SZ, WS.PART)
    a.I('s_lshl_b32 s28, s22, 6'); a.I('s_lshl_b32 s29, s21, 1'); a.I('s_add_u32 s28, s28, s29'); a.I('s_mul_i32 s28, s28, 36')
    a.I('s_mul_i32 s29, s20, 3'); a.I('s_add_u32 s28, s28, s29'); a.I('s_lshl_b32 s28, s28, 10')
    def epi(nb):
        for pr in range(2):
            b0, b1 = AC4+(nb*4+2*pr)*4, AC4+(nb*4+2*pr+1)*4
            d = 8 + pr*4 if TAILNB else RING + (nb*2+pr)*4
            a.I(f'v_cvt_pk_bf16_f32 v{d}, v{b0}, v{b0+1}'); a.I(f'v_cvt_pk_bf16_f32 v{d+1}, v{b0+2}, v{b0+3}')
            a.I(f'v_cvt_pk_bf16_f32 v{d+2}, v{b1}, v{b1+1}'); a.I(f'v_cvt_pk_bf16_f32 v{d+3}, v{b1+2}, v{b1+3}')
            a.I(f's_add_u32 s29, s28, {(pr*36+nb)*1024}')
            a.vmem(f'buffer_store_dwordx4 {r4(d)}, v2, s[16:19], s29 offen ' + os.environ.get('PARTFLAG', 'sc1'))
    if not TAILNB:
        gemm('h', hooks={5: poll(1), 11: poll(2)})
        stamp(a, 4)
        for nb in range(3): epi(nb)
    else:
        step = 0
        for ks in range(12):
            cur = step % 2
            if ks == 5 or ks == 11:
                lg0 = a.lg; poll(1 if ks == 5 else 2)(); a.lg = lg0
            bread('h', ks+1, 1-cur)
            q = st8['q']
            a.wait(vm=wt[q+2], lg=btok[('h', ks, 3)])
            for fb in range(3):
                for tb in range(4):
                    d = r4(AC4+(fb*4+tb)*4)
                    a.I(f'v_mfma_f32_16x16x32_bf16 {d}, {r4(RING+4*(st8["q"] % NR))}, {r4(BF4+cur*16+tb*4)}, {"0" if ks == 0 else d}')
                st8['q'] += 1
                pump()
            step += 1
        seq = [(nb, 12 + k) for nb in range(3) for k in range(6)]
        for n, (nb, ks) in enumerate(seq):
            cur = step % 2
            if n + 1 < len(seq): bread('h', seq[n+1][1], 1-cur)
            q = st8['q']
            a.wait(vm=wt[q], lg=btok[('h', ks, 3)])
            tokcur = dict(btok)
            for tb in range(4):
                d = r4(AC4+(nb*4+tb)*4)
                a.I(f'v_mfma_f32_16x16x32_bf16 {d}, {r4(RING+4*(q % NR))}, {r4(BF4+cur*16+tb*4)}, {d}')
            st8['q'] += 1
            pump()
            step += 1
            if ks == 14 and nb > 0: epi(nb - 1)
        stamp(a, 4)
        epi(2)
    a.label('K4_END')
    a.I('s_endpgm')
    return kernel_text('k4_kernel', a, 168), (256, 768, CNT + 64)

def k5():
    a = Asm()
    NWG = 64*18//4
    a.I(f's_cmp_ge_u32 s2, {NWG}'); a.I('s_cbranch_scc1 K5_END')
    a.I(f's_load_dwordx2 s[4:5], s[0:1], {A_WS}'); a.I(f's_load_dwordx2 s[6:7], s[0:1], {A_OUT}')
    wave_setup(a)
    a.I('s_lshl_b32 s21, s2, 2'); a.I('s_add_u32 s21, s21, s20')
    sdiv(a, 's22', 's21', 18, 1151)
    a.I('s_mul_i32 s23, s22, 18'); a.I('s_sub_u32 s23, s21, s23')
    a.I('s_mul_i32 s28, s22, 36'); a.I('s_lshl_b32 s29, s23, 1'); a.I('s_add_u32 s28, s28, s29'); a.I('s_lshl_b32 s28, s28, 10')
    a.I('v_lshrrev_b32 v3, 4, v1'); a.I('v_lshlrev_b32 v4, 4, v3')
    a.I('s_waitcnt lgkmcnt(0)')
    srd(a, 8, 4, 5, WS.PART_SZ, WS.PART)
    for j in range(8):
        a.vmem(f'buffer_load_dwordx4 {r4(16+8*j)}, v2, s[8:11], s28 offen')
        a.vmem(f'buffer_load_dwordx4 {r4(20+8*j)}, v2, s[8:11], s28 offen offset:1024')
        if j < 7: a.I(f's_add_u32 s28, s28, {64*36*1024}')
    srd(a, 12, 4, 5, WS.X1F_SZ, WS.X1F); srd(a, 16, 4, 5, WS.MOD_SZ, WS.MOD); srd(a, 24, 6, 7, S*D*2)
    a.I('s_mul_i32 s28, s22, 36'); a.I('s_add_u32 s28, s28, s23'); a.I('s_lshl_b32 s28, s28, 10')
    a.vmem('buffer_load_dwordx4 v[80:83], v2, s[12:15], s28 offen')
    a.I(f's_add_u32 s28, s28, {18*1024}')
    a.vmem('buffer_load_dwordx4 v[84:87], v2, s[12:15], s28 offen')
    a.I('s_lshl_b32 s28, s23, 7'); a.I(f's_add_u32 s28, s28, {5*576*4}')
    a.vmem('buffer_load_dwordx4 v[88:91], v4, s[16:19], s28 offen')
    a.vmem('buffer_load_dwordx4 v[92:95], v4, s[16:19], s28 offen offset:64')
    a.I('v_and_b32 v5, 15, v1'); a.I('v_mul_u32_u24 v5, 1152, v5')
    a.I('v_and_b32 v6, 1, v3'); a.I('v_lshl_add_u32 v5, v6, 5, v5'); a.I('v_lshrrev_b32 v6, 1, v3'); a.I('v_lshl_add_u32 v5, v6, 4, v5')
    a.I(f's_mul_i32 s28, s22, {32*1152}'); a.I('s_lshl_b32 s29, s23, 6'); a.I('s_add_u32 s28, s28, s29')
    for r in range(16): a.I(f'v_mov_b32 v{96+r}, 0')
    for j in range(8):
        a.I(f's_waitcnt vmcnt({18 - 2*j - 2 + 0})' if False else f's_waitcnt vmcnt({max(0, 20 - 2*(j+1))})')
        for e in range(2):
            for z in range(4):
                w = 16 + 8*j + 4*e + z
                a.I(f'v_lshlrev_b32 v6, 16, v{w}'); a.I(f'v_and_b32 v7, 0xffff0000, v{w}')
                a.I(f'v_add_f32 v{96+e*8+2*z}, v{96+e*8+2*z}, v6'); a.I(f'v_add_f32 v{97+e*8+2*z}, v{97+e*8+2*z}, v7')
    a.I('s_waitcnt vmcnt(0)')
    LN2 = math.log(2.0)
    for r in range(8): a.I(f'v_mul_f32 v{88+r}, {hexf(LN2)}, v{88+r}')
    for h in range(2):
        for e in range(2):
            for r in range(4):
                x = 80 + 4*h + 2*e + r//2
                if r % 2 == 0: a.I(f'v_lshlrev_b32 v6, 16, v{x}')
                else: a.I(f'v_and_b32 v6, 0xffff0000, v{x}')
                a.I(f'v_fma_f32 v{96+e*8+h*4+r}, v{96+e*8+h*4+r}, v{88+4*e+r}, v6')
        d = 112 + 4*h
        a.I(f'v_cvt_pk_bf16_f32 v{d}, v{96+h*4}, v{97+h*4}'); a.I(f'v_cvt_pk_bf16_f32 v{d+1}, v{98+h*4}, v{99+h*4}')
        a.I(f'v_cvt_pk_bf16_f32 v{d+2}, v{104+h*4}, v{105+h*4}'); a.I(f'v_cvt_pk_bf16_f32 v{d+3}, v{106+h*4}, v{107+h*4}')
        a.I(f'v_permlane16_swap_b32 v{d}, v{d+2}'); a.I(f'v_permlane16_swap_b32 v{d+1}, v{d+3}')
        a.vmem(f'buffer_store_dwordx4 {r4(d)}, v5, s[24:27], s28 offen')
        if h == 0: a.I(f's_add_u32 s28, s28, {16*1152}')
    a.label('K5_END')
    a.I('s_endpgm')
    return kernel_text('k5_kernel', a, 120), (NWG, 256, 0)
```
